```python
import torch

def _softmax(x, axis=-1):
    return torch.softmax(x, dim=axis)
def _gelu(x):
    return torch.nn.functional.gelu(x, approximate="tanh")
def _silu(x):
    return torch.nn.functional.silu(x)
def _sigmoid(x):
    return torch.sigmoid(x)
def _layernorm(x, axis=-1, eps=1e-5):
    m = x.mean(dim=axis, keepdim=True)
    v = x.var(dim=axis, keepdim=True, unbiased=False)
    return (x - m) / torch.sqrt(v + eps)
def _scatter_add(tgt, idx, src, axis=0):
    return tgt.clone().index_add_(axis, idx, src)
def _segment_sum(src, seg, n):
    out = torch.zeros((n,) + src.shape[1:], dtype=src.dtype)
    return out.index_add_(0, seg, src)
def _pad(x, pw):
    flat = tuple(v for pair in reversed(pw) for v in pair)
    return torch.nn.functional.pad(x, flat)

kernel_name = 'recurrent_scan__spectral_fnet__mixer_channel_mlp__prompt'

def setup_inputs():

    _w = (lambda a: (lambda t: t.to(torch.bfloat16) if t.is_floating_point() else t)(torch.as_tensor(a)))
    def _A_setup():
        B, S, D = 1, 2048, 512
        ns = torch.arange(S)[:, None] * torch.arange(S)[None, :]
        nd = torch.arange(D)[:, None] * torch.arange(D)[None, :]
        Ws_re = torch.cos(-2.0 * torch.pi * ns / S).to(float)
        Ws_im = torch.sin(-2.0 * torch.pi * ns / S).to(float)
        Wd_re = torch.cos(-2.0 * torch.pi * nd / D).to(float)
        Wd_im = torch.sin(-2.0 * torch.pi * nd / D).to(float)
        return {
            "x": _w((lambda *s: torch.randn(*s, dtype=torch.bfloat16) * 0.05)(B, S, D)),
            "dft_seq_re": _w(Ws_re),
            "dft_seq_im": _w(Ws_im),
            "dft_hid_re": _w(Wd_re),
            "dft_hid_im": _w(Wd_im),
        }
    _A_in = _A_setup()

    def _B_setup():
        B, S, D, F = 1, 2048, 512, 1376
        return {
            "x": _w((lambda *s: torch.randn(*s, dtype=torch.bfloat16) * 0.05)(B, S, D)),
            "w1": _w((lambda *s: torch.randn(*s, dtype=torch.bfloat16) * 0.8)(D, F) * (D ** -0.5)),
            "b1": _w((lambda *s: torch.randn(*s, dtype=torch.bfloat16) * 0.8)(F)),
            "w2": _w((lambda *s: torch.randn(*s, dtype=torch.bfloat16) * 0.05)(F, D) * (F ** -0.5)),
            "b2": _w((lambda *s: torch.randn(*s, dtype=torch.bfloat16) * 0.05)(D)),
        }
    _B_in = _B_setup()

    return {
        "A_x": _A_in["x"],
        "A_dft_seq_re": _A_in["dft_seq_re"],
        "A_dft_seq_im": _A_in["dft_seq_im"],
        "A_dft_hid_re": _A_in["dft_hid_re"],
        "A_dft_hid_im": _A_in["dft_hid_im"],
        "B_x": _B_in["x"],
        "B_w1": _B_in["w1"],
        "B_b1": _B_in["b1"],
        "B_w2": _B_in["w2"],
        "B_b2": _B_in["b2"],
    }

def reference(A_x, A_dft_seq_re, A_dft_seq_im, A_dft_hid_re, A_dft_hid_im, B_x, B_w1, B_b1, B_w2, B_b2):
    def _A_ref(x, dft_seq_re, dft_seq_im, dft_hid_re, dft_hid_im):
        a = torch.einsum("bsd,ed->bse", x, dft_hid_re)
        b = torch.einsum("bsd,ed->bse", x, dft_hid_im)
        y = torch.einsum("ts,bse->bte", dft_seq_re, a) - torch.einsum("ts,bse->bte", dft_seq_im, b)
        return y

    def _B_ref(x, w1, b1, w2, b2):
        y = _layernorm(x, axis=-1)
        h = _gelu(torch.einsum("bsd,df->bsf", y, w1) + b1)
        return torch.einsum("bsf,fd->bsd", h, w2) + b2

    x = A_x
    xn = _layernorm(x, axis=-1)
    s = _A_ref(xn, A_dft_seq_re, A_dft_seq_im, A_dft_hid_re, A_dft_hid_im)
    g = _silu(_B_ref(xn, B_w1, B_b1, B_w2, B_b2))
    return x + s * g
```

```python
import sys, math

NAME = "recurrent_scan__spectral_fnet__mixer_channel_mlp__prompt"

WS_XN = 0
WS_Y2 = 2 << 20
WS_WCAT = 4 << 20
WS_W2T = 8 << 20
WS_ABT = 10 << 20
WS_H = 16 << 20
WS_PART = 32 << 20
HS = 1408
F = 1376

KA_X, KA_WSRE, KA_WSIM, KA_WDRE, KA_WDIM, KA_BX, KA_W1, KA_B1, KA_W2, KA_B2, KA_OUT, KA_DBG, KA_WS = [8 * i for i in range(13)]


class E:
    def __init__(self):
        self.L = []

    def __call__(self, s):
        for line in s.split("\n"):
            line = line.strip()
            if line:
                self.L.append(("    " if not line.endswith(":") else "") + line)

    def text(self):
        return "\n".join(self.L) + "\n"


def f32bits(x):
    import struct
    return struct.unpack("<I", struct.pack("<f", x))[0]


def srd(e, d, base, off, nbytes):
    if off:
        e(f"s_add_u32 s{d}, s{base}, {off}")
        e(f"s_addc_u32 s{d+1}, s{base+1}, 0")
    else:
        e(f"s_mov_b32 s{d}, s{base}")
        e(f"s_mov_b32 s{d+1}, s{base+1}")
    e(f"s_mov_b32 s{d+2}, {nbytes}")
    e(f"s_mov_b32 s{d+3}, 0x20000")


def kernel_head(e, name):
    e(f".globl {name}")
    e(".p2align 8")
    e(f".type {name},@function")
    e(f"{name}:")


def kdesc(name, vgpr, sgpr=102):
    v = (vgpr + 3) // 4 * 4
    return f""".amdhsa_kernel {name}
  .amdhsa_next_free_vgpr {v}
  .amdhsa_next_free_sgpr {sgpr}
  .amdhsa_accum_offset {v}
  .amdhsa_group_segment_fixed_size 0
  .amdhsa_kernarg_size 104
  .amdhsa_user_sgpr_count 2
  .amdhsa_user_sgpr_kernarg_segment_ptr 1
  .amdhsa_system_sgpr_workgroup_id_x 1
.end_amdhsa_kernel
"""


def wave_reduce(e, regs, sbase):
    for ctl in ("quad_perm:[1,0,3,2]", "quad_perm:[2,3,0,1]", "row_half_mirror", "row_mirror"):
        e("s_nop 1")
        for r in regs:
            e(f"v_add_f32_dpp v{r}, v{r}, v{r} {ctl} row_mask:0xf bank_mask:0xf")
    e("s_nop 1")
    for i, r in enumerate(regs):
        for j in range(4):
            e(f"v_readlane_b32 s{sbase + 4 * i + j}, v{r}, {16 * j}")
    e("s_nop 1")
    for i, r in enumerate(regs):
        e(f"v_mov_b32 v{r}, s{sbase + 4 * i}")
        for j in range(1, 4):
            e(f"v_add_f32 v{r}, s{sbase + 4 * i + j}, v{r}")


def bf16r_scalar(e, r):
    e(f"v_cvt_pk_bf16_f32 v{r}, v{r}, v{r}")
    e(f"v_lshlrev_b32 v{r}, 16, v{r}")


def ln_pass(e, Fr, T, P):
    rows = range(len(Fr))
    for R in rows:
        f, t = Fr[R], T[R]
        e(f"v_add_f32 v{t[0]}, v{f[0]}, v{f[1]}")
        for i in range(2, 8):
            e(f"v_add_f32 v{t[0]}, v{t[0]}, v{f[i]}")
    wave_reduce(e, [T[R][0] for R in rows], 40)
    for R in rows:
        f, t = Fr[R], T[R]
        e(f"v_mul_f32 v{t[0]}, {f32bits(1.0/512):#x}, v{t[0]}")
        e(f"v_sub_f32 v{t[2]}, v{f[0]}, v{t[0]}")
        e(f"v_mul_f32 v{t[1]}, v{t[2]}, v{t[2]}")
        for i in range(1, 8):
            e(f"v_sub_f32 v{t[2]}, v{f[i]}, v{t[0]}")
            e(f"v_fmac_f32 v{t[1]}, v{t[2]}, v{t[2]}")
    wave_reduce(e, [T[R][1] for R in rows], 40)
    for R in rows:
        f, t = Fr[R], T[R]
        e(f"v_mul_f32 v{t[1]}, {f32bits(1.0/512):#x}, v{t[1]}")
        bf16r_scalar(e, t[0])
        bf16r_scalar(e, t[1])
        e(f"v_add_f32 v{t[1]}, {f32bits(1e-5):#x}, v{t[1]}")
        bf16r_scalar(e, t[1])
        e(f"v_sqrt_f32 v{t[1]}, v{t[1]}")
        e("s_nop 0")
        bf16r_scalar(e, t[1])
        e(f"v_rcp_f32 v{t[2]}, v{t[1]}")
        e("s_nop 0")
        for i in range(0, 8, 2):
            e(f"v_sub_f32 v{f[i]}, v{f[i]}, v{t[0]}")
            e(f"v_sub_f32 v{f[i+1]}, v{f[i+1]}, v{t[0]}")
            e(f"v_cvt_pk_bf16_f32 v{t[3]}, v{f[i]}, v{f[i+1]}")
            e(f"v_lshlrev_b32 v{f[i]}, 16, v{t[3]}")
            e(f"v_and_b32 v{f[i+1]}, 0xffff0000, v{t[3]}")
            for j in (i, i + 1):
                e(f"v_mul_f32 v{t[3]}, v{f[j]}, v{t[2]}")
                e(f"v_fma_f32 v{t[4]}, -v{t[3]}, v{t[1]}, v{f[j]}")
                e(f"v_fma_f32 v{f[j]}, v{t[4]}, v{t[2]}, v{t[3]}")
            e(f"v_cvt_pk_bf16_f32 v{P[R][i//2]}, v{f[i]}, v{f[i+1]}")
            e(f"v_lshlrev_b32 v{f[i]}, 16, v{P[R][i//2]}")
            e(f"v_and_b32 v{f[i+1]}, 0xffff0000, v{P[R][i//2]}")


K0_LN, K0_T1, K0_T2, K0_CP = 256, 88, 88, 32
K0_WGS = K0_LN + K0_T1 + K0_T2 + K0_CP


def gen_k0(e, name):
    kernel_head(e, name)
    e(f"s_cmp_ge_u32 s2, {K0_WGS}")
    e(f"s_cbranch_scc1 L_k0_done")
    e(f"s_load_dwordx2 s[4:5], s[0:1], {KA_X}")
    e(f"s_load_dwordx2 s[6:7], s[0:1], {KA_WS}")
    e(f"s_load_dwordx4 s[8:11], s[0:1], {KA_WDRE}")
    e(f"s_load_dwordx2 s[12:13], s[0:1], {KA_W1}")
    e(f"s_load_dwordx2 s[14:15], s[0:1], {KA_W2}")
    e("v_lshrrev_b32 v1, 6, v0")
    e("v_and_b32 v2, 63, v0")
    e("s_nop 0")
    e("v_readfirstlane_b32 s16, v1")
    e("s_waitcnt lgkmcnt(0)")
    srd(e, 24, 6, 0, 64 << 20)
    e(f"s_cmp_ge_u32 s2, {K0_LN}")
    e("s_cbranch_scc1 L_k0_notln")
    srd(e, 20, 4, 0, 2 << 20)
    e("s_lshl_b32 s17, s2, 3")
    e("s_lshl_b32 s18, s16, 1")
    e("s_add_u32 s17, s17, s18")
    e("s_lshl_b32 s17, s17, 10")
    e("v_lshlrev_b32 v3, 4, v2")
    e("v_add_u32 v3, s17, v3")
    e("buffer_load_dwordx4 v[4:7], v3, s[20:23], 0 offen")
    e("buffer_load_dwordx4 v[8:11], v3, s[20:23], 0 offen offset:1024")
    Fr = [list(range(16, 24)), list(range(24, 32))]
    T = [list(range(32, 38)), list(range(38, 44))]
    P = [list(range(44, 48)), list(range(48, 52))]
    e("s_waitcnt vmcnt(0)")
    for R in range(2):
        for i in range(4):
            e(f"v_lshlrev_b32 v{Fr[R][2*i]}, 16, v{4+4*R+i}")
            e(f"v_and_b32 v{Fr[R][2*i+1]}, 0xffff0000, v{4+4*R+i}")
    ln_pass(e, Fr, T, P)
    e("buffer_store_dwordx4 v[44:47], v3, s[24:27], 0 offen")
    e("buffer_store_dwordx4 v[48:51], v3, s[24:27], 0 offen offset:1024")
    P2 = [list(range(52, 56)), list(range(56, 60))]
    ln_pass(e, Fr, T, P2)
    e(f"s_mov_b32 s17, {WS_Y2}")
    e("buffer_store_dwordx4 v[52:55], v3, s[24:27], s17 offen")
    e("buffer_store_dwordx4 v[56:59], v3, s[24:27], s17 offen offset:1024")
    e("s_endpgm")
    e("L_k0_notln:")
    e(f"s_cmp_ge_u32 s2, {K0_LN + K0_T1}")
    e("s_cbranch_scc1 L_k0_nott1")
    srd(e, 20, 12, 0, 512 * F * 2)
    e(f"s_sub_u32 s17, s2, {K0_LN}")
    e("s_lshl_b32 s17, s17, 2")
    e("s_add_u32 s17, s17, s16")
    e("s_lshr_b32 s18, s17, 4")
    e("s_and_b32 s19, s17, 15")
    e("s_lshl_b32 s18, s18, 6")
    e("v_add_u32 v3, s18, v2")
    e("v_lshlrev_b32 v20, 1, v3")
    e(f"s_mul_i32 s28, s19, {32 * F * 2}")
    for i in range(32):
        e(f"buffer_load_ushort v{24 + i}, v20, s[20:23], s28 offen")
        if i != 31:
            e(f"s_add_u32 s28, s28, {F * 2}")
    e("v_lshlrev_b32 v21, 10, v3")
    e("s_lshl_b32 s19, s19, 6")
    e(f"s_add_u32 s19, s19, {WS_WCAT + 1024 * 1024}")
    e(f"v_cmp_gt_u32 vcc, {F}, v3")
    e("s_and_saveexec_b64 s[30:31], vcc")
    e("s_cbranch_execz L_k0_done")
    e("s_waitcnt vmcnt(0)")
    for i in range(16):
        e(f"v_lshl_or_b32 v{4 + i}, v{25 + 2 * i}, 16, v{24 + 2 * i}")
    for i in range(4):
        e(f"buffer_store_dwordx4 v[{4+4*i}:{7+4*i}], v21, s[24:27], s19 offen offset:{16*i}")
    e("s_endpgm")
    e("L_k0_nott1:")
    e(f"s_cmp_ge_u32 s2, {K0_LN + K0_T1 + K0_T2}")
    e("s_cbranch_scc1 L_k0_cp")
    srd(e, 20, 14, 0, F * 512 * 2)
    e(f"s_sub_u32 s17, s2, {K0_LN + K0_T1}")
    e("s_lshl_b32 s17, s17, 2")
    e("s_add_u32 s17, s17, s16")
    e("s_and_b32 s18, s17, 7")
    e("s_lshr_b32 s19, s17, 3")
    e("s_lshl_b32 s18, s18, 6")
    e("v_add_u32 v3, s18, v2")
    e("v_lshlrev_b32 v20, 1, v3")
    e("s_lshl_b32 s28, s19, 15")
    for i in range(32):
        e(f"buffer_load_ushort v{24 + i}, v20, s[20:23], s28 offen")
        if i != 31:
            e(f"s_add_u32 s28, s28, 1024")
    e(f"v_mul_u32_u24 v21, {HS * 2}, v3")
    e("s_lshl_b32 s19, s19, 6")
    e(f"s_add_u32 s19, s19, {WS_W2T}")
    e("s_waitcnt vmcnt(0)")
    for i in range(16):
        e(f"v_lshl_or_b32 v{4 + i}, v{25 + 2 * i}, 16, v{24 + 2 * i}")
    for i in range(4):
        e(f"buffer_store_dwordx4 v[{4+4*i}:{7+4*i}], v21, s[24:27], s19 offen offset:{16*i}")
    e("s_endpgm")
    e("L_k0_cp:")
    e(f"s_sub_u32 s17, s2, {K0_LN + K0_T1 + K0_T2}")
    e("s_lshl_b32 s17, s17, 2")
    e("s_add_u32 s17, s17, s16")
    e("s_cmp_ge_u32 s17, 64")
    e("s_cselect_b32 s20, s10, s8")
    e("s_cselect_b32 s21, s11, s9")
    e(f"s_mov_b32 s22, {512 * 1024}")
    e("s_mov_b32 s23, 0x20000")
    e("s_and_b32 s18, s17, 63")
    e("s_lshl_b32 s18, s18, 13")
    e("s_lshl_b32 s19, s17, 13")
    e(f"s_add_u32 s19, s19, {WS_WCAT}")
    e("v_lshlrev_b32 v3, 4, v2")
    for i in range(8):
        if i == 4:
            e("s_add_u32 s18, s18, 4096")
        e(f"buffer_load_dwordx4 v[{4+4*i}:{7+4*i}], v3, s[20:23], s18 offen offset:{1024*(i%4)}")
    e("s_waitcnt vmcnt(0)")
    for i in range(8):
        if i == 4:
            e("s_add_u32 s19, s19, 4096")
        e(f"buffer_store_dwordx4 v[{4+4*i}:{7+4*i}], v3, s[24:27], s19 offen offset:{1024*(i%4)}")
    e("L_k0_done:")
    e("s_endpgm")
    return 64


class Gemm:
    def __init__(self, tag, TM, TN, WM, WN, nsteps, NS, strideP, strideQ, swap=False, vbase=16):
        self.tag = tag
        self.TM, self.TN, self.WM, self.WN = TM, TN, WM, WN
        self.PR, self.QR = WM * TM * 16, WN * TN * 16
        self.nsteps, self.NS = nsteps, NS
        self.sP, self.sQ = strideP, strideQ
        self.swap = swap
        self.SS = (self.PR + self.QR) * 128
        assert (self.PR // 8) % 4 == 0 and (self.QR // 8) % 4 == 0
        self.DP, self.DQ = self.PR // 32, self.QR // 32
        self.D = self.DP + self.DQ
        v = vbase
        self.vDP, self.vDQ, self.vP0b, self.vP1b, self.vQ0b, self.vQ1b = range(v, v + 6)
        self.vPa0, self.vPa1, self.vQa0, self.vQa1 = range(v + 6, v + 10)
        v = (v + 10 + 3) // 4 * 4
        self.fP = [v, v + 4 * (TM + TN)]
        self.fQ = [v + 4 * TM, v + 4 * (TM + TN) + 4 * TM]
        v += 8 * (TM + TN)
        self.acc = v
        self.vend = v + 4 * TM * TN

    def accreg(self, tm, tn):
        return self.acc + 4 * (tm * self.TN + tn)

    def setup(self, e):
        g = self
        e("v_and_b32 v1, 63, v0")
        e("v_lshrrev_b32 v2, 3, v1")
        e("v_lshrrev_b32 v3, 4, v1")
        e("s_and_b32 s22, s16, 1")
        e("s_lshl_b32 s22, s22, 2")
        e("v_add_u32 v3, s22, v3")
        e("v_and_b32 v4, 7, v1")
        e("v_xor_b32 v3, v3, v4")
        e("v_lshlrev_b32 v3, 4, v3")
        e("s_lshl_b32 s22, s16, 3")
        e("v_add_u32 v2, s22, v2")
        e(f"s_mov_b32 s22, {g.sP}")
        e(f"v_mul_lo_u32 v4, v2, s22")
        e(f"v_add_u32 v{g.vDP}, v4, v3")
        e(f"s_mov_b32 s22, {g.sQ}")
        e(f"v_mul_lo_u32 v4, v2, s22")
        e(f"v_add_u32 v{g.vDQ}, v4, v3")
        e("v_and_b32 v2, 15, v1")
        e("v_lshrrev_b32 v3, 1, v2")
        e("v_lshrrev_b32 v4, 4, v1")
        e("v_xor_b32 v3, v3, v4")
        e("v_lshlrev_b32 v3, 4, v3")
        e("v_lshlrev_b32 v2, 7, v2")
        e("v_add_u32 v2, v2, v3")
        if g.WN == 2:
            e("s_lshr_b32 s22, s16, 1")
            e("s_and_b32 s23, s16, 1")
        elif g.WN == 1:
            e("s_mov_b32 s22, s16")
            e("s_mov_b32 s23, 0")
        elif g.WN == 4:
            e("s_mov_b32 s22, 0")
            e("s_mov_b32 s23, s16")
        e(f"s_mul_i32 s22, s22, {g.TM * 2048}")
        e(f"s_mul_i32 s23, s23, {g.TN * 2048}")
        e(f"s_add_u32 s23, s23, {g.PR * 128}")
        e(f"v_add_u32 v{g.vP0b}, s22, v2")
        e(f"v_xor_b32 v{g.vP1b}, 64, v{g.vP0b}")
        e(f"v_add_u32 v{g.vQ0b}, s23, v2")
        e(f"v_xor_b32 v{g.vQ1b}, 64, v{g.vQ0b}")
        e("s_lshl_b32 s19, s16, 10")
        e("s_mov_b32 s20, 0")

    def dma_ops(self):
        g = self
        ops = []
        for j in range(g.D):
            isP = j < g.DP
            jj = j if isP else j - g.DP
            stride = g.sP if isP else g.sQ
            sk = "s17" if isP else "s18"
            sr = "s[8:11]" if isP else "s[12:15]"
            vd = g.vDP if isP else g.vDQ
            grp = [f"s_add_u32 m0, s19, {j * 4096}"]
            if jj == 0:
                grp.append("s_nop 0")
                grp.append(f"buffer_load_dwordx4 v{vd}, {sr}, {sk} offen lds")
            else:
                grp.append(f"s_add_u32 s22, {sk}, {jj * 32 * stride}")
                grp.append(f"buffer_load_dwordx4 v{vd}, {sr}, s22 offen lds")
            ops.append(grp)
        adv = ["s_add_u32 s17, s17, 128", "s_add_u32 s18, s18, 128",
               f"s_add_u32 s19, s19, {g.SS}", f"s_sub_u32 s22, s19, {g.NS * g.SS}",
               f"s_cmp_ge_u32 s19, {g.NS * g.SS}", "s_cselect_b32 s19, s22, s19"]
        ops.append(adv)
        return ops

    def frag_reads(self, st):
        g = self
        va, vq = (g.vPa0, g.vQa0) if st == 0 else (g.vPa1, g.vQa1)
        ops = []
        for i in range(max(g.TM, g.TN)):
            if i < g.TM:
                r = g.fP[st] + 4 * i
                ops.append([f"ds_read_b128 v[{r}:{r+3}], v{va} offset:{i * 2048}"])
            if i < g.TN:
                r = g.fQ[st] + 4 * i
                ops.append([f"ds_read_b128 v[{r}:{r+3}], v{vq} offset:{i * 2048}"])
        return ops

    def mfmas(self, st):
        g = self
        ops = []
        for tm in range(g.TM):
            for tn in range(g.TN):
                a = g.accreg(tm, tn)
                p = g.fP[st] + 4 * tm
                q = g.fQ[st] + 4 * tn
                if g.swap:
                    p, q = q, p
                ops.append(f"v_mfma_f32_16x16x32_bf16 v[{a}:{a+3}], v[{p}:{p+3}], v[{q}:{q+3}], v[{a}:{a+3}]")
        return ops

    @staticmethod
    def interleave(e, mf, fillers):
        n = len(mf)
        k = len(fillers)
        fi = 0
        for i, m in enumerate(mf):
            e(m)
            want = min(k, -(-(i + 1) * k // n)) if k > n else min(k, i + 1)
            while fi < want:
                for ins in fillers[fi]:
                    e(ins)
                fi += 1
        while fi < k:
            for ins in fillers[fi]:
                e(ins)
            fi += 1

    def step(self, e, do_dma, vm, last, extra=None):
        g = self
        e(f"v_add_u32 v{g.vPa1}, s20, v{g.vP1b}")
        e(f"v_add_u32 v{g.vQa1}, s20, v{g.vQ1b}")
        e(f"s_add_u32 s20, s20, {g.SS}")
        e(f"s_cmp_eq_u32 s20, {g.NS * g.SS}")
        e("s_cselect_b32 s20, 0, s20")
        e("s_waitcnt lgkmcnt(0)")
        g.interleave(e, g.mfmas(0), g.frag_reads(1))
        if not last:
            e(f"v_add_u32 v{g.vPa0}, s20, v{g.vP0b}")
            e(f"v_add_u32 v{g.vQa0}, s20, v{g.vQ0b}")
            e(f"s_waitcnt vmcnt({vm}) lgkmcnt(0)")
            e("s_barrier")
        else:
            e("s_waitcnt lgkmcnt(0)")
        fill = []
        if not last:
            fill += g.frag_reads(0)
        if do_dma:
            fill += g.dma_ops()
        if extra:
            fill += extra
        g.interleave(e, g.mfmas(1), fill)

    def run(self, e, extra_loads=None):
        g = self
        nx = len(extra_loads) if extra_loads else 0
        for s in range(g.NS - 1):
            for grp in g.dma_ops():
                for ins in grp:
                    e(ins)
        for r in range(g.acc, g.vend):
            e(f"v_mov_b32 v{r}, 0")
        e(f"v_mov_b32 v{g.vPa0}, v{g.vP0b}")
        e(f"v_mov_b32 v{g.vQa0}, v{g.vQ0b}")
        e(f"s_waitcnt vmcnt({(g.NS - 2) * g.D})")
        e("s_barrier")
        for grp in g.frag_reads(0):
            e(grp[0])
        nmain = g.nsteps - g.NS + 1
        e(f"s_mov_b32 s21, {nmain}")
        e(f"L_{g.tag}_loop:")
        g.step(e, True, (g.NS - 3) * g.D, False)
        e("s_sub_u32 s21, s21, 1")
        e("s_cmp_lg_u32 s21, 0")
        e(f"s_cbranch_scc1 L_{g.tag}_loop")
        for i in range(nmain, g.nsteps):
            last = i == g.nsteps - 1
            outstanding_after = g.nsteps - 1 - (i + 1)
            vm = max(outstanding_after, 0) * g.D
            if i > nmain:
                vm += nx
            g.step(e, False, vm, last, extra=extra_loads if i == nmain else None)
        e("s_nop 15")


def bf16r_pair(e, a, b, t):
    e(f"v_cvt_pk_bf16_f32 v{t}, v{a}, v{b}")
    e(f"v_lshlrev_b32 v{a}, 16, v{t}")
    e(f"v_and_b32 v{b}, 0xffff0000, v{t}")


def gen_k1(e, name):
    kernel_head(e, name)
    e("s_cmp_ge_u32 s2, 256")
    e("s_cbranch_scc1 L_k1_done")
    e(f"s_load_dwordx2 s[4:5], s[0:1], {KA_WS}")
    e(f"s_load_dwordx2 s[6:7], s[0:1], {KA_B1}")
    e("v_lshrrev_b32 v1, 6, v0")
    e("s_nop 0")
    e("v_readfirstlane_b32 s16, v1")
    e("s_and_b32 s28, s2, 7")
    e("s_lshr_b32 s29, s2, 3")
    e("s_lshl_b32 s28, s28, 1")
    e("s_lshr_b32 s30, s29, 4")
    e("s_add_u32 s28, s28, s30")
    e("s_and_b32 s29, s29, 15")
    e("s_waitcnt lgkmcnt(0)")
    srd(e, 12, 4, WS_WCAT, 2400 * 1024)
    srd(e, 24, 4, 0, 64 << 20)
    e("s_lshl_b32 s17, s28, 17")
    e("s_cmp_ge_u32 s29, 7")
    e("s_cbranch_scc1 L_k1_typeB")
    srd(e, 8, 4, WS_XN, 2 << 20)
    e("s_mul_i32 s30, s29, 160")
    e("s_min_u32 s30, s30, 864")
    e("s_lshl_b32 s18, s30, 10")
    gA = Gemm("k1a", 4, 5, 2, 2, 8, 4, 1024, 1024, swap=False)
    gA.setup(e)
    gA.run(e)
    e("v_and_b32 v1, 63, v0")
    e("v_and_b32 v2, 15, v1")
    e("v_lshrrev_b32 v3, 4, v1")
    e("v_lshlrev_b32 v2, 13, v2")
    e("v_lshlrev_b32 v3, 3, v3")
    e("v_add_u32 v2, v2, v3")
    e("s_lshr_b32 s22, s16, 1")
    e("s_and_b32 s23, s16, 1")
    e("s_lshl_b32 s31, s28, 8")
    e("s_lshl_b32 s22, s22, 7")
    e("s_add_u32 s31, s31, s22")
    e(f"s_add_u32 s31, s31, {WS_ABT}")
    e("s_mul_i32 s23, s23, 80")
    e("s_add_u32 s30, s30, s23")
    for tn in range(5):
        e(f"s_add_u32 s32, s30, {16 * tn}")
        e("s_and_b32 s33, s32, 511")
        e("s_lshl_b32 s33, s33, 13")
        e("s_lshr_b32 s32, s32, 9")
        e("s_lshl_b32 s32, s32, 12")
        e("s_add_u32 s32, s32, s33")
        e("s_add_u32 s32, s32, s31")
        for tm in range(4):
            a = gA.accreg(tm, tn)
            e(f"v_cvt_pk_bf16_f32 v{a}, v{a}, v{a+1}")
            e(f"v_cvt_pk_bf16_f32 v{a+1}, v{a+2}, v{a+3}")
            e(f"buffer_store_dwordx2 v[{a}:{a+1}], v2, s[24:27], s32 offen offset:{tm * 32}")
    e("s_endpgm")
    e("L_k1_typeB:")
    srd(e, 8, 4, WS_Y2, 2 << 20)
    srd(e, 36, 6, 0, F * 2)
    e("s_sub_u32 s30, s29, 7")
    e("s_mul_i32 s30, s30, 160")
    e(f"s_min_u32 s30, s30, {HS - 160}")
    e("s_add_u32 s18, s30, 1024")
    e("s_lshl_b32 s18, s18, 10")
    gB = Gemm("k1b", 4, 5, 2, 2, 8, 4, 1024, 1024, swap=True)
    gB.setup(e)
    vb = gB.vend
    vt = vb + 10
    e("s_and_b32 s23, s16, 1")
    e("s_mul_i32 s23, s23, 80")
    e("s_add_u32 s30, s30, s23")
    e("v_and_b32 v1, 63, v0")
    e("v_lshrrev_b32 v3, 4, v1")
    e("v_lshlrev_b32 v5, 3, v3")
    e("s_lshl_b32 s31, s30, 1")
    extra = [[f"buffer_load_dwordx2 v[{vb+2*tn}:{vb+2*tn+1}], v5, s[36:39], s31 offen offset:{32*tn}"] for tn in range(5)]
    gB.run(e, extra_loads=extra)
    e("s_waitcnt vmcnt(0)")
    e("v_and_b32 v1, 63, v0")
    e("v_and_b32 v2, 15, v1")
    e(f"v_mul_u32_u24 v2, {HS * 2}, v2")
    e("v_add_u32 v2, v2, v5")
    e("s_lshr_b32 s22, s16, 1")
    e("s_lshl_b32 s32, s28, 7")
    e("s_lshl_b32 s22, s22, 6")
    e("s_add_u32 s32, s32, s22")
    e(f"s_mul_i32 s32, s32, {HS * 2}")
    e("s_add_u32 s32, s32, s31")
    e(f"s_add_u32 s32, s32, {WS_H}")
    k1 = -2.0 * math.sqrt(2.0 / math.pi) * math.log2(math.e)
    k2 = k1 * 0.044715
    e(f"s_mov_b32 s34, {f32bits(k1):#x}")
    e(f"s_mov_b32 s35, {f32bits(k2):#x}")
    for tn in range(5):
        b = [vt + 0, vt + 1, vt + 2, vt + 3]
        e(f"v_lshlrev_b32 v{b[0]}, 16, v{vb+2*tn}")
        e(f"v_and_b32 v{b[1]}, 0xffff0000, v{vb+2*tn}")
        e(f"v_lshlrev_b32 v{b[2]}, 16, v{vb+2*tn+1}")
        e(f"v_and_b32 v{b[3]}, 0xffff0000, v{vb+2*tn+1}")
        for tm in range(4):
            a = gB.accreg(tm, tn)
            t = vt + 4
            q = [vt + 5, vt + 6, vt + 7, vt + 8]
            bf16r_pair(e, a, a + 1, t)
            bf16r_pair(e, a + 2, a + 3, t)
            for r in range(4):
                e(f"v_add_f32 v{a+r}, v{a+r}, v{b[r]}")
            bf16r_pair(e, a, a + 1, t)
            bf16r_pair(e, a + 2, a + 3, t)
            for r in range(4):
                e(f"v_mul_f32 v{q[r]}, v{a+r}, v{a+r}")
            for r in range(4):
                e(f"v_mov_b32 v{t}, s34")
                e(f"v_fma_f32 v{q[r]}, v{q[r]}, s35, v{t}")
            for r in range(4):
                e(f"v_mul_f32 v{q[r]}, v{q[r]}, v{a+r}")
            for r in range(4):
                e(f"v_exp_f32 v{q[r]}, v{q[r]}")
            e("s_nop 0")
            for r in range(4):
                e(f"v_add_f32 v{q[r]}, 1.0, v{q[r]}")
            for r in range(4):
                e(f"v_rcp_f32 v{q[r]}, v{q[r]}")
            e("s_nop 0")
            for r in range(4):
                e(f"v_mul_f32 v{q[r]}, v{q[r]}, v{a+r}")
            e(f"v_cvt_pk_bf16_f32 v{a}, v{q[0]}, v{q[1]}")
            e(f"v_cvt_pk_bf16_f32 v{a+1}, v{q[2]}, v{q[3]}")
            e(f"s_add_u32 s33, s32, {tm * 16 * HS * 2}")
            e(f"buffer_store_dwordx2 v[{a}:{a+1}], v2, s[24:27], s33 offen offset:{tn * 32}")
    e("L_k1_done:")
    e("s_endpgm")
    return max(gA.vend, vt + 9), max(gA.NS * gA.SS, gB.NS * gB.SS)


def gen_k2(e, name, NS=4):
    kernel_head(e, name)
    e("s_cmp_ge_u32 s2, 256")
    e("s_cbranch_scc1 L_k2_done")
    e(f"s_load_dwordx2 s[4:5], s[0:1], {KA_WS}")
    e(f"s_load_dwordx4 s[40:43], s[0:1], {KA_WSRE}")
    e("v_lshrrev_b32 v1, 6, v0")
    e("s_nop 0")
    e("v_readfirstlane_b32 s16, v1")
    e("s_and_b32 s28, s2, 3")
    e("s_lshr_b32 s29, s2, 2")
    e("s_and_b32 s29, s29, 1")
    e("s_lshl_b32 s29, s29, 3")
    e("s_lshr_b32 s30, s2, 5")
    e("s_add_u32 s29, s29, s30")
    e("s_lshr_b32 s30, s2, 3")
    e("s_and_b32 s30, s30, 3")
    e("s_waitcnt lgkmcnt(0)")
    srd(e, 8, 4, WS_ABT, 4 << 20)
    e("s_cmp_ge_u32 s28, 2")
    e("s_cselect_b32 s12, s42, s40")
    e("s_cselect_b32 s13, s43, s41")
    e(f"s_mov_b32 s14, {8 << 20}")
    e("s_mov_b32 s15, 0x20000")
    srd(e, 24, 4, WS_PART, 16 << 20)
    e("s_lshl_b32 s17, s30, 20")
    e("s_lshl_b32 s22, s28, 11")
    e("s_add_u32 s17, s17, s22")
    e("s_lshl_b32 s18, s29, 19")
    e("s_and_b32 s22, s28, 1")
    e("s_lshl_b32 s22, s22, 11")
    e("s_add_u32 s18, s18, s22")
    g = Gemm("k2", 4, 4, 2, 2, 16, NS, 8192, 4096)
    g.setup(e)
    g.run(e)
    e("v_and_b32 v1, 63, v0")
    e("v_lshlrev_b32 v2, 4, v1")
    e("s_lshr_b32 s22, s16, 1")
    e("s_and_b32 s23, s16, 1")
    e("s_lshl_b32 s31, s28, 5")
    e("s_lshl_b32 s32, s30, 3")
    e("s_add_u32 s31, s31, s32")
    e("s_lshl_b32 s22, s22, 2")
    e("s_add_u32 s31, s31, s22")
    e("s_lshl_b32 s31, s31, 7")
    e("s_lshl_b32 s32, s29, 3")
    e("s_add_u32 s31, s31, s32")
    e("s_lshl_b32 s23, s23, 2")
    e("s_add_u32 s31, s31, s23")
    e("s_lshl_b32 s31, s31, 10")
    for tm in range(4):
        e(f"s_add_u32 s32, s31, {tm * 128 * 1024}")
        for tn in range(4):
            a = g.accreg(tm, tn)
            e(f"buffer_store_dwordx4 v[{a}:{a+3}], v2, s[24:27], s32 offen offset:{tn * 1024}")
    e("L_k2_done:")
    e("s_endpgm")
    return g.vend, g.NS * g.SS


def gen_k3(e, name, NS=6):
    kernel_head(e, name)
    e("s_cmp_ge_u32 s2, 256")
    e("s_cbranch_scc1 L_k3_done")
    e(f"s_load_dwordx2 s[4:5], s[0:1], {KA_WS}")
    e(f"s_load_dwordx2 s[6:7], s[0:1], {KA_X}")
    e(f"s_load_dwordx4 s[40:43], s[0:1], {KA_B2}")
    e("v_lshrrev_b32 v1, 6, v0")
    e("s_nop 0")
    e("v_readfirstlane_b32 s16, v1")
    e("s_and_b32 s28, s2, 7")
    e("s_lshl_b32 s28, s28, 2")
    e("s_lshr_b32 s29, s2, 6")
    e("s_add_u32 s28, s28, s29")
    e("s_lshr_b32 s29, s2, 3")
    e("s_and_b32 s29, s29, 7")
    e("s_waitcnt lgkmcnt(0)")
    srd(e, 8, 4, WS_W2T, 512 * HS * 2)
    srd(e, 12, 4, WS_H, 2048 * HS * 2)
    srd(e, 24, 4, WS_PART, 16 << 20)
    srd(e, 32, 6, 0, 2 << 20)
    srd(e, 36, 40, 0, 1024)
    srd(e, 44, 42, 0, 2 << 20)
    e(f"s_mul_i32 s17, s29, {64 * HS * 2}")
    e(f"s_mul_i32 s18, s28, {64 * HS * 2}")
    g = Gemm("k3", 2, 2, 2, 2, 22, NS, HS * 2, HS * 2)
    g.setup(e)
    vp = g.vend
    vx = vp + 64
    vb = vx + 8
    vt = vb + 4
    e("v_and_b32 v1, 63, v0")
    e("v_lshlrev_b32 v5, 4, v1")
    e("v_and_b32 v2, 15, v1")
    e("v_lshrrev_b32 v3, 4, v1")
    e("v_lshlrev_b32 v6, 3, v3")
    e("v_lshlrev_b32 v7, 10, v2")
    e("v_add_u32 v7, v7, v6")
    e("s_lshr_b32 s22, s16, 1")
    e("s_and_b32 s23, s16, 1")
    e("s_lshl_b32 s30, s29, 2")
    e("s_lshl_b32 s22, s22, 1")
    e("s_add_u32 s30, s30, s22")
    e("s_lshl_b32 s31, s28, 2")
    e("s_lshl_b32 s23, s23, 1")
    e("s_add_u32 s31, s31, s23")
    e("s_lshl_b32 s48, s30, 7")
    e("s_add_u32 s48, s48, s31")
    e("s_lshl_b32 s48, s48, 10")
    e("s_lshl_b32 s49, s30, 5")
    e("s_lshl_b32 s50, s31, 14")
    e("s_add_u32 s50, s50, s49")
    extra = []
    for sp in range(4):
        for tm in range(2):
            grp = [f"s_add_u32 s51, s48, {(sp * 32 + tm) * 128 * 1024}"]
            for tn in range(2):
                r = vp + 16 * sp + 4 * (tm * 2 + tn)
                grp.append(f"buffer_load_dwordx4 v[{r}:{r+3}], v5, s[24:27], s51 offen offset:{tn * 1024}")
            extra.append(grp)
    for tm in range(2):
        for tn in range(2):
            r = vx + 2 * (tm * 2 + tn)
            extra.append([f"s_add_u32 s51, s50, {tn * 16 * 1024}",
                          f"buffer_load_dwordx2 v[{r}:{r+1}], v7, s[32:35], s51 offen offset:{tm * 32}"])
        r = vb + 2 * tm
        extra.append([f"buffer_load_dwordx2 v[{r}:{r+1}], v6, s[36:39], s49 offen offset:{tm * 32}"])
    nloads = sum(1 for grp in extra for ins in grp if ins.startswith("buffer_load"))
    class X(list):
        def __len__(self):
            return nloads
    g.run(e, extra_loads=X(extra))
    e("s_waitcnt vmcnt(0)")
    nl2e = -math.log2(math.e)
    e(f"s_mov_b32 s52, {f32bits(nl2e):#x}")
    for tm in range(2):
        b = [vt + 0, vt + 1, vt + 2, vt + 3]
        e(f"v_lshlrev_b32 v{b[0]}, 16, v{vb+2*tm}")
        e(f"v_and_b32 v{b[1]}, 0xffff0000, v{vb+2*tm}")
        e(f"v_lshlrev_b32 v{b[2]}, 16, v{vb+2*tm+1}")
        e(f"v_and_b32 v{b[3]}, 0xffff0000, v{vb+2*tm+1}")
        for tn in range(2):
            a = g.accreg(tm, tn)
            ti = tm * 2 + tn
            t = vt + 4
            q = [vt + 5, vt + 6, vt + 7, vt + 8]
            p = [vp + 16 * sp + 4 * ti for sp in range(4)]
            xr = vx + 2 * ti
            bf16r_pair(e, a, a + 1, t)
            bf16r_pair(e, a + 2, a + 3, t)
            for r in range(4):
                e(f"v_add_f32 v{a+r}, v{a+r}, v{b[r]}")
            bf16r_pair(e, a, a + 1, t)
            bf16r_pair(e, a + 2, a + 3, t)
            for r in range(4):
                e(f"v_mul_f32 v{q[r]}, s52, v{a+r}")
            for r in range(4):
                e(f"v_exp_f32 v{q[r]}, v{q[r]}")
            e("s_nop 0")
            for r in range(4):
                e(f"v_add_f32 v{q[r]}, 1.0, v{q[r]}")
            for r in range(4):
                e(f"v_rcp_f32 v{q[r]}, v{q[r]}")
            e("s_nop 0")
            for r in range(4):
                e(f"v_mul_f32 v{a+r}, v{q[r]}, v{a+r}")
            bf16r_pair(e, a, a + 1, t)
            bf16r_pair(e, a + 2, a + 3, t)
            for r in range(4):
                e(f"v_add_f32 v{p[0]+r}, v{p[0]+r}, v{p[1]+r}")
                e(f"v_add_f32 v{p[2]+r}, v{p[2]+r}, v{p[3]+r}")
            bf16r_pair(e, p[0], p[0] + 1, t)
            bf16r_pair(e, p[0] + 2, p[0] + 3, t)
            bf16r_pair(e, p[2], p[2] + 1, t)
            bf16r_pair(e, p[2] + 2, p[2] + 3, t)
            for r in range(4):
                e(f"v_sub_f32 v{p[0]+r}, v{p[0]+r}, v{p[2]+r}")
            bf16r_pair(e, p[0], p[0] + 1, t)
            bf16r_pair(e, p[0] + 2, p[0] + 3, t)
            for r in range(4):
                e(f"v_mul_f32 v{a+r}, v{a+r}, v{p[0]+r}")
            bf16r_pair(e, a, a + 1, t)
            bf16r_pair(e, a + 2, a + 3, t)
            e(f"v_lshlrev_b32 v{q[0]}, 16, v{xr}")
            e(f"v_and_b32 v{q[1]}, 0xffff0000, v{xr}")
            e(f"v_lshlrev_b32 v{q[2]}, 16, v{xr+1}")
            e(f"v_and_b32 v{q[3]}, 0xffff0000, v{xr+1}")
            for r in range(4):
                e(f"v_add_f32 v{a+r}, v{a+r}, v{q[r]}")
            e(f"v_cvt_pk_bf16_f32 v{a}, v{a}, v{a+1}")
            e(f"v_cvt_pk_bf16_f32 v{a+1}, v{a+2}, v{a+3}")
            e(f"s_add_u32 s51, s50, {tn * 16 * 1024}")
            e(f"buffer_store_dwordx2 v[{a}:{a+1}], v7, s[44:47], s51 offen offset:{tm * 32}")
    e("L_k3_done:")
    e("s_endpgm")
    return vt + 9, g.NS * g.SS


def main(out):
    e = E()
    n0, n1, n2, n3 = "fnet_k0_kernel", "fnet_k1_kernel", "fnet_k2_kernel", "fnet_k3_kernel"
    v0 = gen_k0(e, n0)
    v1, l1 = gen_k1(e, n1)
    v2, l2 = gen_k2(e, n2)
    v3, l3 = gen_k3(e, n3)
    hdr = open("cdna_kernels/" + NAME + ".s.ref").read().split("; Override launch geometry")[0]
    s = hdr
    s += f"; @launch kernel={n0} grid=({K0_WGS},1,1) block=(256,1,1) lds=0\n"
    s += f"; @launch kernel={n1} grid=(256,1,1) block=(256,1,1) lds={l1}\n"
    s += f"; @launch kernel={n2} grid=(256,1,1) block=(256,1,1) lds={l2}\n"
    s += f"; @launch kernel={n3} grid=(256,1,1) block=(256,1,1) lds={l3}\n"
    s += '.amdgcn_target "amdgcn-amd-amdhsa--gfx950"\n.text\n'
    s += e.text()
    s += '.section .rodata,"a"\n'
    for n, v in ((n0, v0), (n1, v1), (n2, v2), (n3, v3)):
        s += ".p2align 6\n" + kdesc(n, v)
    open(out, "w").write(s)
    print("vgprs", v0, v1, v2, v3, "lds", l1, l2, l3)


if __name__ == "__main__":
    main(sys.argv[1] if len(sys.argv) > 1 else "cdna_kernels/" + NAME + ".s")
```

```python
import sys, math, os
EXP = os.environ.get('EXP', '')

NAME = "recurrent_scan__spectral_fnet__mixer_channel_mlp__prompt"

WS_XN = 0
WS_Y2 = 2 << 20
WS_WCAT = 4 << 20
WS_W2T = 8 << 20
WS_ABT = 10 << 20
WS_H = 16 << 20
WS_PART = 32 << 20
HS = 1408
F = 1376

KA_X, KA_WSRE, KA_WSIM, KA_WDRE, KA_WDIM, KA_BX, KA_W1, KA_B1, KA_W2, KA_B2, KA_OUT, KA_DBG, KA_WS = [8 * i for i in range(13)]


INSTR = False
ROT = False
TOUCH = True
WS_DBG = 100 << 20


def stamp(e, k):
    if INSTR:
        e(f"s_memtime s[{70 + 2 * k}:{71 + 2 * k}]")


def stamp_rt(e, k):
    if INSTR:
        e(f"s_memrealtime s[{70 + 2 * k}:{71 + 2 * k}]")


def stamp_flush(e, kidx, n, wsbase=4):
    if not INSTR:
        return
    e("s_waitcnt lgkmcnt(0)")
    e(f"s_add_u32 s96, s{wsbase}, {WS_DBG + kidx * (1 << 18)}")
    e(f"s_addc_u32 s97, s{wsbase + 1}, 0")
    e(f"s_mov_b32 s98, {1 << 18}")
    e("s_mov_b32 s99, 0x20000")
    e("s_lshl_b32 s100, s2, 2")
    e("s_add_u32 s100, s100, s16")
    e("s_lshl_b32 s100, s100, 6")
    e("v_mov_b32 v1, 0")
    for k in range(n):
        e(f"v_mov_b32 v2, s{70 + 2 * k}")
        e(f"buffer_store_dword v2, v1, s[96:99], s100 offen offset:{4 * k}")


class E:
    def __init__(self):
        self.L = []

    def __call__(self, s):
        for line in s.split("\n"):
            line = line.strip()
            if line:
                self.L.append(("    " if not line.endswith(":") else "") + line)

    def text(self):
        return "\n".join(self.L) + "\n"


def f32bits(x):
    import struct
    return struct.unpack("<I", struct.pack("<f", x))[0]


def srd(e, d, base, off, nbytes):
    if off:
        e(f"s_add_u32 s{d}, s{base}, {off}")
        e(f"s_addc_u32 s{d+1}, s{base+1}, 0")
    else:
        e(f"s_mov_b32 s{d}, s{base}")
        e(f"s_mov_b32 s{d+1}, s{base+1}")
    e(f"s_mov_b32 s{d+2}, {nbytes}")
    e(f"s_mov_b32 s{d+3}, 0x20000")


def kernel_head(e, name):
    e(f".globl {name}")
    e(".p2align 8")
    e(f".type {name},@function")
    e(f"{name}:")


def kdesc(name, vgpr, sgpr=102):
    v = (vgpr + 3) // 4 * 4
    return f""".amdhsa_kernel {name}
  .amdhsa_next_free_vgpr {v}
  .amdhsa_next_free_sgpr {sgpr}
  .amdhsa_accum_offset {v}
  .amdhsa_group_segment_fixed_size 0
  .amdhsa_kernarg_size 104
  .amdhsa_user_sgpr_count 2
  .amdhsa_user_sgpr_kernarg_segment_ptr 1
  .amdhsa_system_sgpr_workgroup_id_x 1
.end_amdhsa_kernel
"""


def wave_reduce(e, regs, sbase):
    for ctl in ("quad_perm:[1,0,3,2]", "quad_perm:[2,3,0,1]", "row_half_mirror", "row_mirror"):
        e("s_nop 1")
        for r in regs:
            e(f"v_add_f32_dpp v{r}, v{r}, v{r} {ctl} row_mask:0xf bank_mask:0xf")
    e("s_nop 1")
    for i, r in enumerate(regs):
        for j in range(4):
            e(f"v_readlane_b32 s{sbase + 4 * i + j}, v{r}, {16 * j}")
    e("s_nop 1")
    for i, r in enumerate(regs):
        e(f"v_mov_b32 v{r}, s{sbase + 4 * i}")
        for j in range(1, 4):
            e(f"v_add_f32 v{r}, s{sbase + 4 * i + j}, v{r}")


def bf16r_scalar(e, r):
    e(f"v_cvt_pk_bf16_f32 v{r}, v{r}, v{r}")
    e(f"v_lshlrev_b32 v{r}, 16, v{r}")


def ln_pass(e, Fr, T, P):
    rows = range(len(Fr))
    for R in rows:
        f, t = Fr[R], T[R]
        e(f"v_add_f32 v{t[0]}, v{f[0]}, v{f[1]}")
        for i in range(2, 8):
            e(f"v_add_f32 v{t[0]}, v{t[0]}, v{f[i]}")
    wave_reduce(e, [T[R][0] for R in rows], 40)
    for R in rows:
        f, t = Fr[R], T[R]
        e(f"v_mul_f32 v{t[0]}, {f32bits(1.0/512):#x}, v{t[0]}")
        e(f"v_sub_f32 v{t[2]}, v{f[0]}, v{t[0]}")
        e(f"v_mul_f32 v{t[1]}, v{t[2]}, v{t[2]}")
        for i in range(1, 8):
            e(f"v_sub_f32 v{t[2]}, v{f[i]}, v{t[0]}")
            e(f"v_fmac_f32 v{t[1]}, v{t[2]}, v{t[2]}")
    wave_reduce(e, [T[R][1] for R in rows], 40)
    for R in rows:
        f, t = Fr[R], T[R]
        e(f"v_mul_f32 v{t[1]}, {f32bits(1.0/512):#x}, v{t[1]}")
        bf16r_scalar(e, t[0])
        bf16r_scalar(e, t[1])
        e(f"v_add_f32 v{t[1]}, {f32bits(1e-5):#x}, v{t[1]}")
        bf16r_scalar(e, t[1])
        e(f"v_sqrt_f32 v{t[1]}, v{t[1]}")
        e("s_nop 0")
        bf16r_scalar(e, t[1])
        e(f"v_rcp_f32 v{t[2]}, v{t[1]}")
        e("s_nop 0")
        for i in range(0, 8, 2):
            e(f"v_sub_f32 v{f[i]}, v{f[i]}, v{t[0]}")
            e(f"v_sub_f32 v{f[i+1]}, v{f[i+1]}, v{t[0]}")
            e(f"v_cvt_pk_bf16_f32 v{t[3]}, v{f[i]}, v{f[i+1]}")
            e(f"v_lshlrev_b32 v{f[i]}, 16, v{t[3]}")
            e(f"v_and_b32 v{f[i+1]}, 0xffff0000, v{t[3]}")
            for j in (i, i + 1):
                e(f"v_mul_f32 v{t[3]}, v{f[j]}, v{t[2]}")
                e(f"v_fma_f32 v{t[4]}, -v{t[3]}, v{t[1]}, v{f[j]}")
                e(f"v_fma_f32 v{f[j]}, v{t[4]}, v{t[2]}, v{t[3]}")
            e(f"v_cvt_pk_bf16_f32 v{P[R][i//2]}, v{f[i]}, v{f[i+1]}")
            e(f"v_lshlrev_b32 v{f[i]}, 16, v{P[R][i//2]}")
            e(f"v_and_b32 v{f[i+1]}, 0xffff0000, v{P[R][i//2]}")


K0_LN, K0_T1, K0_T2, K0_CP = 256, 88, 88, 32
K0_WGS = K0_LN + K0_T1 + K0_T2 + K0_CP


def gen_k0(e, name):
    kernel_head(e, name)
    e(f"s_cmp_ge_u32 s2, {K0_WGS}")
    e(f"s_cbranch_scc1 L_k0_done")
    stamp_rt(e, 0); stamp(e, 1)
    e(f"s_load_dwordx2 s[4:5], s[0:1], {KA_X}")
    e(f"s_load_dwordx2 s[6:7], s[0:1], {KA_WS}")
    e(f"s_load_dwordx4 s[8:11], s[0:1], {KA_WDRE}")
    e(f"s_load_dwordx2 s[12:13], s[0:1], {KA_W1}")
    e(f"s_load_dwordx2 s[14:15], s[0:1], {KA_W2}")
    e("v_lshrrev_b32 v1, 6, v0")
    e("v_and_b32 v2, 63, v0")
    e("s_nop 0")
    e("v_readfirstlane_b32 s16, v1")
    e("s_waitcnt lgkmcnt(0)")
    srd(e, 24, 6, 0, 64 << 20)
    e(f"s_cmp_ge_u32 s2, {K0_LN}")
    e("s_cbranch_scc1 L_k0_notln")
    srd(e, 20, 4, 0, 2 << 20)
    e("s_lshl_b32 s17, s2, 3")
    e("s_lshl_b32 s18, s16, 1")
    e("s_add_u32 s17, s17, s18")
    e("s_lshl_b32 s17, s17, 10")
    e("v_lshlrev_b32 v3, 4, v2")
    e("v_add_u32 v3, s17, v3")
    e("buffer_load_dwordx4 v[4:7], v3, s[20:23], 0 offen")
    e("buffer_load_dwordx4 v[8:11], v3, s[20:23], 0 offen offset:1024")
    Fr = [list(range(16, 24)), list(range(24, 32))]
    T = [list(range(32, 38)), list(range(38, 44))]
    P = [list(range(44, 48)), list(range(48, 52))]
    e("s_waitcnt vmcnt(0)")
    stamp(e, 2)
    for R in range(2):
        for i in range(4):
            e(f"v_lshlrev_b32 v{Fr[R][2*i]}, 16, v{4+4*R+i}")
            e(f"v_and_b32 v{Fr[R][2*i+1]}, 0xffff0000, v{4+4*R+i}")
    ln_pass(e, Fr, T, P)
    e("buffer_store_dwordx4 v[44:47], v3, s[24:27], 0 offen")
    e("buffer_store_dwordx4 v[48:51], v3, s[24:27], 0 offen offset:1024")
    P2 = [list(range(52, 56)), list(range(56, 60))]
    ln_pass(e, Fr, T, P2)
    e(f"s_mov_b32 s17, {WS_Y2}")
    e("buffer_store_dwordx4 v[52:55], v3, s[24:27], s17 offen")
    e("buffer_store_dwordx4 v[56:59], v3, s[24:27], s17 offen offset:1024")
    stamp(e, 3); stamp(e, 4); stamp(e, 5); stamp_rt(e, 6); stamp_flush(e, 0, 7, wsbase=6)
    e("s_endpgm")
    e("L_k0_notln:")
    e(f"s_cmp_ge_u32 s2, {K0_LN + K0_T1}")
    e("s_cbranch_scc1 L_k0_nott1")
    srd(e, 20, 12, 0, 512 * F * 2)
    e(f"s_sub_u32 s17, s2, {K0_LN}")
    e("s_lshl_b32 s17, s17, 2")
    e("s_add_u32 s17, s17, s16")
    e("s_lshr_b32 s18, s17, 4")
    e("s_and_b32 s19, s17, 15")
    e("s_lshl_b32 s18, s18, 6")
    e("v_add_u32 v3, s18, v2")
    e("v_lshlrev_b32 v20, 1, v3")
    e(f"s_mul_i32 s28, s19, {32 * F * 2}")
    for i in range(32):
        e(f"buffer_load_ushort v{24 + i}, v20, s[20:23], s28 offen")
        if i != 31:
            e(f"s_add_u32 s28, s28, {F * 2}")
    e("v_lshlrev_b32 v21, 10, v3")
    e("s_lshl_b32 s19, s19, 6")
    e(f"s_add_u32 s19, s19, {WS_WCAT + 1024 * 1024}")
    e(f"v_cmp_gt_u32 vcc, {F}, v3")
    e("s_and_saveexec_b64 s[30:31], vcc")
    e("s_cbranch_execz L_k0_done")
    e("s_waitcnt vmcnt(0)")
    stamp(e, 2)
    for i in range(16):
        e(f"v_lshl_or_b32 v{4 + i}, v{25 + 2 * i}, 16, v{24 + 2 * i}")
    for i in range(4):
        e(f"buffer_store_dwordx4 v[{4+4*i}:{7+4*i}], v21, s[24:27], s19 offen offset:{16*i}")
    stamp(e, 3); stamp(e, 4); stamp(e, 5); stamp_rt(e, 6); stamp_flush(e, 0, 7, wsbase=6)
    e("s_endpgm")
    e("L_k0_nott1:")
    e(f"s_cmp_ge_u32 s2, {K0_LN + K0_T1 + K0_T2}")
    e("s_cbranch_scc1 L_k0_cp")
    srd(e, 20, 14, 0, F * 512 * 2)
    e(f"s_sub_u32 s17, s2, {K0_LN + K0_T1}")
    e("s_lshl_b32 s17, s17, 2")
    e("s_add_u32 s17, s17, s16")
    e("s_and_b32 s18, s17, 7")
    e("s_lshr_b32 s19, s17, 3")
    e("s_lshl_b32 s18, s18, 6")
    e("v_add_u32 v3, s18, v2")
    e("v_lshlrev_b32 v20, 1, v3")
    e("s_lshl_b32 s28, s19, 15")
    for i in range(32):
        e(f"buffer_load_ushort v{24 + i}, v20, s[20:23], s28 offen")
        if i != 31:
            e(f"s_add_u32 s28, s28, 1024")
    e(f"v_mul_u32_u24 v21, {HS * 2}, v3")
    e("s_lshl_b32 s19, s19, 6")
    e(f"s_add_u32 s19, s19, {WS_W2T}")
    e("s_waitcnt vmcnt(0)")
    stamp(e, 2)
    for i in range(16):
        e(f"v_lshl_or_b32 v{4 + i}, v{25 + 2 * i}, 16, v{24 + 2 * i}")
    for i in range(4):
        e(f"buffer_store_dwordx4 v[{4+4*i}:{7+4*i}], v21, s[24:27], s19 offen offset:{16*i}")
    stamp(e, 3); stamp(e, 4); stamp(e, 5); stamp_rt(e, 6); stamp_flush(e, 0, 7, wsbase=6)
    e("s_endpgm")
    e("L_k0_cp:")
    e(f"s_sub_u32 s17, s2, {K0_LN + K0_T1 + K0_T2}")
    e("s_lshl_b32 s17, s17, 2")
    e("s_add_u32 s17, s17, s16")
    e("s_cmp_ge_u32 s17, 64")
    e("s_cselect_b32 s20, s10, s8")
    e("s_cselect_b32 s21, s11, s9")
    e(f"s_mov_b32 s22, {512 * 1024}")
    e("s_mov_b32 s23, 0x20000")
    e("s_and_b32 s18, s17, 63")
    e("s_lshl_b32 s18, s18, 13")
    e("s_lshl_b32 s19, s17, 13")
    e(f"s_add_u32 s19, s19, {WS_WCAT}")
    e("v_lshlrev_b32 v3, 4, v2")
    for i in range(8):
        if i == 4:
            e("s_add_u32 s18, s18, 4096")
        e(f"buffer_load_dwordx4 v[{4+4*i}:{7+4*i}], v3, s[20:23], s18 offen offset:{1024*(i%4)}")
    e("s_waitcnt vmcnt(0)")
    for i in range(8):
        if i == 4:
            e("s_add_u32 s19, s19, 4096")
        e(f"buffer_store_dwordx4 v[{4+4*i}:{7+4*i}], v3, s[24:27], s19 offen offset:{1024*(i%4)}")
    e("L_k0_done:")
    e("s_endpgm")
    return 64


class Gemm:
    def __init__(self, tag, TM, TN, WM, WN, nsteps, NS, strideP, strideQ, swap=False, vbase=16):
        self.tag = tag
        self.TM, self.TN, self.WM, self.WN = TM, TN, WM, WN
        self.PR, self.QR = WM * TM * 16, WN * TN * 16
        self.nsteps, self.NS = nsteps, NS
        self.sP, self.sQ = strideP, strideQ
        self.swap = swap
        self.SS = (self.PR + self.QR) * 128
        assert (self.PR // 8) % 4 == 0 and (self.QR // 8) % 4 == 0
        self.DP, self.DQ = self.PR // 32, self.QR // 32
        self.D = self.DP + self.DQ
        v = vbase
        self.vDP, self.vDQ, self.vP0b, self.vP1b, self.vQ0b, self.vQ1b = range(v, v + 6)
        self.vPa0, self.vPa1, self.vQa0, self.vQa1 = range(v + 6, v + 10)
        v = (v + 10 + 3) // 4 * 4
        self.fP = [v, v + 4 * (TM + TN)]
        self.fQ = [v + 4 * TM, v + 4 * (TM + TN) + 4 * TM]
        v += 8 * (TM + TN)
        self.acc = v
        self.vend = v + 4 * TM * TN

    def accreg(self, tm, tn):
        return self.acc + 4 * (tm * self.TN + tn)

    def setup_prod(self, e):
        g = self
        e("v_and_b32 v1, 63, v0")
        e("v_lshrrev_b32 v2, 3, v1")
        e("v_lshrrev_b32 v3, 4, v1")
        e("s_and_b32 s22, s16, 1")
        e("s_lshl_b32 s22, s22, 2")
        e("v_add_u32 v3, s22, v3")
        e("v_and_b32 v4, 7, v1")
        e("v_xor_b32 v3, v3, v4")
        e("v_lshlrev_b32 v3, 4, v3")
        e("s_lshl_b32 s22, s16, 3")
        e("v_add_u32 v2, s22, v2")
        e(f"s_mov_b32 s22, {g.sP}")
        e(f"v_mul_lo_u32 v4, v2, s22")
        e(f"v_add_u32 v{g.vDP}, v4, v3")
        e(f"s_mov_b32 s22, {g.sQ}")
        e(f"v_mul_lo_u32 v4, v2, s22")
        e(f"v_add_u32 v{g.vDQ}, v4, v3")
        e("s_lshl_b32 s19, s16, 10")
        if ROT:
            m = 1
            while m * 2 <= g.nsteps:
                m *= 2
            e("s_lshr_b32 s22, s2, 3")
            e(f"s_and_b32 s22, s22, {m - 1}")
            e(f"s_sub_u32 s54, {g.nsteps}, s22")
            e("s_lshl_b32 s22, s22, 7")
            e("s_add_u32 s17, s17, s22")
            e("s_add_u32 s18, s18, s22")

    def setup_cons(self, e):
        g = self
        e("v_and_b32 v1, 63, v0")
        e("v_and_b32 v2, 15, v1")
        e("v_lshrrev_b32 v3, 1, v2")
        e("v_lshrrev_b32 v4, 4, v1")
        e("v_xor_b32 v3, v3, v4")
        e("v_lshlrev_b32 v3, 4, v3")
        e("v_lshlrev_b32 v2, 7, v2")
        e("v_add_u32 v2, v2, v3")
        if g.WN == 2:
            e("s_lshr_b32 s22, s16, 1")
            e("s_and_b32 s23, s16, 1")
        elif g.WN == 1:
            e("s_mov_b32 s22, s16")
            e("s_mov_b32 s23, 0")
        elif g.WN == 4:
            e("s_mov_b32 s22, 0")
            e("s_mov_b32 s23, s16")
        e(f"s_mul_i32 s22, s22, {g.TM * 2048}")
        e(f"s_mul_i32 s23, s23, {g.TN * 2048}")
        e(f"s_add_u32 s23, s23, {g.PR * 128}")
        e(f"v_add_u32 v{g.vP0b}, s22, v2")
        e(f"v_xor_b32 v{g.vP1b}, 64, v{g.vP0b}")
        e(f"v_add_u32 v{g.vQ0b}, s23, v2")
        e(f"v_xor_b32 v{g.vQ1b}, 64, v{g.vQ0b}")
        e("s_mov_b32 s20, 0")

    def dma_ops(self):
        g = self
        ops = []
        for j in range(g.D):
            isP = j < g.DP
            jj = j if isP else j - g.DP
            stride = g.sP if isP else g.sQ
            sk = "s17" if isP else "s18"
            sr = "s[8:11]" if isP else "s[12:15]"
            vd = g.vDP if isP else g.vDQ
            grp = [f"s_add_u32 m0, s19, {j * 4096}"]
            if jj == 0:
                grp.append("s_nop 0")
                grp.append(f"buffer_load_dwordx4 v{vd}, {sr}, {sk} offen lds")
            else:
                grp.append(f"s_add_u32 s22, {sk}, {jj * 32 * stride}")
                grp.append(f"buffer_load_dwordx4 v{vd}, {sr}, s22 offen lds")
            ops.append(grp)
        adv = ["s_add_u32 s17, s17, 128", "s_add_u32 s18, s18, 128",
               f"s_add_u32 s19, s19, {g.SS}", f"s_sub_u32 s22, s19, {g.NS * g.SS}",
               f"s_cmp_ge_u32 s19, {g.NS * g.SS}", "s_cselect_b32 s19, s22, s19"]
        if ROT:
            adv += ["s_sub_u32 s54, s54, 1", "s_cmp_eq_u32 s54, 0",
                    f"s_cselect_b32 s22, {g.nsteps * 128}, 0",
                    "s_sub_u32 s17, s17, s22", "s_sub_u32 s18, s18, s22"]
        ops.append(adv)
        return ops

    def frag_reads(self, st):
        g = self
        va, vq = (g.vPa0, g.vQa0) if st == 0 else (g.vPa1, g.vQa1)
        ops = []
        for i in range(max(g.TM, g.TN)):
            if i < g.TM:
                r = g.fP[st] + 4 * i
                ops.append([f"ds_read_b128 v[{r}:{r+3}], v{va} offset:{i * 2048}"])
            if i < g.TN:
                r = g.fQ[st] + 4 * i
                ops.append([f"ds_read_b128 v[{r}:{r+3}], v{vq} offset:{i * 2048}"])
        return ops

    def mfmas(self, st):
        g = self
        ops = []
        if EXP == "E2" and g.tag == "k2":
            return ["s_nop 0"]
        for tm in range(g.TM):
            for tn in range(g.TN):
                a = g.accreg(tm, tn)
                p = g.fP[st] + 4 * tm
                q = g.fQ[st] + 4 * tn
                if g.swap:
                    p, q = q, p
                ops.append(f"v_mfma_f32_16x16x32_bf16 v[{a}:{a+3}], v[{p}:{p+3}], v[{q}:{q+3}], v[{a}:{a+3}]")
        return ops

    @staticmethod
    def interleave(e, mf, fillers):
        n = len(mf)
        k = len(fillers)
        fi = 0
        for i, m in enumerate(mf):
            e(m)
            want = min(k, -(-(i + 1) * k // n)) if k > n else min(k, i + 1)
            while fi < want:
                for ins in fillers[fi]:
                    e(ins)
                fi += 1
        while fi < k:
            for ins in fillers[fi]:
                e(ins)
            fi += 1

    def step(self, e, last):
        g = self
        e(f"v_add_u32 v{g.vPa1}, s20, v{g.vP1b}")
        e(f"v_add_u32 v{g.vQa1}, s20, v{g.vQ1b}")
        e(f"s_add_u32 s20, s20, {g.SS}")
        e(f"s_cmp_eq_u32 s20, {g.NS * g.SS}")
        e("s_cselect_b32 s20, 0, s20")
        e("s_waitcnt lgkmcnt(0)")
        g.interleave(e, g.mfmas(0), g.frag_reads(1))
        if not last:
            e(f"v_add_u32 v{g.vPa0}, s20, v{g.vP0b}")
            e(f"v_add_u32 v{g.vQa0}, s20, v{g.vQ0b}")
            e(f"s_waitcnt lgkmcnt(0)")
            e("s_barrier")
        else:
            e("s_waitcnt lgkmcnt(0)")
        fill = []
        if not last:
            fill += g.frag_reads(0)
        g.interleave(e, g.mfmas(1), fill)

    def run(self, e, extra_loads=None, pre_cons=None):
        g = self
        e("s_cmp_eq_u32 s53, 0")
        e(f"s_cbranch_scc1 L_{g.tag}_cons")
        e("s_setprio 1")
        g.setup_prod(e)
        for s in range(g.NS - 1):
            for grp in g.dma_ops():
                for ins in grp:
                    e(ins)
        e(f"s_waitcnt vmcnt({(g.NS - 2) * g.D})")
        e("s_barrier")
        nmain = g.nsteps - g.NS + 1
        e(f"s_mov_b32 s21, {nmain}")
        e(f"L_{g.tag}_ploop:")
        e(f"s_waitcnt vmcnt({(g.NS - 3) * g.D})")
        e("s_barrier")
        for grp in g.dma_ops():
            for ins in grp:
                e(ins)
        e("s_sub_u32 s21, s21, 1")
        e("s_cmp_lg_u32 s21, 0")
        e(f"s_cbranch_scc1 L_{g.tag}_ploop")
        for i in range(nmain, g.nsteps - 1):
            e(f"s_waitcnt vmcnt({(g.nsteps - 2 - i) * g.D})")
            e("s_barrier")
        e("s_endpgm")
        e(f"L_{g.tag}_cons:")
        g.setup_cons(e)
        if pre_cons:
            pre_cons()
        if extra_loads:
            for grp in extra_loads:
                for ins in grp:
                    e(ins)
        for r in range(g.acc, g.vend):
            e(f"v_mov_b32 v{r}, 0")
        e(f"v_mov_b32 v{g.vPa0}, v{g.vP0b}")
        e(f"v_mov_b32 v{g.vQa0}, v{g.vQ0b}")
        e("s_barrier")
        stamp(e, 2)
        for grp in g.frag_reads(0):
            e(grp[0])
        e(f"s_mov_b32 s21, {g.nsteps - 1}")
        e(f"L_{g.tag}_loop:")
        g.step(e, False)
        e("s_sub_u32 s21, s21, 1")
        e("s_cmp_lg_u32 s21, 0")
        e(f"s_cbranch_scc1 L_{g.tag}_loop")
        stamp(e, 3)
        g.step(e, True)
        e("s_nop 15")
        stamp(e, 4)


def bf16r_pair(e, a, b, t):
    e(f"v_cvt_pk_bf16_f32 v{t}, v{a}, v{b}")
    e(f"v_lshlrev_b32 v{a}, 16, v{t}")
    e(f"v_and_b32 v{b}, 0xffff0000, v{t}")


def gen_k1(e, name):
    kernel_head(e, name)
    e("s_cmp_ge_u32 s2, 256")
    e("s_cbranch_scc1 L_k1_done")
    stamp_rt(e, 0)
    stamp(e, 1)
    e(f"s_load_dwordx2 s[4:5], s[0:1], {KA_WS}")
    e(f"s_load_dwordx2 s[6:7], s[0:1], {KA_B1}")
    e(f"s_load_dwordx4 s[40:43], s[0:1], {KA_WSRE}")
    e("v_lshrrev_b32 v1, 6, v0")
    e("s_nop 0")
    e("v_readfirstlane_b32 s16, v1")
    e("s_nop 3")
    e("s_lshr_b32 s53, s16, 2")
    e("s_and_b32 s16, s16, 3")
    e("s_and_b32 s28, s2, 7")
    e("s_lshr_b32 s29, s2, 3")
    e("s_lshl_b32 s28, s28, 1")
    e("s_lshr_b32 s30, s29, 4")
    e("s_add_u32 s28, s28, s30")
    e("s_and_b32 s29, s29, 15")
    e("s_waitcnt lgkmcnt(0)")
    srd(e, 12, 4, WS_WCAT, 2400 * 1024)
    srd(e, 24, 4, 0, 64 << 20)
    e("s_lshl_b32 s17, s28, 17")

    def pre_ws():
        if not TOUCH:
            return
        e("s_cmp_ge_u32 s2, 128")
        e("s_cselect_b32 s44, s42, s40")
        e("s_cselect_b32 s45, s43, s41")
        e(f"s_mov_b32 s46, {8 << 20}")
        e("s_mov_b32 s47, 0x20000")
        e("s_and_b32 s22, s2, 127")
        e("s_lshl_b32 s22, s22, 16")
        e("s_lshl_b32 s23, s16, 14")
        e("s_add_u32 s22, s22, s23")
        e("v_and_b32 v1, 63, v0")
        e("v_lshlrev_b32 v8, 7, v1")
        e("buffer_load_dword v9, v8, s[44:47], s22 offen")
        e("s_add_u32 s22, s22, 8192")
        e("buffer_load_dword v9, v8, s[44:47], s22 offen")
    e("s_cmp_ge_u32 s29, 7")
    e("s_cbranch_scc1 L_k1_typeB")
    srd(e, 8, 4, WS_XN, 2 << 20)
    e("s_mul_i32 s30, s29, 160")
    e("s_min_u32 s30, s30, 864")
    e("s_lshl_b32 s18, s30, 10")
    gA = Gemm("k1a", 4, 5, 2, 2, 8, 4, 1024, 1024, swap=False)
    gA.run(e, pre_cons=pre_ws)
    e("v_and_b32 v1, 63, v0")
    e("v_and_b32 v2, 15, v1")
    e("v_lshrrev_b32 v3, 4, v1")
    e("v_lshlrev_b32 v2, 13, v2")
    e("v_lshlrev_b32 v3, 3, v3")
    e("v_add_u32 v2, v2, v3")
    e("s_lshr_b32 s22, s16, 1")
    e("s_and_b32 s23, s16, 1")
    e("s_lshl_b32 s31, s28, 8")
    e("s_lshl_b32 s22, s22, 7")
    e("s_add_u32 s31, s31, s22")
    e(f"s_add_u32 s31, s31, {WS_ABT}")
    e("s_mul_i32 s23, s23, 80")
    e("s_add_u32 s30, s30, s23")
    for tn in range(5):
        e(f"s_add_u32 s32, s30, {16 * tn}")
        e("s_and_b32 s33, s32, 511")
        e("s_lshl_b32 s33, s33, 13")
        e("s_lshr_b32 s32, s32, 9")
        e("s_lshl_b32 s32, s32, 12")
        e("s_add_u32 s32, s32, s33")
        e("s_add_u32 s32, s32, s31")
        for tm in range(4):
            a = gA.accreg(tm, tn)
            e(f"v_cvt_pk_bf16_f32 v{a}, v{a}, v{a+1}")
            e(f"v_cvt_pk_bf16_f32 v{a+1}, v{a+2}, v{a+3}")
            e(f"buffer_store_dwordx2 v[{a}:{a+1}], v2, s[24:27], s32 offen offset:{tm * 32}")
    stamp(e, 5); stamp_rt(e, 6); stamp_flush(e, 1, 7)
    e("s_endpgm")
    e("L_k1_typeB:")
    srd(e, 8, 4, WS_Y2, 2 << 20)
    srd(e, 36, 6, 0, F * 2)
    e("s_sub_u32 s30, s29, 7")
    e("s_mul_i32 s30, s30, 160")
    e(f"s_min_u32 s30, s30, {HS - 160}")
    e("s_add_u32 s18, s30, 1024")
    e("s_lshl_b32 s18, s18, 10")
    gB = Gemm("k1b", 4, 5, 2, 2, 8, 4, 1024, 1024, swap=True)
    vb = gB.vend
    vt = vb + 10
    e("s_and_b32 s23, s16, 1")
    e("s_mul_i32 s23, s23, 80")
    e("s_add_u32 s30, s30, s23")
    e("v_and_b32 v1, 63, v0")
    e("v_lshrrev_b32 v3, 4, v1")
    e("v_lshlrev_b32 v5, 3, v3")
    e("s_lshl_b32 s31, s30, 1")
    extra = [[f"buffer_load_dwordx2 v[{vb+2*tn}:{vb+2*tn+1}], v5, s[36:39], s31 offen offset:{32*tn}"] for tn in range(5)]
    gB.run(e, extra_loads=extra, pre_cons=pre_ws)
    e("s_waitcnt vmcnt(0)")
    e("v_and_b32 v1, 63, v0")
    e("v_and_b32 v2, 15, v1")
    e(f"v_mul_u32_u24 v2, {HS * 2}, v2")
    e("v_add_u32 v2, v2, v5")
    e("s_lshr_b32 s22, s16, 1")
    e("s_lshl_b32 s32, s28, 7")
    e("s_lshl_b32 s22, s22, 6")
    e("s_add_u32 s32, s32, s22")
    e(f"s_mul_i32 s32, s32, {HS * 2}")
    e("s_add_u32 s32, s32, s31")
    e(f"s_add_u32 s32, s32, {WS_H}")
    k1 = -2.0 * math.sqrt(2.0 / math.pi) * math.log2(math.e)
    k2 = k1 * 0.044715
    e(f"s_mov_b32 s34, {f32bits(k1):#x}")
    e(f"s_mov_b32 s35, {f32bits(k2):#x}")
    for tn in range(5):
        b = [vt + 0, vt + 1, vt + 2, vt + 3]
        e(f"v_lshlrev_b32 v{b[0]}, 16, v{vb+2*tn}")
        e(f"v_and_b32 v{b[1]}, 0xffff0000, v{vb+2*tn}")
        e(f"v_lshlrev_b32 v{b[2]}, 16, v{vb+2*tn+1}")
        e(f"v_and_b32 v{b[3]}, 0xffff0000, v{vb+2*tn+1}")
        for tm in range(4):
            a = gB.accreg(tm, tn)
            t = vt + 4
            q = [vt + 5, vt + 6, vt + 7, vt + 8]
            bf16r_pair(e, a, a + 1, t)
            bf16r_pair(e, a + 2, a + 3, t)
            for r in range(4):
                e(f"v_add_f32 v{a+r}, v{a+r}, v{b[r]}")
            bf16r_pair(e, a, a + 1, t)
            bf16r_pair(e, a + 2, a + 3, t)
            for r in range(4):
                e(f"v_mul_f32 v{q[r]}, v{a+r}, v{a+r}")
            for r in range(4):
                e(f"v_mov_b32 v{t}, s34")
                e(f"v_fma_f32 v{q[r]}, v{q[r]}, s35, v{t}")
            for r in range(4):
                e(f"v_mul_f32 v{q[r]}, v{q[r]}, v{a+r}")
            for r in range(4):
                e(f"v_exp_f32 v{q[r]}, v{q[r]}")
            e("s_nop 0")
            for r in range(4):
                e(f"v_add_f32 v{q[r]}, 1.0, v{q[r]}")
            for r in range(4):
                e(f"v_rcp_f32 v{q[r]}, v{q[r]}")
            e("s_nop 0")
            for r in range(4):
                e(f"v_mul_f32 v{q[r]}, v{q[r]}, v{a+r}")
            e(f"v_cvt_pk_bf16_f32 v{a}, v{q[0]}, v{q[1]}")
            e(f"v_cvt_pk_bf16_f32 v{a+1}, v{q[2]}, v{q[3]}")
            e(f"s_add_u32 s33, s32, {tm * 16 * HS * 2}")
            e(f"buffer_store_dwordx2 v[{a}:{a+1}], v2, s[24:27], s33 offen offset:{tn * 32}")
    stamp(e, 5); stamp_rt(e, 6); stamp_flush(e, 1, 7)
    e("L_k1_done:")
    e("s_endpgm")
    return max(gA.vend, vt + 9), max(gA.NS * gA.SS, gB.NS * gB.SS)


def gen_k2(e, name, NS=4):
    kernel_head(e, name)
    e("s_cmp_ge_u32 s2, 256")
    e("s_cbranch_scc1 L_k2_done")
    stamp_rt(e, 0)
    stamp(e, 1)
    e(f"s_load_dwordx2 s[4:5], s[0:1], {KA_WS}")
    e(f"s_load_dwordx4 s[40:43], s[0:1], {KA_WSRE}")
    e("v_lshrrev_b32 v1, 6, v0")
    e("s_nop 0")
    e("v_readfirstlane_b32 s16, v1")
    e("s_nop 3")
    e("s_lshr_b32 s53, s16, 2")
    e("s_and_b32 s16, s16, 3")
    e("s_and_b32 s28, s2, 3")
    e("s_lshr_b32 s29, s2, 2")
    e("s_and_b32 s29, s29, 1")
    e("s_lshl_b32 s29, s29, 3")
    e("s_lshr_b32 s30, s2, 5")
    e("s_add_u32 s29, s29, s30")
    e("s_lshr_b32 s30, s2, 3")
    e("s_and_b32 s30, s30, 3")
    e("s_waitcnt lgkmcnt(0)")
    srd(e, 8, 4, WS_ABT, 4 << 20)
    e("s_cmp_ge_u32 s28, 2")
    e("s_cselect_b32 s12, s42, s40")
    e("s_cselect_b32 s13, s43, s41")
    e(f"s_mov_b32 s14, {8 << 20}")
    e("s_mov_b32 s15, 0x20000")
    srd(e, 24, 4, WS_PART, 16 << 20)
    e("s_lshl_b32 s17, s30, 20")
    e("s_lshl_b32 s22, s28, 11")
    e("s_add_u32 s17, s17, s22")
    e("s_lshl_b32 s18, s29, 19")
    e("s_and_b32 s22, s28, 1")
    e("s_lshl_b32 s22, s22, 11")
    e("s_add_u32 s18, s18, s22")
    if EXP == "E1":
        e("s_mov_b32 s17, 0")
        e("s_mov_b32 s18, 0")
    if EXP == "E3":
        e("s_mov_b32 s17, 0")
    if EXP == "E4":
        e("s_mov_b32 s18, 0")
    g = Gemm("k2", 4, 4, 2, 2, 16, NS, 8192, 4096)

    def pre():
        if not TOUCH:
            return
        e("v_and_b32 v1, 63, v0")
        e("v_lshrrev_b32 v2, 4, v1")
        e("v_and_b32 v3, 15, v1")
        e("v_lshlrev_b32 v3, 7, v3")
        e("v_lshl_add_u32 v5, v2, 12, v3")
        e("v_lshl_add_u32 v6, v2, 13, v3")
        e("s_lshl_b32 s22, s30, 5")
        e("s_lshl_b32 s23, s16, 3")
        e("s_add_u32 s22, s22, s23")
        e("s_lshl_b32 s22, s22, 12")
        e("s_add_u32 s22, s22, s18")
        e("buffer_load_dword v7, v5, s[12:15], s22 offen")
        e("s_add_u32 s22, s22, 16384")
        e("buffer_load_dword v7, v5, s[12:15], s22 offen")
        e("s_and_b32 s22, s29, 7")
        e("s_lshl_b32 s22, s22, 4")
        e("s_lshl_b32 s23, s16, 2")
        e("s_add_u32 s22, s22, s23")
        e("s_lshl_b32 s22, s22, 13")
        e("s_add_u32 s22, s22, s17")
        e("buffer_load_dword v7, v6, s[8:11], s22 offen")
    g.run(e, pre_cons=pre)
    e("v_and_b32 v1, 63, v0")
    e("v_lshlrev_b32 v2, 4, v1")
    e("s_lshr_b32 s22, s16, 1")
    e("s_and_b32 s23, s16, 1")
    e("s_lshl_b32 s31, s28, 5")
    e("s_lshl_b32 s32, s30, 3")
    e("s_add_u32 s31, s31, s32")
    e("s_lshl_b32 s22, s22, 2")
    e("s_add_u32 s31, s31, s22")
    e("s_lshl_b32 s31, s31, 7")
    e("s_lshl_b32 s32, s29, 3")
    e("s_add_u32 s31, s31, s32")
    e("s_lshl_b32 s23, s23, 2")
    e("s_add_u32 s31, s31, s23")
    e("s_lshl_b32 s31, s31, 10")
    for tm in range(4):
        e(f"s_add_u32 s32, s31, {tm * 128 * 1024}")
        for tn in range(4):
            a = g.accreg(tm, tn)
            e(f"buffer_store_dwordx4 v[{a}:{a+3}], v2, s[24:27], s32 offen offset:{tn * 1024}")
    stamp(e, 5); stamp_rt(e, 6); stamp_flush(e, 2, 7)
    e("L_k2_done:")
    e("s_endpgm")
    return g.vend, g.NS * g.SS


def gen_k3(e, name, NS=6):
    kernel_head(e, name)
    e("s_cmp_ge_u32 s2, 256")
    e("s_cbranch_scc1 L_k3_done")
    stamp_rt(e, 0)
    stamp(e, 1)
    e(f"s_load_dwordx2 s[4:5], s[0:1], {KA_WS}")
    e(f"s_load_dwordx2 s[6:7], s[0:1], {KA_X}")
    e(f"s_load_dwordx4 s[40:43], s[0:1], {KA_B2}")
    e("v_lshrrev_b32 v1, 6, v0")
    e("s_nop 0")
    e("v_readfirstlane_b32 s16, v1")
    e("s_nop 3")
    e("s_lshr_b32 s53, s16, 2")
    e("s_and_b32 s16, s16, 3")
    e("s_and_b32 s28, s2, 7")
    e("s_lshl_b32 s28, s28, 2")
    e("s_lshr_b32 s29, s2, 6")
    e("s_add_u32 s28, s28, s29")
    e("s_lshr_b32 s29, s2, 3")
    e("s_and_b32 s29, s29, 7")
    e("s_waitcnt lgkmcnt(0)")
    srd(e, 8, 4, WS_W2T, 512 * HS * 2)
    srd(e, 12, 4, WS_H, 2048 * HS * 2)
    srd(e, 24, 4, WS_PART, 16 << 20)
    srd(e, 32, 6, 0, 2 << 20)
    srd(e, 36, 40, 0, 1024)
    srd(e, 44, 42, 0, 2 << 20)
    e(f"s_mul_i32 s17, s29, {64 * HS * 2}")
    e(f"s_mul_i32 s18, s28, {64 * HS * 2}")
    g = Gemm("k3", 2, 2, 2, 2, 22, NS, HS * 2, HS * 2)
    vp = g.vend
    vx = vp + 64
    vb = vx + 8
    vt = vb + 4
    e("v_and_b32 v1, 63, v0")
    e("v_lshlrev_b32 v5, 4, v1")
    e("v_and_b32 v2, 15, v1")
    e("v_lshrrev_b32 v3, 4, v1")
    e("v_lshlrev_b32 v6, 3, v3")
    e("v_lshlrev_b32 v7, 10, v2")
    e("v_add_u32 v7, v7, v6")
    e("s_lshr_b32 s22, s16, 1")
    e("s_and_b32 s23, s16, 1")
    e("s_lshl_b32 s30, s29, 2")
    e("s_lshl_b32 s22, s22, 1")
    e("s_add_u32 s30, s30, s22")
    e("s_lshl_b32 s31, s28, 2")
    e("s_lshl_b32 s23, s23, 1")
    e("s_add_u32 s31, s31, s23")
    e("s_lshl_b32 s48, s30, 7")
    e("s_add_u32 s48, s48, s31")
    e("s_lshl_b32 s48, s48, 10")
    e("s_lshl_b32 s49, s30, 5")
    e("s_lshl_b32 s50, s31, 14")
    e("s_add_u32 s50, s50, s49")
    extra = []
    for sp in range(4):
        for tm in range(2):
            grp = [f"s_add_u32 s51, s48, {(sp * 32 + tm) * 128 * 1024}"]
            for tn in range(2):
                r = vp + 16 * sp + 4 * (tm * 2 + tn)
                grp.append(f"buffer_load_dwordx4 v[{r}:{r+3}], v5, s[24:27], s51 offen offset:{tn * 1024}")
            extra.append(grp)
    for tm in range(2):
        for tn in range(2):
            r = vx + 2 * (tm * 2 + tn)
            extra.append([f"s_add_u32 s51, s50, {tn * 16 * 1024}",
                          f"buffer_load_dwordx2 v[{r}:{r+1}], v7, s[32:35], s51 offen offset:{tm * 32}"])
        r = vb + 2 * tm
        extra.append([f"buffer_load_dwordx2 v[{r}:{r+1}], v6, s[36:39], s49 offen offset:{tm * 32}"])
    nloads = sum(1 for grp in extra for ins in grp if ins.startswith("buffer_load"))
    class X(list):
        def __len__(self):
            return nloads
    def pre():
        if not TOUCH:
            return
        e("v_and_b32 v1, 63, v0")
        e("v_lshlrev_b32 v8, 7, v1")
        e("s_and_b32 s22, s28, 3")
        e("s_mul_i32 s22, s22, 45056")
        e("s_mul_i32 s23, s16, 11264")
        e("s_add_u32 s22, s22, s23")
        e("s_add_u32 s22, s22, s17")
        e("buffer_load_dword v9, v8, s[8:11], s22 offen")
        e("s_add_u32 s22, s22, 8192")
        e("buffer_load_dword v9, v8, s[8:11], s22 offen")
        e("s_mul_i32 s22, s29, 22528")
        e("s_mul_i32 s23, s16, 5632")
        e("s_add_u32 s22, s22, s23")
        e("s_add_u32 s22, s22, s18")
        e("buffer_load_dword v9, v8, s[12:15], s22 offen")
    g.run(e, extra_loads=X(extra), pre_cons=pre)
    e("s_waitcnt vmcnt(0)")
    nl2e = -math.log2(math.e)
    e(f"s_mov_b32 s52, {f32bits(nl2e):#x}")
    for tm in range(2):
        b = [vt + 0, vt + 1, vt + 2, vt + 3]
        e(f"v_lshlrev_b32 v{b[0]}, 16, v{vb+2*tm}")
        e(f"v_and_b32 v{b[1]}, 0xffff0000, v{vb+2*tm}")
        e(f"v_lshlrev_b32 v{b[2]}, 16, v{vb+2*tm+1}")
        e(f"v_and_b32 v{b[3]}, 0xffff0000, v{vb+2*tm+1}")
        for tn in range(2):
            a = g.accreg(tm, tn)
            ti = tm * 2 + tn
            t = vt + 4
            q = [vt + 5, vt + 6, vt + 7, vt + 8]
            p = [vp + 16 * sp + 4 * ti for sp in range(4)]
            xr = vx + 2 * ti
            bf16r_pair(e, a, a + 1, t)
            bf16r_pair(e, a + 2, a + 3, t)
            for r in range(4):
                e(f"v_add_f32 v{a+r}, v{a+r}, v{b[r]}")
            bf16r_pair(e, a, a + 1, t)
            bf16r_pair(e, a + 2, a + 3, t)
            for r in range(4):
                e(f"v_mul_f32 v{q[r]}, s52, v{a+r}")
            for r in range(4):
                e(f"v_exp_f32 v{q[r]}, v{q[r]}")
            e("s_nop 0")
            for r in range(4):
                e(f"v_add_f32 v{q[r]}, 1.0, v{q[r]}")
            for r in range(4):
                e(f"v_rcp_f32 v{q[r]}, v{q[r]}")
            e("s_nop 0")
            for r in range(4):
                e(f"v_mul_f32 v{a+r}, v{q[r]}, v{a+r}")
            bf16r_pair(e, a, a + 1, t)
            bf16r_pair(e, a + 2, a + 3, t)
            for r in range(4):
                e(f"v_add_f32 v{p[0]+r}, v{p[0]+r}, v{p[1]+r}")
                e(f"v_add_f32 v{p[2]+r}, v{p[2]+r}, v{p[3]+r}")
            bf16r_pair(e, p[0], p[0] + 1, t)
            bf16r_pair(e, p[0] + 2, p[0] + 3, t)
            bf16r_pair(e, p[2], p[2] + 1, t)
            bf16r_pair(e, p[2] + 2, p[2] + 3, t)
            for r in range(4):
                e(f"v_sub_f32 v{p[0]+r}, v{p[0]+r}, v{p[2]+r}")
            bf16r_pair(e, p[0], p[0] + 1, t)
            bf16r_pair(e, p[0] + 2, p[0] + 3, t)
            for r in range(4):
                e(f"v_mul_f32 v{a+r}, v{a+r}, v{p[0]+r}")
            bf16r_pair(e, a, a + 1, t)
            bf16r_pair(e, a + 2, a + 3, t)
            e(f"v_lshlrev_b32 v{q[0]}, 16, v{xr}")
            e(f"v_and_b32 v{q[1]}, 0xffff0000, v{xr}")
            e(f"v_lshlrev_b32 v{q[2]}, 16, v{xr+1}")
            e(f"v_and_b32 v{q[3]}, 0xffff0000, v{xr+1}")
            for r in range(4):
                e(f"v_add_f32 v{a+r}, v{a+r}, v{q[r]}")
            e(f"v_cvt_pk_bf16_f32 v{a}, v{a}, v{a+1}")
            e(f"v_cvt_pk_bf16_f32 v{a+1}, v{a+2}, v{a+3}")
            e(f"s_add_u32 s51, s50, {tn * 16 * 1024}")
            e(f"buffer_store_dwordx2 v[{a}:{a+1}], v7, s[44:47], s51 offen offset:{tm * 32}")
    stamp(e, 5); stamp_rt(e, 6); stamp_flush(e, 3, 7)
    e("L_k3_done:")
    e("s_endpgm")
    return vt + 9, g.NS * g.SS


def main(out):
    e = E()
    n0, n1, n2, n3 = "fnet_k0_kernel", "fnet_k1_kernel", "fnet_k2_kernel", "fnet_k3_kernel"
    v0 = gen_k0(e, n0)
    v1, l1 = gen_k1(e, n1)
    v2, l2 = gen_k2(e, n2)
    v3, l3 = gen_k3(e, n3)
    hdr = open("cdna_kernels/" + NAME + ".s.ref").read().split("; Override launch geometry")[0]
    s = hdr
    s += f"; @launch kernel={n0} grid=({K0_WGS},1,1) block=(256,1,1) lds=0\n"
    s += f"; @launch kernel={n1} grid=(256,1,1) block=(512,1,1) lds={l1}\n"
    s += f"; @launch kernel={n2} grid=(256,1,1) block=(512,1,1) lds={l2}\n"
    s += f"; @launch kernel={n3} grid=(256,1,1) block=(512,1,1) lds={l3}\n"
    s += '.amdgcn_target "amdgcn-amd-amdhsa--gfx950"\n.text\n'
    s += e.text()
    s += '.section .rodata,"a"\n'
    for n, v in ((n0, v0), (n1, v1), (n2, v2), (n3, v3)):
        s += ".p2align 6\n" + kdesc(n, v)
    open(out, "w").write(s)
    print("vgprs", v0, v1, v2, v3, "lds", l1, l2, l3)


if __name__ == "__main__":
    if len(sys.argv) > 2 and sys.argv[2] == "instr":
        INSTR = True
    main(sys.argv[1] if len(sys.argv) > 1 else "cdna_kernels/" + NAME + ".s")
```

```python
import sys, math, os
EXP = os.environ.get('EXP', '')

NAME = "recurrent_scan__spectral_fnet__mixer_channel_mlp__prompt"

WS_XN = 0
WS_Y2 = 2 << 20
WS_WCAT = 4 << 20
WS_W2T = 8 << 20
WS_ABT = 10 << 20
WS_H = 16 << 20
WS_PART = 32 << 20
HS = 1408
F = 1376

KA_X, KA_WSRE, KA_WSIM, KA_WDRE, KA_WDIM, KA_BX, KA_W1, KA_B1, KA_W2, KA_B2, KA_OUT, KA_DBG, KA_WS = [8 * i for i in range(13)]


INSTR = False
ROT = False
TOUCH1 = int(os.environ.get('TOUCH1', '0'))
TOUCH2 = int(os.environ.get('TOUCH2', '1'))
TOUCH3 = int(os.environ.get('TOUCH3', '0'))
WS_DBG = 100 << 20
K3_SKIP = int(os.environ.get('K3_SKIP', '2'))


def stamp(e, k):
    if INSTR:
        e(f"s_memtime s[{70 + 2 * k}:{71 + 2 * k}]")


def stamp_rt(e, k):
    if INSTR:
        e(f"s_memrealtime s[{70 + 2 * k}:{71 + 2 * k}]")


def stamp_flush(e, kidx, n, wsbase=4):
    if not INSTR:
        return
    e("s_waitcnt lgkmcnt(0)")
    e(f"s_add_u32 s96, s{wsbase}, {WS_DBG + kidx * (1 << 18)}")
    e(f"s_addc_u32 s97, s{wsbase + 1}, 0")
    e(f"s_mov_b32 s98, {1 << 18}")
    e("s_mov_b32 s99, 0x20000")
    e("s_lshl_b32 s100, s2, 2")
    e("s_add_u32 s100, s100, s16")
    e("s_lshl_b32 s100, s100, 6")
    e("v_mov_b32 v1, 0")
    for k in range(n):
        e(f"v_mov_b32 v2, s{70 + 2 * k}")
        e(f"buffer_store_dword v2, v1, s[96:99], s100 offen offset:{4 * k}")


class E:
    def __init__(self):
        self.L = []

    def __call__(self, s):
        for line in s.split("\n"):
            line = line.strip()
            if line:
                self.L.append(("    " if not line.endswith(":") else "") + line)

    def text(self):
        return "\n".join(self.L) + "\n"


def f32bits(x):
    import struct
    return struct.unpack("<I", struct.pack("<f", x))[0]


def srd(e, d, base, off, nbytes):
    if off:
        e(f"s_add_u32 s{d}, s{base}, {off}")
        e(f"s_addc_u32 s{d+1}, s{base+1}, 0")
    else:
        e(f"s_mov_b32 s{d}, s{base}")
        e(f"s_mov_b32 s{d+1}, s{base+1}")
    e(f"s_mov_b32 s{d+2}, {nbytes}")
    e(f"s_mov_b32 s{d+3}, 0x20000")


def kernel_head(e, name):
    e(f".globl {name}")
    e(".p2align 8")
    e(f".type {name},@function")
    e(f"{name}:")


def kdesc(name, vgpr, sgpr=102):
    v = (vgpr + 3) // 4 * 4
    return f""".amdhsa_kernel {name}
  .amdhsa_next_free_vgpr {v}
  .amdhsa_next_free_sgpr {sgpr}
  .amdhsa_accum_offset {v}
  .amdhsa_group_segment_fixed_size 0
  .amdhsa_kernarg_size 104
  .amdhsa_user_sgpr_count 2
  .amdhsa_user_sgpr_kernarg_segment_ptr 1
  .amdhsa_system_sgpr_workgroup_id_x 1
.end_amdhsa_kernel
"""


def ws_touch(e, idreg, groups, tag, sw="s16", sre=40, sd=44):
    e(f"s_lshr_b32 s22, {idreg}, 3")
    e("s_cmp_ge_u32 s22, 24")
    e(f"s_cbranch_scc1 L_{tag}_notouch")
    srd(e, sd, sre, 0, 8 << 20)
    srd(e, sd + 4, sre + 2, 0, 8 << 20)
    e(f"s_and_b32 s23, {idreg}, 7")
    e("s_mul_i32 s23, s23, 6")
    e("s_lshr_b32 s31, s22, 2")
    e("s_add_u32 s23, s23, s31")
    e("s_and_b32 s22, s22, 3")
    e("s_lshl_b32 s22, s22, 2")
    e(f"s_add_u32 s22, s22, {sw}")
    e("s_lshl_b32 s22, s22, 3")
    e("s_and_b32 s31, s23, 15")
    e("s_lshl_b32 s31, s31, 7")
    e("s_add_u32 s22, s22, s31")
    e("s_lshr_b32 s23, s23, 4")
    e("s_mul_i32 s31, s23, 21")
    e("s_min_u32 s32, s23, 1")
    e("s_add_u32 s31, s31, s32")
    e("s_sub_u32 s32, 22, s32")
    e("s_add_u32 s32, s32, s31")
    e("v_and_b32 v1, 63, v0")
    e("v_lshrrev_b32 v2, 3, v1")
    e("v_add_u32 v2, s22, v2")
    e("v_lshlrev_b32 v2, 12, v2")
    e("v_and_b32 v3, 7, v1")
    e("v_add_u32 v3, s31, v3")
    e("v_mov_b32 v7, -1")
    for i in groups:
        e(f"v_add_u32 v4, {8 * i}, v3")
        e("v_lshl_add_u32 v5, v4, 7, v2")
        e("v_cmp_gt_u32 vcc, s32, v4")
        e("v_cndmask_b32 v5, v7, v5, vcc")
        e("v_add_u32 v6, 0xfffff000, v5")
        e("v_cndmask_b32 v6, v7, v6, vcc")
        e("v_cmp_gt_u32 vcc, 32, v4")
        e("v_cndmask_b32 v5, v7, v5, vcc")
        e("v_cndmask_b32 v6, v6, v7, vcc")
        e(f"buffer_load_dword v8, v5, s[{sd}:{sd+3}], 0 offen")
        e(f"buffer_load_dword v8, v6, s[{sd+4}:{sd+7}], 0 offen")
    e(f"L_{tag}_notouch:")


def wave_reduce(e, regs, sbase):
    for ctl in ("quad_perm:[1,0,3,2]", "quad_perm:[2,3,0,1]", "row_half_mirror", "row_mirror"):
        e("s_nop 1")
        for r in regs:
            e(f"v_add_f32_dpp v{r}, v{r}, v{r} {ctl} row_mask:0xf bank_mask:0xf")
    e("s_nop 1")
    for i, r in enumerate(regs):
        for j in range(4):
            e(f"v_readlane_b32 s{sbase + 4 * i + j}, v{r}, {16 * j}")
    e("s_nop 1")
    for i, r in enumerate(regs):
        e(f"v_mov_b32 v{r}, s{sbase + 4 * i}")
        for j in range(1, 4):
            e(f"v_add_f32 v{r}, s{sbase + 4 * i + j}, v{r}")


def bf16r_scalar(e, r):
    e(f"v_cvt_pk_bf16_f32 v{r}, v{r}, v{r}")
    e(f"v_lshlrev_b32 v{r}, 16, v{r}")


def ln_pass(e, Fr, T, P):
    rows = range(len(Fr))
    for R in rows:
        f, t = Fr[R], T[R]
        e(f"v_add_f32 v{t[0]}, v{f[0]}, v{f[1]}")
        for i in range(2, 8):
            e(f"v_add_f32 v{t[0]}, v{t[0]}, v{f[i]}")
    wave_reduce(e, [T[R][0] for R in rows], 40)
    for R in rows:
        f, t = Fr[R], T[R]
        e(f"v_mul_f32 v{t[0]}, {f32bits(1.0/512):#x}, v{t[0]}")
        e(f"v_sub_f32 v{t[2]}, v{f[0]}, v{t[0]}")
        e(f"v_mul_f32 v{t[1]}, v{t[2]}, v{t[2]}")
        for i in range(1, 8):
            e(f"v_sub_f32 v{t[2]}, v{f[i]}, v{t[0]}")
            e(f"v_fmac_f32 v{t[1]}, v{t[2]}, v{t[2]}")
    wave_reduce(e, [T[R][1] for R in rows], 40)
    for R in rows:
        f, t = Fr[R], T[R]
        e(f"v_mul_f32 v{t[1]}, {f32bits(1.0/512):#x}, v{t[1]}")
        bf16r_scalar(e, t[0])
        bf16r_scalar(e, t[1])
        e(f"v_add_f32 v{t[1]}, {f32bits(1e-5):#x}, v{t[1]}")
        bf16r_scalar(e, t[1])
        e(f"v_sqrt_f32 v{t[1]}, v{t[1]}")
        e("s_nop 0")
        bf16r_scalar(e, t[1])
        e(f"v_rcp_f32 v{t[2]}, v{t[1]}")
        e("s_nop 0")
        for i in range(0, 8, 2):
            e(f"v_sub_f32 v{f[i]}, v{f[i]}, v{t[0]}")
            e(f"v_sub_f32 v{f[i+1]}, v{f[i+1]}, v{t[0]}")
            e(f"v_cvt_pk_bf16_f32 v{t[3]}, v{f[i]}, v{f[i+1]}")
            e(f"v_lshlrev_b32 v{f[i]}, 16, v{t[3]}")
            e(f"v_and_b32 v{f[i+1]}, 0xffff0000, v{t[3]}")
            for j in (i, i + 1):
                e(f"v_mul_f32 v{t[3]}, v{f[j]}, v{t[2]}")
                e(f"v_fma_f32 v{t[4]}, -v{t[3]}, v{t[1]}, v{f[j]}")
                e(f"v_fma_f32 v{f[j]}, v{t[4]}, v{t[2]}, v{t[3]}")
            e(f"v_cvt_pk_bf16_f32 v{P[R][i//2]}, v{f[i]}, v{f[i+1]}")
            e(f"v_lshlrev_b32 v{f[i]}, 16, v{P[R][i//2]}")
            e(f"v_and_b32 v{f[i+1]}, 0xffff0000, v{P[R][i//2]}")


K0_LN, K0_T1, K0_T2, K0_CP = 256, 88, 88, 32
PF0 = [int(c) for c in os.environ.get('PF0', '')]
PF1 = [int(c) for c in os.environ.get('PF1', '')]
PF2 = [int(c) for c in os.environ.get('PF2', '')]
K0_PF = 192 if PF0 else 0
K0_WGS = K0_LN + K0_T1 + K0_T2 + K0_CP + K0_PF


def gen_k0(e, name):
    kernel_head(e, name)
    e(f"s_cmp_ge_u32 s2, {K0_WGS}")
    e(f"s_cbranch_scc1 L_k0_done")
    stamp_rt(e, 0); stamp(e, 1)
    e(f"s_load_dwordx2 s[4:5], s[0:1], {KA_X}")
    e(f"s_load_dwordx2 s[6:7], s[0:1], {KA_WS}")
    e(f"s_load_dwordx4 s[8:11], s[0:1], {KA_WDRE}")
    e(f"s_load_dwordx2 s[12:13], s[0:1], {KA_W1}")
    e(f"s_load_dwordx2 s[14:15], s[0:1], {KA_W2}")
    e("v_lshrrev_b32 v1, 6, v0")
    e("v_and_b32 v2, 63, v0")
    e("s_nop 0")
    e("v_readfirstlane_b32 s16, v1")
    e("s_waitcnt lgkmcnt(0)")
    srd(e, 24, 6, 0, 64 << 20)
    e(f"s_cmp_ge_u32 s2, {K0_LN}")
    e("s_cbranch_scc1 L_k0_notln")
    srd(e, 20, 4, 0, 2 << 20)
    e("s_lshl_b32 s17, s2, 3")
    e("s_lshl_b32 s18, s16, 1")
    e("s_add_u32 s17, s17, s18")
    e("s_lshl_b32 s17, s17, 10")
    e("v_lshlrev_b32 v3, 4, v2")
    e("v_add_u32 v3, s17, v3")
    e("buffer_load_dwordx4 v[4:7], v3, s[20:23], 0 offen")
    e("buffer_load_dwordx4 v[8:11], v3, s[20:23], 0 offen offset:1024")
    Fr = [list(range(16, 24)), list(range(24, 32))]
    T = [list(range(32, 38)), list(range(38, 44))]
    P = [list(range(44, 48)), list(range(48, 52))]
    e("s_waitcnt vmcnt(0)")
    stamp(e, 2)
    for R in range(2):
        for i in range(4):
            e(f"v_lshlrev_b32 v{Fr[R][2*i]}, 16, v{4+4*R+i}")
            e(f"v_and_b32 v{Fr[R][2*i+1]}, 0xffff0000, v{4+4*R+i}")
    ln_pass(e, Fr, T, P)
    e("buffer_store_dwordx4 v[44:47], v3, s[24:27], 0 offen")
    e("buffer_store_dwordx4 v[48:51], v3, s[24:27], 0 offen offset:1024")
    P2 = [list(range(52, 56)), list(range(56, 60))]
    ln_pass(e, Fr, T, P2)
    e(f"s_mov_b32 s17, {WS_Y2}")
    e("buffer_store_dwordx4 v[52:55], v3, s[24:27], s17 offen")
    e("buffer_store_dwordx4 v[56:59], v3, s[24:27], s17 offen offset:1024")
    stamp(e, 3); stamp(e, 4); stamp(e, 5); stamp_rt(e, 6); stamp_flush(e, 0, 7, wsbase=6)
    e("s_endpgm")
    e("L_k0_notln:")
    e(f"s_cmp_ge_u32 s2, {K0_LN + K0_T1}")
    e("s_cbranch_scc1 L_k0_nott1")
    srd(e, 20, 12, 0, 512 * F * 2)
    e(f"s_sub_u32 s17, s2, {K0_LN}")
    e("s_lshl_b32 s17, s17, 2")
    e("s_add_u32 s17, s17, s16")
    e("s_lshr_b32 s18, s17, 4")
    e("s_and_b32 s19, s17, 15")
    e("s_lshl_b32 s18, s18, 6")
    e("v_add_u32 v3, s18, v2")
    e("v_lshlrev_b32 v20, 1, v3")
    e(f"s_mul_i32 s28, s19, {32 * F * 2}")
    for i in range(32):
        e(f"buffer_load_ushort v{24 + i}, v20, s[20:23], s28 offen")
        if i != 31:
            e(f"s_add_u32 s28, s28, {F * 2}")
    e("v_lshlrev_b32 v21, 10, v3")
    e("s_lshl_b32 s19, s19, 6")
    e(f"s_add_u32 s19, s19, {WS_WCAT + 1024 * 1024}")
    e(f"v_cmp_gt_u32 vcc, {F}, v3")
    e("s_and_saveexec_b64 s[30:31], vcc")
    e("s_cbranch_execz L_k0_done")
    e("s_waitcnt vmcnt(0)")
    stamp(e, 2)
    for i in range(16):
        e(f"v_lshl_or_b32 v{4 + i}, v{25 + 2 * i}, 16, v{24 + 2 * i}")
    for i in range(4):
        e(f"buffer_store_dwordx4 v[{4+4*i}:{7+4*i}], v21, s[24:27], s19 offen offset:{16*i}")
    stamp(e, 3); stamp(e, 4); stamp(e, 5); stamp_rt(e, 6); stamp_flush(e, 0, 7, wsbase=6)
    e("s_endpgm")
    e("L_k0_nott1:")
    e(f"s_cmp_ge_u32 s2, {K0_LN + K0_T1 + K0_T2}")
    e("s_cbranch_scc1 L_k0_cp")
    srd(e, 20, 14, 0, F * 512 * 2)
    e(f"s_sub_u32 s17, s2, {K0_LN + K0_T1}")
    e("s_lshl_b32 s17, s17, 2")
    e("s_add_u32 s17, s17, s16")
    e("s_and_b32 s18, s17, 7")
    e("s_lshr_b32 s19, s17, 3")
    e("s_lshl_b32 s18, s18, 6")
    e("v_add_u32 v3, s18, v2")
    e("v_lshlrev_b32 v20, 1, v3")
    e("s_lshl_b32 s28, s19, 15")
    for i in range(32):
        e(f"buffer_load_ushort v{24 + i}, v20, s[20:23], s28 offen")
        if i != 31:
            e(f"s_add_u32 s28, s28, 1024")
    e(f"v_mul_u32_u24 v21, {HS * 2}, v3")
    e("s_lshl_b32 s19, s19, 6")
    e(f"s_add_u32 s19, s19, {WS_W2T}")
    e("s_waitcnt vmcnt(0)")
    stamp(e, 2)
    for i in range(16):
        e(f"v_lshl_or_b32 v{4 + i}, v{25 + 2 * i}, 16, v{24 + 2 * i}")
    for i in range(4):
        e(f"buffer_store_dwordx4 v[{4+4*i}:{7+4*i}], v21, s[24:27], s19 offen offset:{16*i}")
    stamp(e, 3); stamp(e, 4); stamp(e, 5); stamp_rt(e, 6); stamp_flush(e, 0, 7, wsbase=6)
    e("s_endpgm")
    e("L_k0_cp:")
    if PF0:
        e(f"s_cmp_lt_u32 s2, {K0_WGS - K0_PF}")
        e("s_cbranch_scc1 L_k0_cp2")
        e(f"s_load_dwordx4 s[40:43], s[0:1], {KA_WSRE}")
        e(f"s_sub_u32 s30, s2, {K0_WGS - K0_PF}")
        e("s_waitcnt lgkmcnt(0)")
        ws_touch(e, "s30", PF0, "k0")
        e("s_endpgm")
        e("L_k0_cp2:")
    e(f"s_sub_u32 s17, s2, {K0_LN + K0_T1 + K0_T2}")
    e("s_lshl_b32 s17, s17, 2")
    e("s_add_u32 s17, s17, s16")
    e("s_cmp_ge_u32 s17, 64")
    e("s_cselect_b32 s20, s10, s8")
    e("s_cselect_b32 s21, s11, s9")
    e(f"s_mov_b32 s22, {512 * 1024}")
    e("s_mov_b32 s23, 0x20000")
    e("s_and_b32 s18, s17, 63")
    e("s_lshl_b32 s18, s18, 13")
    e("s_lshl_b32 s19, s17, 13")
    e(f"s_add_u32 s19, s19, {WS_WCAT}")
    e("v_lshlrev_b32 v3, 4, v2")
    for i in range(8):
        if i == 4:
            e("s_add_u32 s18, s18, 4096")
        e(f"buffer_load_dwordx4 v[{4+4*i}:{7+4*i}], v3, s[20:23], s18 offen offset:{1024*(i%4)}")
    e("s_waitcnt vmcnt(0)")
    for i in range(8):
        if i == 4:
            e("s_add_u32 s19, s19, 4096")
        e(f"buffer_store_dwordx4 v[{4+4*i}:{7+4*i}], v3, s[24:27], s19 offen offset:{1024*(i%4)}")
    e("L_k0_done:")
    e("s_endpgm")
    return 64


class Gemm:
    def __init__(self, tag, TM, TN, WM, WN, nsteps, NS, strideP, strideQ, swap=False, vbase=16, dyn=False):
        self.tag = tag
        self.dyn = dyn
        self.TM, self.TN, self.WM, self.WN = TM, TN, WM, WN
        self.PR, self.QR = WM * TM * 16, WN * TN * 16
        self.nsteps, self.NS = nsteps, NS
        self.sP, self.sQ = strideP, strideQ
        self.swap = swap
        self.SS = (self.PR + self.QR) * 128
        assert (self.PR // 8) % 4 == 0 and (self.QR // 8) % 4 == 0
        self.DP, self.DQ = self.PR // 32, self.QR // 32
        self.D = self.DP + self.DQ
        v = vbase
        self.vDP, self.vDQ, self.vP0b, self.vP1b, self.vQ0b, self.vQ1b = range(v, v + 6)
        self.vPa0, self.vPa1, self.vQa0, self.vQa1 = range(v + 6, v + 10)
        v = (v + 10 + 3) // 4 * 4
        self.fP = [v, v + 4 * (TM + TN)]
        self.fQ = [v + 4 * TM, v + 4 * (TM + TN) + 4 * TM]
        v += 8 * (TM + TN)
        self.acc = v
        self.vend = v + 4 * TM * TN

    def accreg(self, tm, tn):
        return self.acc + 4 * (tm * self.TN + tn)

    def setup_prod(self, e):
        g = self
        e("v_and_b32 v1, 63, v0")
        e("v_lshrrev_b32 v2, 3, v1")
        e("v_lshrrev_b32 v3, 4, v1")
        e("s_and_b32 s22, s16, 1")
        e("s_lshl_b32 s22, s22, 2")
        e("v_add_u32 v3, s22, v3")
        e("v_and_b32 v4, 7, v1")
        e("v_xor_b32 v3, v3, v4")
        e("v_lshlrev_b32 v3, 4, v3")
        e("s_lshl_b32 s22, s16, 3")
        e("v_add_u32 v2, s22, v2")
        if g.dyn:
            e(f"v_mul_lo_u32 v4, v2, s56")
            e(f"v_add_u32 v{g.vDP}, v4, v3")
            e(f"v_mul_lo_u32 v4, v2, s57")
            e(f"v_add_u32 v{g.vDQ}, v4, v3")
            for jj in range(1, g.DP):
                e(f"s_mul_i32 s{57 + jj}, s56, {32 * jj}")
            for jj in range(1, g.DQ):
                e(f"s_mul_i32 s{61 + jj}, s57, {32 * jj}")
        else:
            e(f"s_mov_b32 s22, {g.sP}")
            e(f"v_mul_lo_u32 v4, v2, s22")
            e(f"v_add_u32 v{g.vDP}, v4, v3")
            e(f"s_mov_b32 s22, {g.sQ}")
            e(f"v_mul_lo_u32 v4, v2, s22")
            e(f"v_add_u32 v{g.vDQ}, v4, v3")
        e("s_lshl_b32 s19, s16, 10")
        if ROT:
            m = 1
            while m * 2 <= g.nsteps:
                m *= 2
            e("s_lshr_b32 s22, s2, 3")
            e(f"s_and_b32 s22, s22, {m - 1}")
            e(f"s_sub_u32 s54, {g.nsteps}, s22")
            e("s_lshl_b32 s22, s22, 7")
            e("s_add_u32 s17, s17, s22")
            e("s_add_u32 s18, s18, s22")

    def setup_cons(self, e):
        g = self
        e("v_and_b32 v1, 63, v0")
        e("v_and_b32 v2, 15, v1")
        e("v_lshrrev_b32 v3, 1, v2")
        e("v_lshrrev_b32 v4, 4, v1")
        e("v_xor_b32 v3, v3, v4")
        e("v_lshlrev_b32 v3, 4, v3")
        e("v_lshlrev_b32 v2, 7, v2")
        e("v_add_u32 v2, v2, v3")
        if g.WN == 2:
            e("s_lshr_b32 s22, s16, 1")
            e("s_and_b32 s23, s16, 1")
        elif g.WN == 1:
            e("s_mov_b32 s22, s16")
            e("s_mov_b32 s23, 0")
        elif g.WN == 4:
            e("s_mov_b32 s22, 0")
            e("s_mov_b32 s23, s16")
        e(f"s_mul_i32 s22, s22, {g.TM * 2048}")
        e(f"s_mul_i32 s23, s23, {g.TN * 2048}")
        e(f"s_add_u32 s23, s23, {g.PR * 128}")
        e(f"v_add_u32 v{g.vP0b}, s22, v2")
        e(f"v_xor_b32 v{g.vP1b}, 64, v{g.vP0b}")
        e(f"v_add_u32 v{g.vQ0b}, s23, v2")
        e(f"v_xor_b32 v{g.vQ1b}, 64, v{g.vQ0b}")
        e("s_mov_b32 s20, 0")

    def dma_ops(self):
        g = self
        ops = []
        for j in range(g.D):
            isP = j < g.DP
            jj = j if isP else j - g.DP
            stride = g.sP if isP else g.sQ
            sk = "s17" if isP else "s18"
            sr = "s[8:11]" if isP else "s[12:15]"
            vd = g.vDP if isP else g.vDQ
            grp = [f"s_add_u32 m0, s19, {j * 4096}"]
            if jj == 0:
                grp.append("s_nop 0")
                grp.append(f"buffer_load_dwordx4 v{vd}, {sr}, {sk} offen lds")
            else:
                if g.dyn:
                    grp.append(f"s_add_u32 s22, {sk}, s{(57 if isP else 61) + jj}")
                else:
                    grp.append(f"s_add_u32 s22, {sk}, {jj * 32 * stride}")
                grp.append(f"buffer_load_dwordx4 v{vd}, {sr}, s22 offen lds")
            ops.append(grp)
        adv = ["s_add_u32 s17, s17, 128", "s_add_u32 s18, s18, 128",
               f"s_add_u32 s19, s19, {g.SS}", f"s_sub_u32 s22, s19, {g.NS * g.SS}",
               f"s_cmp_ge_u32 s19, {g.NS * g.SS}", "s_cselect_b32 s19, s22, s19"]
        if ROT:
            adv += ["s_sub_u32 s54, s54, 1", "s_cmp_eq_u32 s54, 0",
                    f"s_cselect_b32 s22, {g.nsteps * 128}, 0",
                    "s_sub_u32 s17, s17, s22", "s_sub_u32 s18, s18, s22"]
        if g.dyn:
            adv += ["s_sub_u32 s54, s54, 1", "s_cmp_eq_u32 s54, 0",
                    "s_cselect_b32 s12, s42, s12", "s_cselect_b32 s13, s43, s13",
                    "s_cselect_b32 s22, 4096, 0", "s_sub_u32 s18, s18, s22"]
        ops.append(adv)
        return ops

    def frag_reads(self, st):
        g = self
        va, vq = (g.vPa0, g.vQa0) if st == 0 else (g.vPa1, g.vQa1)
        ops = []
        for i in range(max(g.TM, g.TN)):
            if i < g.TM:
                r = g.fP[st] + 4 * i
                ops.append([f"ds_read_b128 v[{r}:{r+3}], v{va} offset:{i * 2048}"])
            if i < g.TN:
                r = g.fQ[st] + 4 * i
                ops.append([f"ds_read_b128 v[{r}:{r+3}], v{vq} offset:{i * 2048}"])
        return ops

    def mfmas(self, st):
        g = self
        ops = []
        if EXP == "E2" and g.tag == "k2":
            return ["s_nop 0"]
        for tm in range(g.TM):
            for tn in range(g.TN):
                a = g.accreg(tm, tn)
                p = g.fP[st] + 4 * tm
                q = g.fQ[st] + 4 * tn
                if g.swap:
                    p, q = q, p
                ops.append(f"v_mfma_f32_16x16x32_bf16 v[{a}:{a+3}], v[{p}:{p+3}], v[{q}:{q+3}], v[{a}:{a+3}]")
        return ops

    @staticmethod
    def interleave(e, mf, fillers):
        n = len(mf)
        k = len(fillers)
        fi = 0
        for i, m in enumerate(mf):
            e(m)
            want = min(k, -(-(i + 1) * k // n)) if k > n else min(k, i + 1)
            while fi < want:
                for ins in fillers[fi]:
                    e(ins)
                fi += 1
        while fi < k:
            for ins in fillers[fi]:
                e(ins)
            fi += 1

    def step(self, e, last):
        g = self
        e(f"v_add_u32 v{g.vPa1}, s20, v{g.vP1b}")
        e(f"v_add_u32 v{g.vQa1}, s20, v{g.vQ1b}")
        e(f"s_add_u32 s20, s20, {g.SS}")
        e(f"s_cmp_eq_u32 s20, {g.NS * g.SS}")
        e("s_cselect_b32 s20, 0, s20")
        e("s_waitcnt lgkmcnt(0)")
        g.interleave(e, g.mfmas(0), g.frag_reads(1))
        if not last:
            e(f"v_add_u32 v{g.vPa0}, s20, v{g.vP0b}")
            e(f"v_add_u32 v{g.vQa0}, s20, v{g.vQ0b}")
            e(f"s_waitcnt lgkmcnt(0)")
            e("s_barrier")
        else:
            e("s_waitcnt lgkmcnt(0)")
        fill = []
        if not last:
            fill += g.frag_reads(0)
        g.interleave(e, g.mfmas(1), fill)

    def run(self, e, extra_loads=None, pre_cons=None, step_extras=None, post_prod=None):
        g = self
        e("s_cmp_eq_u32 s53, 0")
        e(f"s_cbranch_scc1 L_{g.tag}_cons")
        e("s_setprio 1")
        g.setup_prod(e)
        for s in range(g.NS - 1):
            for grp in g.dma_ops():
                for ins in grp:
                    e(ins)
        e(f"s_waitcnt vmcnt({(g.NS - 2) * g.D})")
        e("s_barrier")
        nmain = g.nsteps - g.NS + 1
        if g.dyn:
            e(f"s_sub_u32 s21, s55, {g.NS - 1}")
        else:
            e(f"s_mov_b32 s21, {nmain}")
        e(f"L_{g.tag}_ploop:")
        e(f"s_waitcnt vmcnt({(g.NS - 3) * g.D})")
        e("s_barrier")
        for grp in g.dma_ops():
            for ins in grp:
                e(ins)
        e("s_sub_u32 s21, s21, 1")
        e("s_cmp_lg_u32 s21, 0")
        e(f"s_cbranch_scc1 L_{g.tag}_ploop")
        for i in range(nmain, g.nsteps - 1):
            e(f"s_waitcnt vmcnt({(g.nsteps - 2 - i) * g.D})")
            e("s_barrier")
        if post_prod:
            post_prod()
        e("s_endpgm")
        e(f"L_{g.tag}_cons:")
        g.setup_cons(e)
        if pre_cons:
            pre_cons()
        if extra_loads:
            for grp in extra_loads:
                for ins in grp:
                    e(ins)
        for r in range(g.acc, g.vend):
            e(f"v_mov_b32 v{r}, 0")
        e(f"v_mov_b32 v{g.vPa0}, v{g.vP0b}")
        e(f"v_mov_b32 v{g.vQa0}, v{g.vQ0b}")
        e("s_barrier")
        stamp(e, 2)
        for grp in g.frag_reads(0):
            e(grp[0])
        npeel = 0
        if step_extras:
            npeel = len(step_extras)
            for grp in step_extras:
                for ins in grp:
                    e(ins)
                g.step(e, False)
        if g.dyn:
            e(f"s_sub_u32 s21, s55, {1 + npeel}")
        else:
            e(f"s_mov_b32 s21, {g.nsteps - 1 - npeel}")
        e(f"L_{g.tag}_loop:")
        g.step(e, False)
        e("s_sub_u32 s21, s21, 1")
        e("s_cmp_lg_u32 s21, 0")
        e(f"s_cbranch_scc1 L_{g.tag}_loop")
        stamp(e, 3)
        g.step(e, True)
        e("s_nop 15")
        stamp(e, 4)


def bf16r_pair(e, a, b, t):
    e(f"v_cvt_pk_bf16_f32 v{t}, v{a}, v{b}")
    e(f"v_lshlrev_b32 v{a}, 16, v{t}")
    e(f"v_and_b32 v{b}, 0xffff0000, v{t}")


def gen_k1(e, name):
    kernel_head(e, name)
    e("s_cmp_ge_u32 s2, 256")
    e("s_cbranch_scc1 L_k1_done")
    stamp_rt(e, 0)
    stamp(e, 1)
    e(f"s_load_dwordx2 s[4:5], s[0:1], {KA_WS}")
    e(f"s_load_dwordx2 s[6:7], s[0:1], {KA_B1}")
    e(f"s_load_dwordx4 s[40:43], s[0:1], {KA_WSRE}")
    e("v_lshrrev_b32 v1, 6, v0")
    e("s_nop 0")
    e("v_readfirstlane_b32 s16, v1")
    e("s_nop 3")
    e("s_lshr_b32 s53, s16, 2")
    e("s_and_b32 s16, s16, 3")
    e("s_and_b32 s28, s2, 7")
    e("s_lshr_b32 s29, s2, 3")
    e("s_lshl_b32 s28, s28, 1")
    e("s_lshr_b32 s30, s29, 4")
    e("s_add_u32 s28, s28, s30")
    e("s_and_b32 s29, s29, 15")
    e("s_waitcnt lgkmcnt(0)")
    srd(e, 12, 4, WS_WCAT, 2400 * 1024)
    srd(e, 24, 4, 0, 64 << 20)
    e("s_lshl_b32 s17, s28, 17")

    def pre_ws():
        if not TOUCH1:
            return
        e("s_cmp_ge_u32 s2, 128")
        e("s_cselect_b32 s44, s42, s40")
        e("s_cselect_b32 s45, s43, s41")
        e(f"s_mov_b32 s46, {8 << 20}")
        e("s_mov_b32 s47, 0x20000")
        e("s_and_b32 s22, s2, 127")
        e("s_lshl_b32 s22, s22, 16")
        e("s_lshl_b32 s23, s16, 14")
        e("s_add_u32 s22, s22, s23")
        e("v_and_b32 v1, 63, v0")
        e("v_lshlrev_b32 v8, 7, v1")
        e("buffer_load_dword v9, v8, s[44:47], s22 offen")
        e("s_add_u32 s22, s22, 8192")
        e("buffer_load_dword v9, v8, s[44:47], s22 offen")
    e("s_cmp_ge_u32 s29, 7")
    e("s_cbranch_scc1 L_k1_typeB")
    srd(e, 8, 4, WS_XN, 2 << 20)
    e("s_mul_i32 s30, s29, 160")
    e("s_min_u32 s30, s30, 864")
    e("s_lshl_b32 s18, s30, 10")
    gA = Gemm("k1a", 4, 5, 2, 2, 8, 4, 1024, 1024, swap=False)
    gA.run(e, pre_cons=pre_ws, post_prod=(lambda: ws_touch(e, "s2", PF1, "k1a")) if PF1 else None)
    e("v_and_b32 v1, 63, v0")
    e("v_and_b32 v2, 15, v1")
    e("v_lshrrev_b32 v3, 4, v1")
    e("v_lshlrev_b32 v2, 13, v2")
    e("v_lshlrev_b32 v3, 3, v3")
    e("v_add_u32 v2, v2, v3")
    e("s_lshr_b32 s22, s16, 1")
    e("s_and_b32 s23, s16, 1")
    e("s_lshl_b32 s31, s28, 8")
    e("s_lshl_b32 s22, s22, 7")
    e("s_add_u32 s31, s31, s22")
    e(f"s_add_u32 s31, s31, {WS_ABT}")
    e("s_mul_i32 s23, s23, 80")
    e("s_add_u32 s30, s30, s23")
    for tn in range(5):
        e(f"s_add_u32 s32, s30, {16 * tn}")
        e("s_and_b32 s33, s32, 511")
        e("s_lshl_b32 s33, s33, 13")
        e("s_lshr_b32 s32, s32, 9")
        e("s_cmp_eq_u32 s32, 0")
        e("s_cselect_b32 s34, 0, 0x80008000")
        e("s_lshl_b32 s32, s32, 12")
        e("s_add_u32 s32, s32, s33")
        e("s_add_u32 s32, s32, s31")
        for tm in range(4):
            a = gA.accreg(tm, tn)
            e(f"v_cvt_pk_bf16_f32 v{a}, v{a}, v{a+1}")
            e(f"v_cvt_pk_bf16_f32 v{a+1}, v{a+2}, v{a+3}")
            e(f"v_xor_b32 v{a}, s34, v{a}")
            e(f"v_xor_b32 v{a+1}, s34, v{a+1}")
            e(f"buffer_store_dwordx2 v[{a}:{a+1}], v2, s[24:27], s32 offen offset:{tm * 32}")
    stamp(e, 5); stamp_rt(e, 6); stamp_flush(e, 1, 7)
    e("s_endpgm")
    e("L_k1_typeB:")
    srd(e, 8, 4, WS_Y2, 2 << 20)
    srd(e, 36, 6, 0, F * 2)
    e("s_sub_u32 s30, s29, 7")
    e("s_mul_i32 s30, s30, 160")
    e(f"s_min_u32 s30, s30, {HS - 160}")
    e("s_add_u32 s18, s30, 1024")
    e("s_lshl_b32 s18, s18, 10")
    gB = Gemm("k1b", 4, 5, 2, 2, 8, 4, 1024, 1024, swap=True)
    vb = gB.vend
    vt = vb + 10
    e("s_and_b32 s23, s16, 1")
    e("s_mul_i32 s23, s23, 80")
    e("s_add_u32 s30, s30, s23")
    e("v_and_b32 v1, 63, v0")
    e("v_lshrrev_b32 v3, 4, v1")
    e("v_lshlrev_b32 v5, 3, v3")
    e("s_lshl_b32 s31, s30, 1")
    extra = [[f"buffer_load_dwordx2 v[{vb+2*tn}:{vb+2*tn+1}], v5, s[36:39], s31 offen offset:{32*tn}"] for tn in range(5)]
    gB.run(e, extra_loads=extra, pre_cons=pre_ws, post_prod=(lambda: ws_touch(e, "s2", PF1, "k1b")) if PF1 else None)
    e("s_waitcnt vmcnt(0)")
    e("v_and_b32 v1, 63, v0")
    e("v_and_b32 v2, 15, v1")
    e(f"v_mul_u32_u24 v2, {HS * 2}, v2")
    e("v_add_u32 v2, v2, v5")
    e("s_lshr_b32 s22, s16, 1")
    e("s_lshl_b32 s32, s28, 7")
    e("s_lshl_b32 s22, s22, 6")
    e("s_add_u32 s32, s32, s22")
    e(f"s_mul_i32 s32, s32, {HS * 2}")
    e("s_add_u32 s32, s32, s31")
    e(f"s_add_u32 s32, s32, {WS_H}")
    k1 = -2.0 * math.sqrt(2.0 / math.pi) * math.log2(math.e)
    k2 = k1 * 0.044715
    e(f"s_mov_b32 s34, {f32bits(k1):#x}")
    e(f"s_mov_b32 s35, {f32bits(k2):#x}")
    for tn in range(5):
        b = [vt + 0, vt + 1, vt + 2, vt + 3]
        e(f"v_lshlrev_b32 v{b[0]}, 16, v{vb+2*tn}")
        e(f"v_and_b32 v{b[1]}, 0xffff0000, v{vb+2*tn}")
        e(f"v_lshlrev_b32 v{b[2]}, 16, v{vb+2*tn+1}")
        e(f"v_and_b32 v{b[3]}, 0xffff0000, v{vb+2*tn+1}")
        for tm in range(4):
            a = gB.accreg(tm, tn)
            t = vt + 4
            q = [vt + 5, vt + 6, vt + 7, vt + 8]
            bf16r_pair(e, a, a + 1, t)
            bf16r_pair(e, a + 2, a + 3, t)
            for r in range(4):
                e(f"v_add_f32 v{a+r}, v{a+r}, v{b[r]}")
            bf16r_pair(e, a, a + 1, t)
            bf16r_pair(e, a + 2, a + 3, t)
            for r in range(4):
                e(f"v_mul_f32 v{q[r]}, v{a+r}, v{a+r}")
            for r in range(4):
                e(f"v_mov_b32 v{t}, s34")
                e(f"v_fma_f32 v{q[r]}, v{q[r]}, s35, v{t}")
            for r in range(4):
                e(f"v_mul_f32 v{q[r]}, v{q[r]}, v{a+r}")
            for r in range(4):
                e(f"v_exp_f32 v{q[r]}, v{q[r]}")
            e("s_nop 0")
            for r in range(4):
                e(f"v_add_f32 v{q[r]}, 1.0, v{q[r]}")
            for r in range(4):
                e(f"v_rcp_f32 v{q[r]}, v{q[r]}")
            e("s_nop 0")
            for r in range(4):
                e(f"v_mul_f32 v{q[r]}, v{q[r]}, v{a+r}")
            e(f"v_cvt_pk_bf16_f32 v{a}, v{q[0]}, v{q[1]}")
            e(f"v_cvt_pk_bf16_f32 v{a+1}, v{q[2]}, v{q[3]}")
            e(f"s_add_u32 s33, s32, {tm * 16 * HS * 2}")
            e(f"buffer_store_dwordx2 v[{a}:{a+1}], v2, s[24:27], s33 offen offset:{tn * 32}")
    stamp(e, 5); stamp_rt(e, 6); stamp_flush(e, 1, 7)
    e("L_k1_done:")
    e("s_endpgm")
    return max(gA.vend, vt + 9), max(gA.NS * gA.SS, gB.NS * gB.SS)


def gen_k2(e, name, NS=4):
    kernel_head(e, name)
    e("s_cmp_ge_u32 s2, 256")
    e("s_cbranch_scc1 L_k2_done")
    stamp_rt(e, 0)
    stamp(e, 1)
    e(f"s_load_dwordx2 s[4:5], s[0:1], {KA_WS}")
    e(f"s_load_dwordx4 s[40:43], s[0:1], {KA_WSRE}")
    e("v_lshrrev_b32 v1, 6, v0")
    e("s_nop 0")
    e("v_readfirstlane_b32 s16, v1")
    e("s_nop 3")
    e("s_lshr_b32 s53, s16, 2")
    e("s_and_b32 s16, s16, 3")
    e("s_and_b32 s28, s2, 7")
    e("s_lshr_b32 s31, s2, 3")
    e("s_and_b32 s30, s31, 3")
    e("s_lshr_b32 s31, s31, 2")
    e("s_waitcnt lgkmcnt(0)")
    srd(e, 24, 4, WS_PART, 8 << 20)
    e("s_cmp_ge_u32 s31, 6")
    e("s_cbranch_scc1 L_k2_g3")
    e("s_mul_i32 s28, s28, 6")
    e("s_add_u32 s28, s28, s31")
    e("s_and_b32 s29, s28, 15")
    e("s_lshr_b32 s28, s28, 4")
    srd(e, 8, 4, WS_ABT, 4 << 20)
    e("s_cmp_ge_u32 s28, 2")
    e("s_cselect_b32 s12, s42, s40")
    e("s_cselect_b32 s13, s43, s41")
    e(f"s_mov_b32 s14, {8 << 20}")
    e("s_mov_b32 s15, 0x20000")
    e("s_mul_i32 s22, s28, 21")
    e("s_min_u32 s23, s28, 1")
    e("s_add_u32 s22, s22, s23")
    e("s_sub_u32 s55, 22, s23")
    e("s_lshl_b32 s22, s22, 7")
    e("s_lshl_b32 s17, s30, 20")
    e("s_add_u32 s17, s17, s22")
    e("s_and_b32 s22, s22, 4095")
    e("s_lshl_b32 s18, s29, 19")
    e("s_add_u32 s18, s18, s22")
    e("s_cmp_eq_u32 s28, 1")
    e("s_cselect_b32 s54, 10, 1000")
    e("s_mov_b32 s56, 8192")
    e("s_mov_b32 s57, 4096")
    e("s_branch L_k2_go")
    e("L_k2_g3:")
    e("s_lshl_b32 s29, s28, 1")
    e("s_add_u32 s29, s29, s31")
    e("s_sub_u32 s29, s29, 6")
    e("s_mov_b32 s28, 3")
    srd(e, 8, 4, WS_W2T, 512 * HS * 2)
    srd(e, 12, 4, WS_H, 2048 * HS * 2)
    e(f"s_mul_i32 s17, s30, {128 * HS * 2}")
    e(f"s_mul_i32 s18, s29, {128 * HS * 2}")
    e("s_mov_b32 s55, 22")
    e("s_mov_b32 s54, 1000")
    e(f"s_mov_b32 s56, {HS * 2}")
    e(f"s_mov_b32 s57, {HS * 2}")
    e("L_k2_go:")
    g = Gemm("k2", 4, 4, 2, 2, 22, NS, 0, 0, dyn=True)
    g.run(e, pre_cons=(lambda: ws_touch(e, "s2", PF2, "k2")) if PF2 else None)
    e("v_and_b32 v1, 63, v0")
    e("v_lshlrev_b32 v2, 4, v1")
    e("s_lshr_b32 s22, s16, 1")
    e("s_and_b32 s23, s16, 1")
    e("s_lshl_b32 s31, s28, 5")
    e("s_lshl_b32 s32, s30, 3")
    e("s_add_u32 s31, s31, s32")
    e("s_lshl_b32 s22, s22, 2")
    e("s_add_u32 s31, s31, s22")
    e("s_lshl_b32 s31, s31, 6")
    e("s_lshl_b32 s32, s29, 2")
    e("s_add_u32 s31, s31, s32")
    e("s_lshl_b32 s23, s23, 1")
    e("s_add_u32 s31, s31, s23")
    e("s_lshl_b32 s31, s31, 10")
    for tm in range(4):
        e(f"s_add_u32 s32, s31, {tm * 64 * 1024}")
        for tp in range(2):
            a = g.accreg(tm, 2 * tp)
            for i in range(4):
                e(f"v_cvt_pk_bf16_f32 v{a+i}, v{a+2*i}, v{a+2*i+1}")
            e(f"buffer_store_dwordx4 v[{a}:{a+3}], v2, s[24:27], s32 offen offset:{tp * 1024}")
    stamp(e, 5); stamp_rt(e, 6); stamp_flush(e, 2, 7)
    e("L_k2_done:")
    e("s_endpgm")
    return g.vend, g.NS * g.SS


K3_WGS = 512


def gen_k3(e, name):
    kernel_head(e, name)
    e(f"s_cmp_ge_u32 s2, {K3_WGS}")
    e("s_cbranch_scc1 L_k3_done")
    stamp_rt(e, 0)
    stamp(e, 1)
    e(f"s_load_dwordx2 s[4:5], s[0:1], {KA_WS}")
    e(f"s_load_dwordx2 s[6:7], s[0:1], {KA_X}")
    e(f"s_load_dwordx4 s[40:43], s[0:1], {KA_B2}")
    e("v_lshrrev_b32 v1, 6, v0")
    e("v_and_b32 v2, 63, v0")
    e("s_nop 0")
    e("v_readfirstlane_b32 s16, v1")
    e("v_lshlrev_b32 v5, 4, v2")
    e("v_and_b32 v3, 15, v2")
    e("v_lshrrev_b32 v4, 4, v2")
    e("v_lshlrev_b32 v6, 3, v4")
    e("v_lshlrev_b32 v7, 10, v3")
    e("v_add_u32 v7, v7, v6")
    e("s_lshl_b32 s28, s2, 2")
    e("s_add_u32 s28, s28, s16")
    e("s_and_b32 s29, s28, 31")
    e("s_lshr_b32 s30, s28, 5")
    e("s_lshl_b32 s48, s29, 6")
    e("s_add_u32 s48, s48, s30")
    e("s_lshl_b32 s48, s48, 10")
    e("s_lshl_b32 s49, s29, 5")
    e("s_lshl_b32 s50, s30, 15")
    e("s_add_u32 s50, s50, s49")
    e("s_waitcnt lgkmcnt(0)")
    srd(e, 24, 4, WS_PART, 8 << 20)
    srd(e, 32, 6, 0, 2 << 20)
    srd(e, 36, 40, 0, 1024)
    srd(e, 44, 42, 0, 2 << 20)
    for sl in (3, 0, 1, 2):
        e(f"s_add_u32 s51, s48, {sl * 32 * 64 * 1024}")
        e(f"buffer_load_dwordx4 v[{8+4*sl}:{11+4*sl}], v5, s[24:27], s51 offen")
        if sl == 3:
            e("buffer_load_dwordx2 v[24:25], v6, s[36:39], s49 offen")
    e("s_add_u32 s51, s50, 16384")
    e("buffer_load_dwordx2 v[26:27], v7, s[32:35], s50 offen")
    e("buffer_load_dwordx2 v[28:29], v7, s[32:35], s51 offen")
    nl2e = -math.log2(math.e)
    e(f"s_mov_b32 s52, {f32bits(nl2e):#x}")
    b = [30, 31, 32, 33]
    t = 34
    z = list(range(36, 44))
    q = list(range(44, 52))
    p0 = list(range(52, 60))
    p1 = list(range(60, 68))
    e("s_waitcnt vmcnt(5)")
    stamp(e, 2)
    e(f"v_lshlrev_b32 v{b[0]}, 16, v24")
    e(f"v_and_b32 v{b[1]}, 0xffff0000, v24")
    e(f"v_lshlrev_b32 v{b[2]}, 16, v25")
    e(f"v_and_b32 v{b[3]}, 0xffff0000, v25")
    for i in range(4):
        e(f"v_lshlrev_b32 v{z[2*i]}, 16, v{20+i}")
        e(f"v_and_b32 v{z[2*i+1]}, 0xffff0000, v{20+i}")
    for i in range(8):
        e(f"v_add_f32 v{z[i]}, v{z[i]}, v{b[i%4]}")
    for i in range(0, 8, 2):
        bf16r_pair(e, z[i], z[i + 1], t)
    for i in range(8):
        e(f"v_mul_f32 v{q[i]}, s52, v{z[i]}")
    for i in range(8):
        e(f"v_exp_f32 v{q[i]}, v{q[i]}")
    e("s_nop 0")
    for i in range(8):
        e(f"v_add_f32 v{q[i]}, 1.0, v{q[i]}")
    for i in range(8):
        e(f"v_rcp_f32 v{q[i]}, v{q[i]}")
    e("s_nop 0")
    for i in range(8):
        e(f"v_mul_f32 v{z[i]}, v{q[i]}, v{z[i]}")
    for i in range(0, 8, 2):
        bf16r_pair(e, z[i], z[i + 1], t)
    e("s_waitcnt vmcnt(2)")
    for i in range(4):
        e(f"v_lshlrev_b32 v{p0[2*i]}, 16, v{8+i}")
        e(f"v_and_b32 v{p0[2*i+1]}, 0xffff0000, v{8+i}")
        e(f"v_lshlrev_b32 v{p1[2*i]}, 16, v{12+i}")
        e(f"v_and_b32 v{p1[2*i+1]}, 0xffff0000, v{12+i}")
        e(f"v_lshlrev_b32 v{q[2*i]}, 16, v{16+i}")
        e(f"v_and_b32 v{q[2*i+1]}, 0xffff0000, v{16+i}")
    for i in range(8):
        e(f"v_add_f32 v{p0[i]}, v{p0[i]}, v{p1[i]}")
    for i in range(8):
        e(f"v_add_f32 v{p0[i]}, v{p0[i]}, v{q[i]}")
    for i in range(0, 8, 2):
        bf16r_pair(e, p0[i], p0[i + 1], t)
    for i in range(8):
        e(f"v_mul_f32 v{z[i]}, v{z[i]}, v{p0[i]}")
    for i in range(0, 8, 2):
        bf16r_pair(e, z[i], z[i + 1], t)
    e("s_waitcnt vmcnt(0)")
    for i in range(4):
        e(f"v_lshlrev_b32 v{q[2*i]}, 16, v{26+i}")
        e(f"v_and_b32 v{q[2*i+1]}, 0xffff0000, v{26+i}")
    for i in range(8):
        e(f"v_add_f32 v{z[i]}, v{z[i]}, v{q[i]}")
    for i in range(4):
        e(f"v_cvt_pk_bf16_f32 v{8+i}, v{z[2*i]}, v{z[2*i+1]}")
    e("buffer_store_dwordx2 v[8:9], v7, s[44:47], s50 offen")
    e("buffer_store_dwordx2 v[10:11], v7, s[44:47], s51 offen")
    stamp(e, 3); stamp(e, 4); stamp(e, 5); stamp_rt(e, 6); stamp_flush(e, 3, 7)
    e("L_k3_done:")
    e("s_endpgm")
    return 68, 0


def main(out):
    e = E()
    n0, n1, n2, n3 = "fnet_k0_kernel", "fnet_k1_kernel", "fnet_k2_kernel", "fnet_k3_kernel"
    v0 = gen_k0(e, n0)
    v1, l1 = gen_k1(e, n1)
    v2, l2 = gen_k2(e, n2)
    v3, l3 = gen_k3(e, n3)
    hdr = open("cdna_kernels/" + NAME + ".s.ref").read().split("; Override launch geometry")[0]
    s = hdr
    s += f"; @launch kernel={n0} grid=({K0_WGS},1,1) block=(256,1,1) lds=0\n"
    s += f"; @launch kernel={n1} grid=(256,1,1) block=(512,1,1) lds={l1}\n"
    s += f"; @launch kernel={n2} grid=(256,1,1) block=(512,1,1) lds={l2}\n"
    s += f"; @launch kernel={n3} grid=({K3_WGS},1,1) block=(256,1,1) lds={l3}\n"
    s += '.amdgcn_target "amdgcn-amd-amdhsa--gfx950"\n.text\n'
    s += e.text()
    s += '.section .rodata,"a"\n'
    for n, v in ((n0, v0), (n1, v1), (n2, v2), (n3, v3)):
        s += ".p2align 6\n" + kdesc(n, v)
    open(out, "w").write(s)
    print("vgprs", v0, v1, v2, v3, "lds", l1, l2, l3)


if __name__ == "__main__":
    if len(sys.argv) > 2 and sys.argv[2] == "instr":
        INSTR = True
    main(sys.argv[1] if len(sys.argv) > 1 else "cdna_kernels/" + NAME + ".s")
```

```python
import sys, math, os
EXP = os.environ.get('EXP', '')

NAME = "recurrent_scan__spectral_fnet__mixer_channel_mlp__prompt"

WS_XN = 0
WS_Y2 = 2 << 20
WS_WCAT = 4 << 20
WS_W2T = 8 << 20
WS_ABT = 10 << 20
WS_H = 16 << 20
WS_PART = 32 << 20
HS = 1408
F = 1376

KA_X, KA_WSRE, KA_WSIM, KA_WDRE, KA_WDIM, KA_BX, KA_W1, KA_B1, KA_W2, KA_B2, KA_OUT, KA_DBG, KA_WS = [8 * i for i in range(13)]


INSTR = False
ROT = False
TOUCH1 = int(os.environ.get('TOUCH1', '0'))
TOUCH2 = int(os.environ.get('TOUCH2', '1'))
TOUCH3 = int(os.environ.get('TOUCH3', '0'))
WS_DBG = 100 << 20
K3_SKIP = int(os.environ.get('K3_SKIP', '2'))


def stamp(e, k):
    if INSTR:
        e(f"s_memtime s[{70 + 2 * k}:{71 + 2 * k}]")


def stamp_rt(e, k):
    if INSTR:
        e(f"s_memrealtime s[{70 + 2 * k}:{71 + 2 * k}]")


def stamp_flush(e, kidx, n, wsbase=4):
    if not INSTR:
        return
    e("s_waitcnt lgkmcnt(0)")
    e(f"s_add_u32 s96, s{wsbase}, {WS_DBG + kidx * (1 << 18)}")
    e(f"s_addc_u32 s97, s{wsbase + 1}, 0")
    e(f"s_mov_b32 s98, {1 << 18}")
    e("s_mov_b32 s99, 0x20000")
    e("s_lshl_b32 s100, s2, 2")
    e("s_add_u32 s100, s100, s16")
    e("s_lshl_b32 s100, s100, 6")
    e("v_mov_b32 v1, 0")
    for k in range(n):
        e(f"v_mov_b32 v2, s{70 + 2 * k}")
        e(f"buffer_store_dword v2, v1, s[96:99], s100 offen offset:{4 * k}")


class E:
    def __init__(self):
        self.L = []

    def __call__(self, s):
        for line in s.split("\n"):
            line = line.strip()
            if line:
                self.L.append(("    " if not line.endswith(":") else "") + line)

    def text(self):
        return "\n".join(self.L) + "\n"


def f32bits(x):
    import struct
    return struct.unpack("<I", struct.pack("<f", x))[0]


def srd(e, d, base, off, nbytes):
    if off:
        e(f"s_add_u32 s{d}, s{base}, {off}")
        e(f"s_addc_u32 s{d+1}, s{base+1}, 0")
    else:
        e(f"s_mov_b32 s{d}, s{base}")
        e(f"s_mov_b32 s{d+1}, s{base+1}")
    e(f"s_mov_b32 s{d+2}, {nbytes}")
    e(f"s_mov_b32 s{d+3}, 0x20000")


def kernel_head(e, name):
    e(f".globl {name}")
    e(".p2align 8")
    e(f".type {name},@function")
    e(f"{name}:")


def kdesc(name, vgpr, sgpr=102):
    v = (vgpr + 3) // 4 * 4
    return f""".amdhsa_kernel {name}
  .amdhsa_next_free_vgpr {v}
  .amdhsa_next_free_sgpr {sgpr}
  .amdhsa_accum_offset {v}
  .amdhsa_group_segment_fixed_size 0
  .amdhsa_kernarg_size 104
  .amdhsa_user_sgpr_count 2
  .amdhsa_user_sgpr_kernarg_segment_ptr 1
  .amdhsa_system_sgpr_workgroup_id_x 1
.end_amdhsa_kernel
"""


CODEPF = int(os.environ.get('CODEPF', '0'))


def code_touch(e, tag, lo, hi, vt=40):
    e("s_getpc_b64 s[64:65]")
    e(f"L_{tag}_pc:")
    e(f"s_add_u32 s64, s64, {lo}-L_{tag}_pc")
    e("s_addc_u32 s65, s65, 0")
    e(f"v_and_b32 v{vt}, 255, v0")
    e(f"v_lshlrev_b32 v{vt}, 7, v{vt}")
    e(f"v_min_u32 v{vt}, {hi}-{lo}-4, v{vt}")
    e(f"global_load_dword v{vt+1}, v{vt}, s[64:65]")


def ws_touch(e, idreg, groups, tag, sw="s16", sre=40, sd=44):
    e(f"s_lshr_b32 s22, {idreg}, 3")
    e("s_cmp_ge_u32 s22, 24")
    e(f"s_cbranch_scc1 L_{tag}_notouch")
    srd(e, sd, sre, 0, 8 << 20)
    srd(e, sd + 4, sre + 2, 0, 8 << 20)
    e(f"s_and_b32 s23, {idreg}, 7")
    e("s_mul_i32 s23, s23, 6")
    e("s_lshr_b32 s31, s22, 2")
    e("s_add_u32 s23, s23, s31")
    e("s_and_b32 s22, s22, 3")
    e("s_lshl_b32 s22, s22, 2")
    e(f"s_add_u32 s22, s22, {sw}")
    e("s_lshl_b32 s22, s22, 3")
    e("s_and_b32 s31, s23, 15")
    e("s_lshl_b32 s31, s31, 7")
    e("s_add_u32 s22, s22, s31")
    e("s_lshr_b32 s23, s23, 4")
    e("s_mul_i32 s31, s23, 21")
    e("s_min_u32 s32, s23, 1")
    e("s_add_u32 s31, s31, s32")
    e("s_sub_u32 s32, 22, s32")
    e("s_add_u32 s32, s32, s31")
    e("v_and_b32 v1, 63, v0")
    e("v_lshrrev_b32 v2, 3, v1")
    e("v_add_u32 v2, s22, v2")
    e("v_lshlrev_b32 v2, 12, v2")
    e("v_and_b32 v3, 7, v1")
    e("v_add_u32 v3, s31, v3")
    e("v_mov_b32 v7, -1")
    for i in groups:
        e(f"v_add_u32 v4, {8 * i}, v3")
        e("v_lshl_add_u32 v5, v4, 7, v2")
        e("v_cmp_gt_u32 vcc, s32, v4")
        e("v_cndmask_b32 v5, v7, v5, vcc")
        e("v_add_u32 v6, 0xfffff000, v5")
        e("v_cndmask_b32 v6, v7, v6, vcc")
        e("v_cmp_gt_u32 vcc, 32, v4")
        e("v_cndmask_b32 v5, v7, v5, vcc")
        e("v_cndmask_b32 v6, v6, v7, vcc")
        e(f"buffer_load_dword v8, v5, s[{sd}:{sd+3}], 0 offen")
        e(f"buffer_load_dword v8, v6, s[{sd+4}:{sd+7}], 0 offen")
    e(f"L_{tag}_notouch:")


def wave_reduce(e, regs, sbase):
    for ctl in ("quad_perm:[1,0,3,2]", "quad_perm:[2,3,0,1]", "row_half_mirror", "row_mirror"):
        e("s_nop 1")
        for r in regs:
            e(f"v_add_f32_dpp v{r}, v{r}, v{r} {ctl} row_mask:0xf bank_mask:0xf")
    e("s_nop 1")
    for i, r in enumerate(regs):
        for j in range(4):
            e(f"v_readlane_b32 s{sbase + 4 * i + j}, v{r}, {16 * j}")
    e("s_nop 1")
    for i, r in enumerate(regs):
        e(f"v_mov_b32 v{r}, s{sbase + 4 * i}")
        for j in range(1, 4):
            e(f"v_add_f32 v{r}, s{sbase + 4 * i + j}, v{r}")


def bf16r_scalar(e, r):
    e(f"v_cvt_pk_bf16_f32 v{r}, v{r}, v{r}")
    e(f"v_lshlrev_b32 v{r}, 16, v{r}")


def ln_pass(e, Fr, T, P):
    rows = range(len(Fr))
    for R in rows:
        f, t = Fr[R], T[R]
        e(f"v_add_f32 v{t[0]}, v{f[0]}, v{f[1]}")
        for i in range(2, 8):
            e(f"v_add_f32 v{t[0]}, v{t[0]}, v{f[i]}")
    wave_reduce(e, [T[R][0] for R in rows], 40)
    for R in rows:
        f, t = Fr[R], T[R]
        e(f"v_mul_f32 v{t[0]}, {f32bits(1.0/512):#x}, v{t[0]}")
        e(f"v_sub_f32 v{t[2]}, v{f[0]}, v{t[0]}")
        e(f"v_mul_f32 v{t[1]}, v{t[2]}, v{t[2]}")
        for i in range(1, 8):
            e(f"v_sub_f32 v{t[2]}, v{f[i]}, v{t[0]}")
            e(f"v_fmac_f32 v{t[1]}, v{t[2]}, v{t[2]}")
    wave_reduce(e, [T[R][1] for R in rows], 40)
    for R in rows:
        f, t = Fr[R], T[R]
        e(f"v_mul_f32 v{t[1]}, {f32bits(1.0/512):#x}, v{t[1]}")
        bf16r_scalar(e, t[0])
        bf16r_scalar(e, t[1])
        e(f"v_add_f32 v{t[1]}, {f32bits(1e-5):#x}, v{t[1]}")
        bf16r_scalar(e, t[1])
        e(f"v_sqrt_f32 v{t[1]}, v{t[1]}")
        e("s_nop 0")
        bf16r_scalar(e, t[1])
        e(f"v_rcp_f32 v{t[2]}, v{t[1]}")
        e("s_nop 0")
        for i in range(0, 8, 2):
            e(f"v_sub_f32 v{f[i]}, v{f[i]}, v{t[0]}")
            e(f"v_sub_f32 v{f[i+1]}, v{f[i+1]}, v{t[0]}")
            e(f"v_cvt_pk_bf16_f32 v{t[3]}, v{f[i]}, v{f[i+1]}")
            e(f"v_lshlrev_b32 v{f[i]}, 16, v{t[3]}")
            e(f"v_and_b32 v{f[i+1]}, 0xffff0000, v{t[3]}")
            for j in (i, i + 1):
                e(f"v_mul_f32 v{t[3]}, v{f[j]}, v{t[2]}")
                e(f"v_fma_f32 v{t[4]}, -v{t[3]}, v{t[1]}, v{f[j]}")
                e(f"v_fma_f32 v{f[j]}, v{t[4]}, v{t[2]}, v{t[3]}")
            e(f"v_cvt_pk_bf16_f32 v{P[R][i//2]}, v{f[i]}, v{f[i+1]}")
            e(f"v_lshlrev_b32 v{f[i]}, 16, v{P[R][i//2]}")
            e(f"v_and_b32 v{f[i+1]}, 0xffff0000, v{P[R][i//2]}")


K0_LN, K0_T1, K0_T2, K0_CP = 256, 88, 88, 32
PF0 = [int(c) for c in os.environ.get('PF0', '')]
PF1 = [int(c) for c in os.environ.get('PF1', '')]
PF2 = [int(c) for c in os.environ.get('PF2', '')]
K0_PF = 192 if PF0 else 0
K0_WGS = K0_LN + K0_T1 + K0_T2 + K0_CP + K0_PF


def gen_k0(e, name):
    kernel_head(e, name)
    e(f"s_cmp_ge_u32 s2, {K0_WGS}")
    e(f"s_cbranch_scc1 L_k0_done")
    stamp_rt(e, 0); stamp(e, 1)
    e(f"s_load_dwordx2 s[4:5], s[0:1], {KA_X}")
    e(f"s_load_dwordx2 s[6:7], s[0:1], {KA_WS}")
    e(f"s_load_dwordx4 s[8:11], s[0:1], {KA_WDRE}")
    e(f"s_load_dwordx2 s[12:13], s[0:1], {KA_W1}")
    e(f"s_load_dwordx2 s[14:15], s[0:1], {KA_W2}")
    e("v_lshrrev_b32 v1, 6, v0")
    e("v_and_b32 v2, 63, v0")
    e("s_nop 0")
    e("v_readfirstlane_b32 s16, v1")
    e("s_waitcnt lgkmcnt(0)")
    srd(e, 24, 6, 0, 64 << 20)
    e(f"s_cmp_ge_u32 s2, {K0_LN}")
    e("s_cbranch_scc1 L_k0_notln")
    srd(e, 20, 4, 0, 2 << 20)
    e("s_lshl_b32 s17, s2, 3")
    e("s_lshl_b32 s18, s16, 1")
    e("s_add_u32 s17, s17, s18")
    e("s_lshl_b32 s17, s17, 10")
    e("v_lshlrev_b32 v3, 4, v2")
    e("v_add_u32 v3, s17, v3")
    e("buffer_load_dwordx4 v[4:7], v3, s[20:23], 0 offen")
    e("buffer_load_dwordx4 v[8:11], v3, s[20:23], 0 offen offset:1024")
    Fr = [list(range(16, 24)), list(range(24, 32))]
    T = [list(range(32, 38)), list(range(38, 44))]
    P = [list(range(44, 48)), list(range(48, 52))]
    e("s_waitcnt vmcnt(0)")
    stamp(e, 2)
    for R in range(2):
        for i in range(4):
            e(f"v_lshlrev_b32 v{Fr[R][2*i]}, 16, v{4+4*R+i}")
            e(f"v_and_b32 v{Fr[R][2*i+1]}, 0xffff0000, v{4+4*R+i}")
    ln_pass(e, Fr, T, P)
    e("buffer_store_dwordx4 v[44:47], v3, s[24:27], 0 offen")
    e("buffer_store_dwordx4 v[48:51], v3, s[24:27], 0 offen offset:1024")
    P2 = [list(range(52, 56)), list(range(56, 60))]
    ln_pass(e, Fr, T, P2)
    e(f"s_mov_b32 s17, {WS_Y2}")
    e("buffer_store_dwordx4 v[52:55], v3, s[24:27], s17 offen")
    e("buffer_store_dwordx4 v[56:59], v3, s[24:27], s17 offen offset:1024")
    stamp(e, 3); stamp(e, 4); stamp(e, 5); stamp_rt(e, 6); stamp_flush(e, 0, 7, wsbase=6)
    e("s_endpgm")
    e("L_k0_notln:")
    e(f"s_cmp_ge_u32 s2, {K0_LN + K0_T1}")
    e("s_cbranch_scc1 L_k0_nott1")
    srd(e, 20, 12, 0, 512 * F * 2)
    e(f"s_sub_u32 s17, s2, {K0_LN}")
    e("s_lshl_b32 s17, s17, 2")
    e("s_add_u32 s17, s17, s16")
    e("s_lshr_b32 s18, s17, 4")
    e("s_and_b32 s19, s17, 15")
    e("s_lshl_b32 s18, s18, 6")
    e("v_add_u32 v3, s18, v2")
    e("v_lshlrev_b32 v20, 1, v3")
    e(f"s_mul_i32 s28, s19, {32 * F * 2}")
    for i in range(32):
        e(f"buffer_load_ushort v{24 + i}, v20, s[20:23], s28 offen")
        if i != 31:
            e(f"s_add_u32 s28, s28, {F * 2}")
    e("v_lshlrev_b32 v21, 10, v3")
    e("s_lshl_b32 s19, s19, 6")
    e(f"s_add_u32 s19, s19, {WS_WCAT + 1024 * 1024}")
    e(f"v_cmp_gt_u32 vcc, {F}, v3")
    e("s_and_saveexec_b64 s[30:31], vcc")
    e("s_cbranch_execz L_k0_done")
    e("s_waitcnt vmcnt(0)")
    stamp(e, 2)
    for i in range(16):
        e(f"v_lshl_or_b32 v{4 + i}, v{25 + 2 * i}, 16, v{24 + 2 * i}")
    for i in range(4):
        e(f"buffer_store_dwordx4 v[{4+4*i}:{7+4*i}], v21, s[24:27], s19 offen offset:{16*i}")
    stamp(e, 3); stamp(e, 4); stamp(e, 5); stamp_rt(e, 6); stamp_flush(e, 0, 7, wsbase=6)
    e("s_endpgm")
    e("L_k0_nott1:")
    e(f"s_cmp_ge_u32 s2, {K0_LN + K0_T1 + K0_T2}")
    e("s_cbranch_scc1 L_k0_cp")
    srd(e, 20, 14, 0, F * 512 * 2)
    e(f"s_sub_u32 s17, s2, {K0_LN + K0_T1}")
    e("s_lshl_b32 s17, s17, 2")
    e("s_add_u32 s17, s17, s16")
    e("s_and_b32 s18, s17, 7")
    e("s_lshr_b32 s19, s17, 3")
    e("s_lshl_b32 s18, s18, 6")
    e("v_add_u32 v3, s18, v2")
    e("v_lshlrev_b32 v20, 1, v3")
    e("s_lshl_b32 s28, s19, 15")
    for i in range(32):
        e(f"buffer_load_ushort v{24 + i}, v20, s[20:23], s28 offen")
        if i != 31:
            e(f"s_add_u32 s28, s28, 1024")
    e(f"v_mul_u32_u24 v21, {HS * 2}, v3")
    e("s_lshl_b32 s19, s19, 6")
    e(f"s_add_u32 s19, s19, {WS_W2T}")
    e("s_waitcnt vmcnt(0)")
    stamp(e, 2)
    for i in range(16):
        e(f"v_lshl_or_b32 v{4 + i}, v{25 + 2 * i}, 16, v{24 + 2 * i}")
    for i in range(4):
        e(f"buffer_store_dwordx4 v[{4+4*i}:{7+4*i}], v21, s[24:27], s19 offen offset:{16*i}")
    stamp(e, 3); stamp(e, 4); stamp(e, 5); stamp_rt(e, 6); stamp_flush(e, 0, 7, wsbase=6)
    e("s_endpgm")
    e("L_k0_cp:")
    if PF0:
        e(f"s_cmp_lt_u32 s2, {K0_WGS - K0_PF}")
        e("s_cbranch_scc1 L_k0_cp2")
        e(f"s_load_dwordx4 s[40:43], s[0:1], {KA_WSRE}")
        e(f"s_sub_u32 s30, s2, {K0_WGS - K0_PF}")
        e("s_waitcnt lgkmcnt(0)")
        ws_touch(e, "s30", PF0, "k0")
        e("s_endpgm")
        e("L_k0_cp2:")
    if CODEPF:
        code_touch(e, "k0c", "fnet_k1_kernel", "L_k3_done")
    e(f"s_sub_u32 s17, s2, {K0_LN + K0_T1 + K0_T2}")
    e("s_lshl_b32 s17, s17, 2")
    e("s_add_u32 s17, s17, s16")
    e("s_cmp_ge_u32 s17, 64")
    e("s_cselect_b32 s20, s10, s8")
    e("s_cselect_b32 s21, s11, s9")
    e(f"s_mov_b32 s22, {512 * 1024}")
    e("s_mov_b32 s23, 0x20000")
    e("s_and_b32 s18, s17, 63")
    e("s_lshl_b32 s18, s18, 13")
    e("s_lshl_b32 s19, s17, 13")
    e(f"s_add_u32 s19, s19, {WS_WCAT}")
    e("v_lshlrev_b32 v3, 4, v2")
    for i in range(8):
        if i == 4:
            e("s_add_u32 s18, s18, 4096")
        e(f"buffer_load_dwordx4 v[{4+4*i}:{7+4*i}], v3, s[20:23], s18 offen offset:{1024*(i%4)}")
    e("s_waitcnt vmcnt(0)")
    for i in range(8):
        if i == 4:
            e("s_add_u32 s19, s19, 4096")
        e(f"buffer_store_dwordx4 v[{4+4*i}:{7+4*i}], v3, s[24:27], s19 offen offset:{1024*(i%4)}")
    e("L_k0_done:")
    e("s_endpgm")
    return 64


class Gemm:
    def __init__(self, tag, TM, TN, WM, WN, nsteps, NS, strideP, strideQ, swap=False, vbase=16, dyn=False):
        self.tag = tag
        self.dyn = dyn
        self.TM, self.TN, self.WM, self.WN = TM, TN, WM, WN
        self.PR, self.QR = WM * TM * 16, WN * TN * 16
        self.nsteps, self.NS = nsteps, NS
        self.sP, self.sQ = strideP, strideQ
        self.swap = swap
        self.SS = (self.PR + self.QR) * 128
        assert (self.PR // 8) % 4 == 0 and (self.QR // 8) % 4 == 0
        self.DP, self.DQ = self.PR // 32, self.QR // 32
        self.D = self.DP + self.DQ
        v = vbase
        self.vDP, self.vDQ, self.vP0b, self.vP1b, self.vQ0b, self.vQ1b = range(v, v + 6)
        self.vPa0, self.vPa1, self.vQa0, self.vQa1 = range(v + 6, v + 10)
        v = (v + 10 + 3) // 4 * 4
        self.fP = [v, v + 4 * (TM + TN)]
        self.fQ = [v + 4 * TM, v + 4 * (TM + TN) + 4 * TM]
        v += 8 * (TM + TN)
        self.acc = v
        self.vend = v + 4 * TM * TN

    def accreg(self, tm, tn):
        return self.acc + 4 * (tm * self.TN + tn)

    def setup_prod(self, e):
        g = self
        e("v_and_b32 v1, 63, v0")
        e("v_lshrrev_b32 v2, 3, v1")
        e("v_lshrrev_b32 v3, 4, v1")
        e("s_and_b32 s22, s16, 1")
        e("s_lshl_b32 s22, s22, 2")
        e("v_add_u32 v3, s22, v3")
        e("v_and_b32 v4, 7, v1")
        e("v_xor_b32 v3, v3, v4")
        e("v_lshlrev_b32 v3, 4, v3")
        e("s_lshl_b32 s22, s16, 3")
        e("v_add_u32 v2, s22, v2")
        if g.dyn:
            e(f"v_mul_lo_u32 v4, v2, s56")
            e(f"v_add_u32 v{g.vDP}, v4, v3")
            e(f"v_mul_lo_u32 v4, v2, s57")
            e(f"v_add_u32 v{g.vDQ}, v4, v3")
            for jj in range(1, g.DP):
                e(f"s_mul_i32 s{57 + jj}, s56, {32 * jj}")
            for jj in range(1, g.DQ):
                e(f"s_mul_i32 s{61 + jj}, s57, {32 * jj}")
        else:
            e(f"s_mov_b32 s22, {g.sP}")
            e(f"v_mul_lo_u32 v4, v2, s22")
            e(f"v_add_u32 v{g.vDP}, v4, v3")
            e(f"s_mov_b32 s22, {g.sQ}")
            e(f"v_mul_lo_u32 v4, v2, s22")
            e(f"v_add_u32 v{g.vDQ}, v4, v3")
        e("s_lshl_b32 s19, s16, 10")
        if ROT:
            m = 1
            while m * 2 <= g.nsteps:
                m *= 2
            e("s_lshr_b32 s22, s2, 3")
            e(f"s_and_b32 s22, s22, {m - 1}")
            e(f"s_sub_u32 s54, {g.nsteps}, s22")
            e("s_lshl_b32 s22, s22, 7")
            e("s_add_u32 s17, s17, s22")
            e("s_add_u32 s18, s18, s22")

    def setup_cons(self, e):
        g = self
        e("v_and_b32 v1, 63, v0")
        e("v_and_b32 v2, 15, v1")
        e("v_lshrrev_b32 v3, 1, v2")
        e("v_lshrrev_b32 v4, 4, v1")
        e("v_xor_b32 v3, v3, v4")
        e("v_lshlrev_b32 v3, 4, v3")
        e("v_lshlrev_b32 v2, 7, v2")
        e("v_add_u32 v2, v2, v3")
        if g.WN == 2:
            e("s_lshr_b32 s22, s16, 1")
            e("s_and_b32 s23, s16, 1")
        elif g.WN == 1:
            e("s_mov_b32 s22, s16")
            e("s_mov_b32 s23, 0")
        elif g.WN == 4:
            e("s_mov_b32 s22, 0")
            e("s_mov_b32 s23, s16")
        e(f"s_mul_i32 s22, s22, {g.TM * 2048}")
        e(f"s_mul_i32 s23, s23, {g.TN * 2048}")
        e(f"s_add_u32 s23, s23, {g.PR * 128}")
        e(f"v_add_u32 v{g.vP0b}, s22, v2")
        e(f"v_xor_b32 v{g.vP1b}, 64, v{g.vP0b}")
        e(f"v_add_u32 v{g.vQ0b}, s23, v2")
        e(f"v_xor_b32 v{g.vQ1b}, 64, v{g.vQ0b}")
        e("s_mov_b32 s20, 0")

    def dma_ops(self):
        g = self
        ops = []
        for j in range(g.D):
            isP = j < g.DP
            jj = j if isP else j - g.DP
            stride = g.sP if isP else g.sQ
            sk = "s17" if isP else "s18"
            sr = "s[8:11]" if isP else "s[12:15]"
            vd = g.vDP if isP else g.vDQ
            grp = [f"s_add_u32 m0, s19, {j * 4096}"]
            if jj == 0:
                grp.append("s_nop 0")
                grp.append(f"buffer_load_dwordx4 v{vd}, {sr}, {sk} offen lds")
            else:
                if g.dyn:
                    grp.append(f"s_add_u32 s22, {sk}, s{(57 if isP else 61) + jj}")
                else:
                    grp.append(f"s_add_u32 s22, {sk}, {jj * 32 * stride}")
                grp.append(f"buffer_load_dwordx4 v{vd}, {sr}, s22 offen lds")
            ops.append(grp)
        adv = ["s_add_u32 s17, s17, 128", "s_add_u32 s18, s18, 128",
               f"s_add_u32 s19, s19, {g.SS}", f"s_sub_u32 s22, s19, {g.NS * g.SS}",
               f"s_cmp_ge_u32 s19, {g.NS * g.SS}", "s_cselect_b32 s19, s22, s19"]
        if ROT:
            adv += ["s_sub_u32 s54, s54, 1", "s_cmp_eq_u32 s54, 0",
                    f"s_cselect_b32 s22, {g.nsteps * 128}, 0",
                    "s_sub_u32 s17, s17, s22", "s_sub_u32 s18, s18, s22"]
        if g.dyn:
            adv += ["s_sub_u32 s54, s54, 1", "s_cmp_eq_u32 s54, 0",
                    "s_cselect_b32 s12, s42, s12", "s_cselect_b32 s13, s43, s13",
                    "s_cselect_b32 s22, 4096, 0", "s_sub_u32 s18, s18, s22"]
        ops.append(adv)
        return ops

    def frag_reads(self, st):
        g = self
        va, vq = (g.vPa0, g.vQa0) if st == 0 else (g.vPa1, g.vQa1)
        ops = []
        for i in range(max(g.TM, g.TN)):
            if i < g.TM:
                r = g.fP[st] + 4 * i
                ops.append([f"ds_read_b128 v[{r}:{r+3}], v{va} offset:{i * 2048}"])
            if i < g.TN:
                r = g.fQ[st] + 4 * i
                ops.append([f"ds_read_b128 v[{r}:{r+3}], v{vq} offset:{i * 2048}"])
        return ops

    def mfmas(self, st):
        g = self
        ops = []
        if EXP == "E2" and g.tag == "k2":
            return ["s_nop 0"]
        for tm in range(g.TM):
            for tn in range(g.TN):
                a = g.accreg(tm, tn)
                p = g.fP[st] + 4 * tm
                q = g.fQ[st] + 4 * tn
                if g.swap:
                    p, q = q, p
                ops.append(f"v_mfma_f32_16x16x32_bf16 v[{a}:{a+3}], v[{p}:{p+3}], v[{q}:{q+3}], v[{a}:{a+3}]")
        return ops

    @staticmethod
    def interleave(e, mf, fillers):
        n = len(mf)
        k = len(fillers)
        fi = 0
        for i, m in enumerate(mf):
            e(m)
            want = min(k, -(-(i + 1) * k // n)) if k > n else min(k, i + 1)
            while fi < want:
                for ins in fillers[fi]:
                    e(ins)
                fi += 1
        while fi < k:
            for ins in fillers[fi]:
                e(ins)
            fi += 1

    def step(self, e, last):
        g = self
        e(f"v_add_u32 v{g.vPa1}, s20, v{g.vP1b}")
        e(f"v_add_u32 v{g.vQa1}, s20, v{g.vQ1b}")
        e(f"s_add_u32 s20, s20, {g.SS}")
        e(f"s_cmp_eq_u32 s20, {g.NS * g.SS}")
        e("s_cselect_b32 s20, 0, s20")
        e("s_waitcnt lgkmcnt(0)")
        g.interleave(e, g.mfmas(0), g.frag_reads(1))
        if not last:
            e(f"v_add_u32 v{g.vPa0}, s20, v{g.vP0b}")
            e(f"v_add_u32 v{g.vQa0}, s20, v{g.vQ0b}")
            e(f"s_waitcnt lgkmcnt(0)")
            e("s_barrier")
        else:
            e("s_waitcnt lgkmcnt(0)")
        fill = []
        if not last:
            fill += g.frag_reads(0)
        g.interleave(e, g.mfmas(1), fill)

    def run(self, e, extra_loads=None, pre_cons=None, step_extras=None, post_prod=None):
        g = self
        e("s_cmp_eq_u32 s53, 0")
        e(f"s_cbranch_scc1 L_{g.tag}_cons")
        e("s_setprio 1")
        g.setup_prod(e)
        for s in range(g.NS - 1):
            for grp in g.dma_ops():
                for ins in grp:
                    e(ins)
        e(f"s_waitcnt vmcnt({(g.NS - 2) * g.D})")
        e("s_barrier")
        nmain = g.nsteps - g.NS + 1
        if g.dyn:
            e(f"s_sub_u32 s21, s55, {g.NS - 1}")
        else:
            e(f"s_mov_b32 s21, {nmain}")
        e(f"L_{g.tag}_ploop:")
        e(f"s_waitcnt vmcnt({(g.NS - 3) * g.D})")
        e("s_barrier")
        for grp in g.dma_ops():
            for ins in grp:
                e(ins)
        e("s_sub_u32 s21, s21, 1")
        e("s_cmp_lg_u32 s21, 0")
        e(f"s_cbranch_scc1 L_{g.tag}_ploop")
        for i in range(nmain, g.nsteps - 1):
            e(f"s_waitcnt vmcnt({(g.nsteps - 2 - i) * g.D})")
            e("s_barrier")
        if post_prod:
            post_prod()
        e("s_endpgm")
        e(f"L_{g.tag}_cons:")
        g.setup_cons(e)
        if pre_cons:
            pre_cons()
        if extra_loads:
            for grp in extra_loads:
                for ins in grp:
                    e(ins)
        for r in range(g.acc, g.vend):
            e(f"v_mov_b32 v{r}, 0")
        e(f"v_mov_b32 v{g.vPa0}, v{g.vP0b}")
        e(f"v_mov_b32 v{g.vQa0}, v{g.vQ0b}")
        e("s_barrier")
        stamp(e, 2)
        for grp in g.frag_reads(0):
            e(grp[0])
        npeel = 0
        if step_extras:
            npeel = len(step_extras)
            for grp in step_extras:
                for ins in grp:
                    e(ins)
                g.step(e, False)
        if g.dyn:
            e(f"s_sub_u32 s21, s55, {1 + npeel}")
        else:
            e(f"s_mov_b32 s21, {g.nsteps - 1 - npeel}")
        e(f"L_{g.tag}_loop:")
        g.step(e, False)
        e("s_sub_u32 s21, s21, 1")
        e("s_cmp_lg_u32 s21, 0")
        e(f"s_cbranch_scc1 L_{g.tag}_loop")
        stamp(e, 3)
        g.step(e, True)
        e("s_nop 15")
        stamp(e, 4)


def bf16r_pair(e, a, b, t):
    e(f"v_cvt_pk_bf16_f32 v{t}, v{a}, v{b}")
    e(f"v_lshlrev_b32 v{a}, 16, v{t}")
    e(f"v_and_b32 v{b}, 0xffff0000, v{t}")


def gen_k1(e, name):
    kernel_head(e, name)
    e("s_cmp_ge_u32 s2, 256")
    e("s_cbranch_scc1 L_k1_done")
    stamp_rt(e, 0)
    stamp(e, 1)
    e(f"s_load_dwordx2 s[4:5], s[0:1], {KA_WS}")
    e(f"s_load_dwordx2 s[6:7], s[0:1], {KA_B1}")
    e(f"s_load_dwordx4 s[40:43], s[0:1], {KA_WSRE}")
    e("v_lshrrev_b32 v1, 6, v0")
    e("s_nop 0")
    e("v_readfirstlane_b32 s16, v1")
    e("s_nop 3")
    e("s_lshr_b32 s53, s16, 2")
    e("s_and_b32 s16, s16, 3")
    e("s_and_b32 s28, s2, 7")
    e("s_lshr_b32 s29, s2, 3")
    e("s_lshl_b32 s28, s28, 1")
    e("s_lshr_b32 s30, s29, 4")
    e("s_add_u32 s28, s28, s30")
    e("s_and_b32 s29, s29, 15")
    e("s_waitcnt lgkmcnt(0)")
    srd(e, 12, 4, WS_WCAT, 2400 * 1024)
    srd(e, 24, 4, 0, 64 << 20)
    e("s_lshl_b32 s17, s28, 17")

    def pre_ws():
        if not TOUCH1:
            return
        e("s_cmp_ge_u32 s2, 128")
        e("s_cselect_b32 s44, s42, s40")
        e("s_cselect_b32 s45, s43, s41")
        e(f"s_mov_b32 s46, {8 << 20}")
        e("s_mov_b32 s47, 0x20000")
        e("s_and_b32 s22, s2, 127")
        e("s_lshl_b32 s22, s22, 16")
        e("s_lshl_b32 s23, s16, 14")
        e("s_add_u32 s22, s22, s23")
        e("v_and_b32 v1, 63, v0")
        e("v_lshlrev_b32 v8, 7, v1")
        e("buffer_load_dword v9, v8, s[44:47], s22 offen")
        e("s_add_u32 s22, s22, 8192")
        e("buffer_load_dword v9, v8, s[44:47], s22 offen")
    e("s_cmp_ge_u32 s29, 7")
    e("s_cbranch_scc1 L_k1_typeB")
    srd(e, 8, 4, WS_XN, 2 << 20)
    e("s_mul_i32 s30, s29, 160")
    e("s_min_u32 s30, s30, 864")
    e("s_lshl_b32 s18, s30, 10")
    gA = Gemm("k1a", 4, 5, 2, 2, 8, 4, 1024, 1024, swap=False)
    gA.run(e, pre_cons=pre_ws, post_prod=(lambda: ws_touch(e, "s2", PF1, "k1a")) if PF1 else None)
    e("v_and_b32 v1, 63, v0")
    e("v_and_b32 v2, 15, v1")
    e("v_lshrrev_b32 v3, 4, v1")
    e("v_lshlrev_b32 v2, 13, v2")
    e("v_lshlrev_b32 v3, 3, v3")
    e("v_add_u32 v2, v2, v3")
    e("s_lshr_b32 s22, s16, 1")
    e("s_and_b32 s23, s16, 1")
    e("s_lshl_b32 s31, s28, 8")
    e("s_lshl_b32 s22, s22, 7")
    e("s_add_u32 s31, s31, s22")
    e(f"s_add_u32 s31, s31, {WS_ABT}")
    e("s_mul_i32 s23, s23, 80")
    e("s_add_u32 s30, s30, s23")
    for tn in range(5):
        e(f"s_add_u32 s32, s30, {16 * tn}")
        e("s_and_b32 s33, s32, 511")
        e("s_lshl_b32 s33, s33, 13")
        e("s_lshr_b32 s32, s32, 9")
        e("s_cmp_eq_u32 s32, 0")
        e("s_cselect_b32 s34, 0, 0x80008000")
        e("s_lshl_b32 s32, s32, 12")
        e("s_add_u32 s32, s32, s33")
        e("s_add_u32 s32, s32, s31")
        for tm in range(4):
            a = gA.accreg(tm, tn)
            e(f"v_cvt_pk_bf16_f32 v{a}, v{a}, v{a+1}")
            e(f"v_cvt_pk_bf16_f32 v{a+1}, v{a+2}, v{a+3}")
            e(f"v_xor_b32 v{a}, s34, v{a}")
            e(f"v_xor_b32 v{a+1}, s34, v{a+1}")
            e(f"buffer_store_dwordx2 v[{a}:{a+1}], v2, s[24:27], s32 offen offset:{tm * 32}")
    stamp(e, 5); stamp_rt(e, 6); stamp_flush(e, 1, 7)
    e("s_endpgm")
    e("L_k1_typeB:")
    srd(e, 8, 4, WS_Y2, 2 << 20)
    srd(e, 36, 6, 0, F * 2)
    e("s_sub_u32 s30, s29, 7")
    e("s_mul_i32 s30, s30, 160")
    e(f"s_min_u32 s30, s30, {HS - 160}")
    e("s_add_u32 s18, s30, 1024")
    e("s_lshl_b32 s18, s18, 10")
    gB = Gemm("k1b", 4, 5, 2, 2, 8, 4, 1024, 1024, swap=True)
    vb = gB.vend
    vt = vb + 10
    e("s_and_b32 s23, s16, 1")
    e("s_mul_i32 s23, s23, 80")
    e("s_add_u32 s30, s30, s23")
    e("v_and_b32 v1, 63, v0")
    e("v_lshrrev_b32 v3, 4, v1")
    e("v_lshlrev_b32 v5, 3, v3")
    e("s_lshl_b32 s31, s30, 1")
    extra = [[f"buffer_load_dwordx2 v[{vb+2*tn}:{vb+2*tn+1}], v5, s[36:39], s31 offen offset:{32*tn}"] for tn in range(5)]
    gB.run(e, extra_loads=extra, pre_cons=pre_ws, post_prod=(lambda: ws_touch(e, "s2", PF1, "k1b")) if PF1 else None)
    e("s_waitcnt vmcnt(0)")
    e("v_and_b32 v1, 63, v0")
    e("v_and_b32 v2, 15, v1")
    e(f"v_mul_u32_u24 v2, {HS * 2}, v2")
    e("v_add_u32 v2, v2, v5")
    e("s_lshr_b32 s22, s16, 1")
    e("s_lshl_b32 s32, s28, 7")
    e("s_lshl_b32 s22, s22, 6")
    e("s_add_u32 s32, s32, s22")
    e(f"s_mul_i32 s32, s32, {HS * 2}")
    e("s_add_u32 s32, s32, s31")
    e(f"s_add_u32 s32, s32, {WS_H}")
    k1 = -2.0 * math.sqrt(2.0 / math.pi) * math.log2(math.e)
    k2 = k1 * 0.044715
    e(f"s_mov_b32 s34, {f32bits(k1):#x}")
    e(f"s_mov_b32 s35, {f32bits(k2):#x}")
    for tn in range(5):
        b = [vt + 0, vt + 1, vt + 2, vt + 3]
        e(f"v_lshlrev_b32 v{b[0]}, 16, v{vb+2*tn}")
        e(f"v_and_b32 v{b[1]}, 0xffff0000, v{vb+2*tn}")
        e(f"v_lshlrev_b32 v{b[2]}, 16, v{vb+2*tn+1}")
        e(f"v_and_b32 v{b[3]}, 0xffff0000, v{vb+2*tn+1}")
        for tm in range(4):
            a = gB.accreg(tm, tn)
            t = vt + 4
            q = [vt + 5, vt + 6, vt + 7, vt + 8]
            bf16r_pair(e, a, a + 1, t)
            bf16r_pair(e, a + 2, a + 3, t)
            for r in range(4):
                e(f"v_add_f32 v{a+r}, v{a+r}, v{b[r]}")
            bf16r_pair(e, a, a + 1, t)
            bf16r_pair(e, a + 2, a + 3, t)
            for r in range(4):
                e(f"v_mul_f32 v{q[r]}, v{a+r}, v{a+r}")
            for r in range(4):
                e(f"v_mov_b32 v{t}, s34")
                e(f"v_fma_f32 v{q[r]}, v{q[r]}, s35, v{t}")
            for r in range(4):
                e(f"v_mul_f32 v{q[r]}, v{q[r]}, v{a+r}")
            for r in range(4):
                e(f"v_exp_f32 v{q[r]}, v{q[r]}")
            e("s_nop 0")
            for r in range(4):
                e(f"v_add_f32 v{q[r]}, 1.0, v{q[r]}")
            for r in range(4):
                e(f"v_rcp_f32 v{q[r]}, v{q[r]}")
            e("s_nop 0")
            for r in range(4):
                e(f"v_mul_f32 v{q[r]}, v{q[r]}, v{a+r}")
            e(f"v_cvt_pk_bf16_f32 v{a}, v{q[0]}, v{q[1]}")
            e(f"v_cvt_pk_bf16_f32 v{a+1}, v{q[2]}, v{q[3]}")
            e(f"s_add_u32 s33, s32, {tm * 16 * HS * 2}")
            e(f"buffer_store_dwordx2 v[{a}:{a+1}], v2, s[24:27], s33 offen offset:{tn * 32}")
    stamp(e, 5); stamp_rt(e, 6); stamp_flush(e, 1, 7)
    e("L_k1_done:")
    e("s_endpgm")
    return max(gA.vend, vt + 9), max(gA.NS * gA.SS, gB.NS * gB.SS)


def gen_k2(e, name, NS=4):
    kernel_head(e, name)
    e("s_cmp_ge_u32 s2, 256")
    e("s_cbranch_scc1 L_k2_done")
    stamp_rt(e, 0)
    stamp(e, 1)
    e(f"s_load_dwordx2 s[4:5], s[0:1], {KA_WS}")
    e(f"s_load_dwordx4 s[40:43], s[0:1], {KA_WSRE}")
    e("v_lshrrev_b32 v1, 6, v0")
    e("s_nop 0")
    e("v_readfirstlane_b32 s16, v1")
    e("s_nop 3")
    e("s_lshr_b32 s53, s16, 2")
    e("s_and_b32 s16, s16, 3")
    e("s_and_b32 s28, s2, 7")
    e("s_lshr_b32 s31, s2, 3")
    e("s_and_b32 s30, s31, 3")
    e("s_lshr_b32 s31, s31, 2")
    e("s_waitcnt lgkmcnt(0)")
    srd(e, 24, 4, WS_PART, 8 << 20)
    e("s_cmp_ge_u32 s31, 6")
    e("s_cbranch_scc1 L_k2_g3")
    e("s_mul_i32 s28, s28, 6")
    e("s_add_u32 s28, s28, s31")
    e("s_and_b32 s29, s28, 15")
    e("s_lshr_b32 s28, s28, 4")
    srd(e, 8, 4, WS_ABT, 4 << 20)
    e("s_cmp_ge_u32 s28, 2")
    e("s_cselect_b32 s12, s42, s40")
    e("s_cselect_b32 s13, s43, s41")
    e(f"s_mov_b32 s14, {8 << 20}")
    e("s_mov_b32 s15, 0x20000")
    e("s_mul_i32 s22, s28, 21")
    e("s_min_u32 s23, s28, 1")
    e("s_add_u32 s22, s22, s23")
    e("s_sub_u32 s55, 22, s23")
    e("s_lshl_b32 s22, s22, 7")
    e("s_lshl_b32 s17, s30, 20")
    e("s_add_u32 s17, s17, s22")
    e("s_and_b32 s22, s22, 4095")
    e("s_lshl_b32 s18, s29, 19")
    e("s_add_u32 s18, s18, s22")
    e("s_cmp_eq_u32 s28, 1")
    e("s_cselect_b32 s54, 10, 1000")
    e("s_mov_b32 s56, 8192")
    e("s_mov_b32 s57, 4096")
    e("s_branch L_k2_go")
    e("L_k2_g3:")
    e("s_lshl_b32 s29, s28, 1")
    e("s_add_u32 s29, s29, s31")
    e("s_sub_u32 s29, s29, 6")
    e("s_mov_b32 s28, 3")
    srd(e, 8, 4, WS_W2T, 512 * HS * 2)
    srd(e, 12, 4, WS_H, 2048 * HS * 2)
    e(f"s_mul_i32 s17, s30, {128 * HS * 2}")
    e(f"s_mul_i32 s18, s29, {128 * HS * 2}")
    e("s_mov_b32 s55, 22")
    e("s_mov_b32 s54, 1000")
    e(f"s_mov_b32 s56, {HS * 2}")
    e(f"s_mov_b32 s57, {HS * 2}")
    e("L_k2_go:")
    g = Gemm("k2", 4, 4, 2, 2, 22, NS, 0, 0, dyn=True)
    g.run(e, pre_cons=(lambda: ws_touch(e, "s2", PF2, "k2")) if PF2 else None)
    e("v_and_b32 v1, 63, v0")
    e("v_lshlrev_b32 v2, 4, v1")
    e("s_lshr_b32 s22, s16, 1")
    e("s_and_b32 s23, s16, 1")
    e("s_lshl_b32 s31, s28, 5")
    e("s_lshl_b32 s32, s30, 3")
    e("s_add_u32 s31, s31, s32")
    e("s_lshl_b32 s22, s22, 2")
    e("s_add_u32 s31, s31, s22")
    e("s_lshl_b32 s31, s31, 6")
    e("s_lshl_b32 s32, s29, 2")
    e("s_add_u32 s31, s31, s32")
    e("s_lshl_b32 s23, s23, 1")
    e("s_add_u32 s31, s31, s23")
    e("s_lshl_b32 s31, s31, 10")
    for tm in range(4):
        e(f"s_add_u32 s32, s31, {tm * 64 * 1024}")
        for tp in range(2):
            a = g.accreg(tm, 2 * tp)
            for i in range(4):
                e(f"v_cvt_pk_bf16_f32 v{a+i}, v{a+2*i}, v{a+2*i+1}")
            e(f"buffer_store_dwordx4 v[{a}:{a+3}], v2, s[24:27], s32 offen offset:{tp * 1024}")
    stamp(e, 5); stamp_rt(e, 6); stamp_flush(e, 2, 7)
    e("L_k2_done:")
    e("s_endpgm")
    return g.vend, g.NS * g.SS


K3_WGS = 512


def gen_k3(e, name):
    kernel_head(e, name)
    e(f"s_cmp_ge_u32 s2, {K3_WGS}")
    e("s_cbranch_scc1 L_k3_done")
    stamp_rt(e, 0)
    stamp(e, 1)
    e(f"s_load_dwordx2 s[4:5], s[0:1], {KA_WS}")
    e(f"s_load_dwordx2 s[6:7], s[0:1], {KA_X}")
    e(f"s_load_dwordx4 s[40:43], s[0:1], {KA_B2}")
    e("v_lshrrev_b32 v1, 6, v0")
    e("v_and_b32 v2, 63, v0")
    e("s_nop 0")
    e("v_readfirstlane_b32 s16, v1")
    e("v_lshlrev_b32 v5, 4, v2")
    e("v_and_b32 v3, 15, v2")
    e("v_lshrrev_b32 v4, 4, v2")
    e("v_lshlrev_b32 v6, 3, v4")
    e("v_lshlrev_b32 v7, 10, v3")
    e("v_add_u32 v7, v7, v6")
    e("s_lshl_b32 s28, s2, 2")
    e("s_add_u32 s28, s28, s16")
    e("s_and_b32 s29, s28, 31")
    e("s_lshr_b32 s30, s28, 5")
    e("s_lshl_b32 s48, s29, 6")
    e("s_add_u32 s48, s48, s30")
    e("s_lshl_b32 s48, s48, 10")
    e("s_lshl_b32 s49, s29, 5")
    e("s_lshl_b32 s50, s30, 15")
    e("s_add_u32 s50, s50, s49")
    e("s_waitcnt lgkmcnt(0)")
    srd(e, 24, 4, WS_PART, 8 << 20)
    srd(e, 32, 6, 0, 2 << 20)
    srd(e, 36, 40, 0, 1024)
    srd(e, 44, 42, 0, 2 << 20)
    for sl in (3, 0, 1, 2):
        e(f"s_add_u32 s51, s48, {sl * 32 * 64 * 1024}")
        e(f"buffer_load_dwordx4 v[{8+4*sl}:{11+4*sl}], v5, s[24:27], s51 offen")
        if sl == 3:
            e("buffer_load_dwordx2 v[24:25], v6, s[36:39], s49 offen")
    e("s_add_u32 s51, s50, 16384")
    e("buffer_load_dwordx2 v[26:27], v7, s[32:35], s50 offen")
    e("buffer_load_dwordx2 v[28:29], v7, s[32:35], s51 offen")
    nl2e = -math.log2(math.e)
    e(f"s_mov_b32 s52, {f32bits(nl2e):#x}")
    b = [30, 31, 32, 33]
    t = 34
    z = list(range(36, 44))
    q = list(range(44, 52))
    p0 = list(range(52, 60))
    p1 = list(range(60, 68))
    e("s_waitcnt vmcnt(5)")
    stamp(e, 2)
    e(f"v_lshlrev_b32 v{b[0]}, 16, v24")
    e(f"v_and_b32 v{b[1]}, 0xffff0000, v24")
    e(f"v_lshlrev_b32 v{b[2]}, 16, v25")
    e(f"v_and_b32 v{b[3]}, 0xffff0000, v25")
    for i in range(4):
        e(f"v_lshlrev_b32 v{z[2*i]}, 16, v{20+i}")
        e(f"v_and_b32 v{z[2*i+1]}, 0xffff0000, v{20+i}")
    for i in range(8):
        e(f"v_add_f32 v{z[i]}, v{z[i]}, v{b[i%4]}")
    for i in range(0, 8, 2):
        bf16r_pair(e, z[i], z[i + 1], t)
    for i in range(8):
        e(f"v_mul_f32 v{q[i]}, s52, v{z[i]}")
    for i in range(8):
        e(f"v_exp_f32 v{q[i]}, v{q[i]}")
    e("s_nop 0")
    for i in range(8):
        e(f"v_add_f32 v{q[i]}, 1.0, v{q[i]}")
    for i in range(8):
        e(f"v_rcp_f32 v{q[i]}, v{q[i]}")
    e("s_nop 0")
    for i in range(8):
        e(f"v_mul_f32 v{z[i]}, v{q[i]}, v{z[i]}")
    for i in range(0, 8, 2):
        bf16r_pair(e, z[i], z[i + 1], t)
    e("s_waitcnt vmcnt(2)")
    for i in range(4):
        e(f"v_lshlrev_b32 v{p0[2*i]}, 16, v{8+i}")
        e(f"v_and_b32 v{p0[2*i+1]}, 0xffff0000, v{8+i}")
        e(f"v_lshlrev_b32 v{p1[2*i]}, 16, v{12+i}")
        e(f"v_and_b32 v{p1[2*i+1]}, 0xffff0000, v{12+i}")
        e(f"v_lshlrev_b32 v{q[2*i]}, 16, v{16+i}")
        e(f"v_and_b32 v{q[2*i+1]}, 0xffff0000, v{16+i}")
    for i in range(8):
        e(f"v_add_f32 v{p0[i]}, v{p0[i]}, v{p1[i]}")
    for i in range(8):
        e(f"v_add_f32 v{p0[i]}, v{p0[i]}, v{q[i]}")
    for i in range(0, 8, 2):
        bf16r_pair(e, p0[i], p0[i + 1], t)
    for i in range(8):
        e(f"v_mul_f32 v{z[i]}, v{z[i]}, v{p0[i]}")
    for i in range(0, 8, 2):
        bf16r_pair(e, z[i], z[i + 1], t)
    e("s_waitcnt vmcnt(0)")
    for i in range(4):
        e(f"v_lshlrev_b32 v{q[2*i]}, 16, v{26+i}")
        e(f"v_and_b32 v{q[2*i+1]}, 0xffff0000, v{26+i}")
    for i in range(8):
        e(f"v_add_f32 v{z[i]}, v{z[i]}, v{q[i]}")
    for i in range(4):
        e(f"v_cvt_pk_bf16_f32 v{8+i}, v{z[2*i]}, v{z[2*i+1]}")
    e("buffer_store_dwordx2 v[8:9], v7, s[44:47], s50 offen")
    e("buffer_store_dwordx2 v[10:11], v7, s[44:47], s51 offen")
    stamp(e, 3); stamp(e, 4); stamp(e, 5); stamp_rt(e, 6); stamp_flush(e, 3, 7)
    e("L_k3_done:")
    e("s_endpgm")
    return 68, 0


def main(out):
    e = E()
    n0, n1, n2, n3 = "fnet_k0_kernel", "fnet_k1_kernel", "fnet_k2_kernel", "fnet_k3_kernel"
    v0 = gen_k0(e, n0)
    v1, l1 = gen_k1(e, n1)
    v2, l2 = gen_k2(e, n2)
    v3, l3 = gen_k3(e, n3)
    hdr = open("cdna_kernels/" + NAME + ".s.ref").read().split("; Override launch geometry")[0]
    s = hdr
    s += f"; @launch kernel={n0} grid=({K0_WGS},1,1) block=(256,1,1) lds=0\n"
    s += f"; @launch kernel={n1} grid=(256,1,1) block=(512,1,1) lds={l1}\n"
    s += f"; @launch kernel={n2} grid=(256,1,1) block=(512,1,1) lds={l2}\n"
    s += f"; @launch kernel={n3} grid=({K3_WGS},1,1) block=(256,1,1) lds={l3}\n"
    s += '.amdgcn_target "amdgcn-amd-amdhsa--gfx950"\n.text\n'
    s += e.text()
    s += '.section .rodata,"a"\n'
    for n, v in ((n0, v0), (n1, v1), (n2, v2), (n3, v3)):
        s += ".p2align 6\n" + kdesc(n, v)
    open(out, "w").write(s)
    print("vgprs", v0, v1, v2, v3, "lds", l1, l2, l3)


if __name__ == "__main__":
    if len(sys.argv) > 2 and sys.argv[2] == "instr":
        INSTR = True
    main(sys.argv[1] if len(sys.argv) > 1 else "cdna_kernels/" + NAME + ".s")
```

```python
import sys, math, os
EXP = os.environ.get('EXP', '')

NAME = "recurrent_scan__spectral_fnet__mixer_channel_mlp__prompt"

WS_XN = 0
WS_Y2 = 2 << 20
WS_WCAT = 4 << 20
WS_W2T = 8 << 20
WS_ABT = 10 << 20
WS_H = 16 << 20
WS_PART = 32 << 20
HS = 1408
F = 1376

KA_X, KA_WSRE, KA_WSIM, KA_WDRE, KA_WDIM, KA_BX, KA_W1, KA_B1, KA_W2, KA_B2, KA_OUT, KA_DBG, KA_WS = [8 * i for i in range(13)]


INSTR = False
ROT = False
TOUCH1 = int(os.environ.get('TOUCH1', '0'))
TOUCH2 = int(os.environ.get('TOUCH2', '1'))
TOUCH3 = int(os.environ.get('TOUCH3', '0'))
WS_DBG = 100 << 20
K3_SKIP = int(os.environ.get('K3_SKIP', '2'))


def stamp(e, k):
    if INSTR:
        e(f"s_memtime s[{70 + 2 * k}:{71 + 2 * k}]")


def stamp_rt(e, k):
    if INSTR:
        e(f"s_memrealtime s[{70 + 2 * k}:{71 + 2 * k}]")


def stamp_flush(e, kidx, n, wsbase=4):
    if not INSTR:
        return
    if INSTR == 2:
        e(f"s_load_dwordx2 s[96:97], s[0:1], {KA_DBG}")
        e("s_waitcnt lgkmcnt(0)")
        e(f"s_sub_u32 s96, s96, {512 * kidx}")
        e("s_subb_u32 s97, s97, 0")
        e("s_mov_b32 s98, 256")
        e("s_mov_b32 s99, 0x20000")
        e("v_mov_b32 v1, 0")
        e("s_not_b32 s70, s70")
        e("v_mov_b32 v2, s70")
        e("v_mov_b32 v3, s82")
        e("v_cmp_eq_u32 vcc, 0, v0")
        e("s_and_saveexec_b64 s[100:101], vcc")
        e(f"buffer_atomic_umax v2, v1, s[96:99], 0 offen offset:{8 * kidx}")
        e(f"buffer_atomic_umax v3, v1, s[96:99], 0 offen offset:{8 * kidx + 4}")
        return
    e("s_waitcnt lgkmcnt(0)")
    e("s_getreg_b32 s84, hwreg(HW_REG_XCC_ID)")
    n = 8
    e(f"s_add_u32 s96, s{wsbase}, {WS_DBG + kidx * (1 << 18)}")
    e(f"s_addc_u32 s97, s{wsbase + 1}, 0")
    e(f"s_mov_b32 s98, {1 << 18}")
    e("s_mov_b32 s99, 0x20000")
    e("s_lshl_b32 s100, s2, 2")
    e("s_add_u32 s100, s100, s16")
    e("s_lshl_b32 s100, s100, 6")
    e("v_mov_b32 v1, 0")
    for k in range(n):
        e(f"v_mov_b32 v2, s{70 + 2 * k}")
        e(f"buffer_store_dword v2, v1, s[96:99], s100 offen offset:{4 * k}")


class E:
    def __init__(self):
        self.L = []

    def __call__(self, s):
        for line in s.split("\n"):
            line = line.strip()
            if line:
                self.L.append(("    " if not line.endswith(":") else "") + line)

    def text(self):
        return "\n".join(self.L) + "\n"


def f32bits(x):
    import struct
    return struct.unpack("<I", struct.pack("<f", x))[0]


def srd(e, d, base, off, nbytes):
    if off:
        e(f"s_add_u32 s{d}, s{base}, {off}")
        e(f"s_addc_u32 s{d+1}, s{base+1}, 0")
    else:
        e(f"s_mov_b32 s{d}, s{base}")
        e(f"s_mov_b32 s{d+1}, s{base+1}")
    e(f"s_mov_b32 s{d+2}, {nbytes}")
    e(f"s_mov_b32 s{d+3}, 0x20000")


def kernel_head(e, name):
    e(f".globl {name}")
    e(".p2align 8")
    e(f".type {name},@function")
    e(f"{name}:")


def kdesc(name, vgpr, sgpr=102):
    v = (vgpr + 3) // 4 * 4
    return f""".amdhsa_kernel {name}
  .amdhsa_next_free_vgpr {v}
  .amdhsa_next_free_sgpr {sgpr}
  .amdhsa_accum_offset {v}
  .amdhsa_group_segment_fixed_size 0
  .amdhsa_kernarg_size 104
  .amdhsa_user_sgpr_count 2
  .amdhsa_user_sgpr_kernarg_segment_ptr 1
  .amdhsa_system_sgpr_workgroup_id_x 1
.end_amdhsa_kernel
"""


NT0 = ' nt' if int(os.environ.get('NT0', '0')) else ''
NTT = ' nt' if int(os.environ.get('NTT', '0')) else ''
NTQ = ' nt' if int(os.environ.get('NTQ', '0')) else ''
CODEPF = int(os.environ.get('CODEPF', '0'))


def code_touch(e, tag, lo, hi, vt=40):
    e("s_getpc_b64 s[64:65]")
    e(f"L_{tag}_pc:")
    e(f"s_add_u32 s64, s64, {lo}-L_{tag}_pc")
    e("s_addc_u32 s65, s65, 0")
    e(f"v_and_b32 v{vt}, 255, v0")
    e(f"v_lshlrev_b32 v{vt}, 7, v{vt}")
    e(f"v_min_u32 v{vt}, {hi}-{lo}-4, v{vt}")
    e(f"global_load_dword v{vt+1}, v{vt}, s[64:65]")


def ws_touch(e, idreg, groups, tag, sw="s16", sre=40, sd=44):
    e(f"s_lshr_b32 s22, {idreg}, 3")
    e("s_cmp_ge_u32 s22, 24")
    e(f"s_cbranch_scc1 L_{tag}_notouch")
    srd(e, sd, sre, 0, 8 << 20)
    srd(e, sd + 4, sre + 2, 0, 8 << 20)
    e(f"s_and_b32 s23, {idreg}, 7")
    e("s_mul_i32 s23, s23, 6")
    e("s_lshr_b32 s31, s22, 2")
    e("s_add_u32 s23, s23, s31")
    e("s_and_b32 s22, s22, 3")
    e("s_lshl_b32 s22, s22, 2")
    e(f"s_add_u32 s22, s22, {sw}")
    e("s_lshl_b32 s22, s22, 3")
    e("s_and_b32 s31, s23, 15")
    e("s_lshl_b32 s31, s31, 7")
    e("s_add_u32 s22, s22, s31")
    e("s_lshr_b32 s23, s23, 4")
    e("s_mul_i32 s31, s23, 21")
    e("s_min_u32 s32, s23, 1")
    e("s_add_u32 s31, s31, s32")
    e("s_sub_u32 s32, 22, s32")
    e("s_add_u32 s32, s32, s31")
    e("v_and_b32 v1, 63, v0")
    e("v_lshrrev_b32 v2, 3, v1")
    e("v_add_u32 v2, s22, v2")
    e("v_lshlrev_b32 v2, 12, v2")
    e("v_and_b32 v3, 7, v1")
    e("v_add_u32 v3, s31, v3")
    e("v_mov_b32 v7, -1")
    for i in groups:
        e(f"v_add_u32 v4, {8 * i}, v3")
        e("v_lshl_add_u32 v5, v4, 7, v2")
        e("v_cmp_gt_u32 vcc, s32, v4")
        e("v_cndmask_b32 v5, v7, v5, vcc")
        e("v_add_u32 v6, 0xfffff000, v5")
        e("v_cndmask_b32 v6, v7, v6, vcc")
        e("v_cmp_gt_u32 vcc, 32, v4")
        e("v_cndmask_b32 v5, v7, v5, vcc")
        e("v_cndmask_b32 v6, v6, v7, vcc")
        e(f"buffer_load_dword v8, v5, s[{sd}:{sd+3}], 0 offen" + NTT)
        e(f"buffer_load_dword v8, v6, s[{sd+4}:{sd+7}], 0 offen" + NTT)
    e(f"L_{tag}_notouch:")


def wave_reduce(e, regs, sbase):
    for ctl in ("quad_perm:[1,0,3,2]", "quad_perm:[2,3,0,1]", "row_half_mirror", "row_mirror"):
        e("s_nop 1")
        for r in regs:
            e(f"v_add_f32_dpp v{r}, v{r}, v{r} {ctl} row_mask:0xf bank_mask:0xf")
    e("s_nop 1")
    for i, r in enumerate(regs):
        for j in range(4):
            e(f"v_readlane_b32 s{sbase + 4 * i + j}, v{r}, {16 * j}")
    e("s_nop 1")
    for i, r in enumerate(regs):
        e(f"v_mov_b32 v{r}, s{sbase + 4 * i}")
        for j in range(1, 4):
            e(f"v_add_f32 v{r}, s{sbase + 4 * i + j}, v{r}")


def bf16r_scalar(e, r):
    e(f"v_cvt_pk_bf16_f32 v{r}, v{r}, v{r}")
    e(f"v_lshlrev_b32 v{r}, 16, v{r}")


def ln_pass(e, Fr, T, P):
    rows = range(len(Fr))
    for R in rows:
        f, t = Fr[R], T[R]
        e(f"v_add_f32 v{t[0]}, v{f[0]}, v{f[1]}")
        for i in range(2, 8):
            e(f"v_add_f32 v{t[0]}, v{t[0]}, v{f[i]}")
    wave_reduce(e, [T[R][0] for R in rows], 40)
    for R in rows:
        f, t = Fr[R], T[R]
        e(f"v_mul_f32 v{t[0]}, {f32bits(1.0/512):#x}, v{t[0]}")
        e(f"v_sub_f32 v{t[2]}, v{f[0]}, v{t[0]}")
        e(f"v_mul_f32 v{t[1]}, v{t[2]}, v{t[2]}")
        for i in range(1, 8):
            e(f"v_sub_f32 v{t[2]}, v{f[i]}, v{t[0]}")
            e(f"v_fmac_f32 v{t[1]}, v{t[2]}, v{t[2]}")
    wave_reduce(e, [T[R][1] for R in rows], 40)
    for R in rows:
        f, t = Fr[R], T[R]
        e(f"v_mul_f32 v{t[1]}, {f32bits(1.0/512):#x}, v{t[1]}")
        bf16r_scalar(e, t[0])
        bf16r_scalar(e, t[1])
        e(f"v_add_f32 v{t[1]}, {f32bits(1e-5):#x}, v{t[1]}")
        bf16r_scalar(e, t[1])
        e(f"v_sqrt_f32 v{t[1]}, v{t[1]}")
        e("s_nop 0")
        bf16r_scalar(e, t[1])
        e(f"v_rcp_f32 v{t[2]}, v{t[1]}")
        e("s_nop 0")
        for i in range(0, 8, 2):
            e(f"v_sub_f32 v{f[i]}, v{f[i]}, v{t[0]}")
            e(f"v_sub_f32 v{f[i+1]}, v{f[i+1]}, v{t[0]}")
            e(f"v_cvt_pk_bf16_f32 v{t[3]}, v{f[i]}, v{f[i+1]}")
            e(f"v_lshlrev_b32 v{f[i]}, 16, v{t[3]}")
            e(f"v_and_b32 v{f[i+1]}, 0xffff0000, v{t[3]}")
            for j in (i, i + 1):
                e(f"v_mul_f32 v{t[3]}, v{f[j]}, v{t[2]}")
                e(f"v_fma_f32 v{t[4]}, -v{t[3]}, v{t[1]}, v{f[j]}")
                e(f"v_fma_f32 v{f[j]}, v{t[4]}, v{t[2]}, v{t[3]}")
            e(f"v_cvt_pk_bf16_f32 v{P[R][i//2]}, v{f[i]}, v{f[i+1]}")
            e(f"v_lshlrev_b32 v{f[i]}, 16, v{P[R][i//2]}")
            e(f"v_and_b32 v{f[i+1]}, 0xffff0000, v{P[R][i//2]}")


K0_LN, K0_T1, K0_T2, K0_CP = 256, 88, 88, 32
PF0 = [int(c) for c in os.environ.get('PF0', '')]
PF1 = [int(c) for c in os.environ.get('PF1', '')]
PF2 = [int(c) for c in os.environ.get('PF2', '')]
K0_PF = 192 if PF0 else 0
K0_WGS = K0_LN + K0_T1 + K0_T2 + K0_CP + K0_PF


def gen_k0(e, name):
    kernel_head(e, name)
    e(f"s_cmp_ge_u32 s2, {K0_WGS}")
    e(f"s_cbranch_scc1 L_k0_done")
    stamp_rt(e, 0); stamp(e, 1)
    e(f"s_load_dwordx2 s[4:5], s[0:1], {KA_X}")
    e(f"s_load_dwordx2 s[6:7], s[0:1], {KA_WS}")
    e(f"s_load_dwordx4 s[8:11], s[0:1], {KA_WDRE}")
    e(f"s_load_dwordx2 s[12:13], s[0:1], {KA_W1}")
    e(f"s_load_dwordx2 s[14:15], s[0:1], {KA_W2}")
    e("v_lshrrev_b32 v1, 6, v0")
    e("v_and_b32 v2, 63, v0")
    e("s_nop 0")
    e("v_readfirstlane_b32 s16, v1")
    e("s_waitcnt lgkmcnt(0)")
    srd(e, 24, 6, 0, 64 << 20)
    e(f"s_cmp_ge_u32 s2, {K0_LN}")
    e("s_cbranch_scc1 L_k0_notln")
    srd(e, 20, 4, 0, 2 << 20)
    e("s_lshl_b32 s17, s2, 3")
    e("s_lshl_b32 s18, s16, 1")
    e("s_add_u32 s17, s17, s18")
    e("s_lshl_b32 s17, s17, 10")
    e("v_lshlrev_b32 v3, 4, v2")
    e("v_add_u32 v3, s17, v3")
    e("buffer_load_dwordx4 v[4:7], v3, s[20:23], 0 offen" + NT0)
    e("buffer_load_dwordx4 v[8:11], v3, s[20:23], 0 offen offset:1024" + NT0)
    Fr = [list(range(16, 24)), list(range(24, 32))]
    T = [list(range(32, 38)), list(range(38, 44))]
    P = [list(range(44, 48)), list(range(48, 52))]
    e("s_waitcnt vmcnt(0)")
    stamp(e, 2)
    for R in range(2):
        for i in range(4):
            e(f"v_lshlrev_b32 v{Fr[R][2*i]}, 16, v{4+4*R+i}")
            e(f"v_and_b32 v{Fr[R][2*i+1]}, 0xffff0000, v{4+4*R+i}")
    ln_pass(e, Fr, T, P)
    e("buffer_store_dwordx4 v[44:47], v3, s[24:27], 0 offen")
    e("buffer_store_dwordx4 v[48:51], v3, s[24:27], 0 offen offset:1024")
    P2 = [list(range(52, 56)), list(range(56, 60))]
    ln_pass(e, Fr, T, P2)
    e(f"s_mov_b32 s17, {WS_Y2}")
    e("buffer_store_dwordx4 v[52:55], v3, s[24:27], s17 offen")
    e("buffer_store_dwordx4 v[56:59], v3, s[24:27], s17 offen offset:1024")
    stamp(e, 3); stamp(e, 4); stamp(e, 5); stamp_rt(e, 6); stamp_flush(e, 0, 7, wsbase=6)
    e("s_endpgm")
    e("L_k0_notln:")
    e(f"s_cmp_ge_u32 s2, {K0_LN + K0_T1}")
    e("s_cbranch_scc1 L_k0_nott1")
    srd(e, 20, 12, 0, 512 * F * 2)
    e(f"s_sub_u32 s17, s2, {K0_LN}")
    e("s_lshl_b32 s17, s17, 2")
    e("s_add_u32 s17, s17, s16")
    e("s_lshr_b32 s18, s17, 4")
    e("s_and_b32 s19, s17, 15")
    e("s_lshl_b32 s18, s18, 6")
    e("v_add_u32 v3, s18, v2")
    e("v_lshlrev_b32 v20, 1, v3")
    e(f"s_mul_i32 s28, s19, {32 * F * 2}")
    for i in range(32):
        e(f"buffer_load_ushort v{24 + i}, v20, s[20:23], s28 offen" + NT0)
        if i != 31:
            e(f"s_add_u32 s28, s28, {F * 2}")
    e("v_lshlrev_b32 v21, 10, v3")
    e("s_lshl_b32 s19, s19, 6")
    e(f"s_add_u32 s19, s19, {WS_WCAT + 1024 * 1024}")
    e(f"v_cmp_gt_u32 vcc, {F}, v3")
    e("s_and_saveexec_b64 s[30:31], vcc")
    e("s_cbranch_execz L_k0_done")
    e("s_waitcnt vmcnt(0)")
    stamp(e, 2)
    for i in range(16):
        e(f"v_lshl_or_b32 v{4 + i}, v{25 + 2 * i}, 16, v{24 + 2 * i}")
    for i in range(4):
        e(f"buffer_store_dwordx4 v[{4+4*i}:{7+4*i}], v21, s[24:27], s19 offen offset:{16*i}")
    stamp(e, 3); stamp(e, 4); stamp(e, 5); stamp_rt(e, 6); stamp_flush(e, 0, 7, wsbase=6)
    e("s_endpgm")
    e("L_k0_nott1:")
    e(f"s_cmp_ge_u32 s2, {K0_LN + K0_T1 + K0_T2}")
    e("s_cbranch_scc1 L_k0_cp")
    srd(e, 20, 14, 0, F * 512 * 2)
    e(f"s_sub_u32 s17, s2, {K0_LN + K0_T1}")
    e("s_lshl_b32 s17, s17, 2")
    e("s_add_u32 s17, s17, s16")
    e("s_and_b32 s18, s17, 7")
    e("s_lshr_b32 s19, s17, 3")
    e("s_lshl_b32 s18, s18, 6")
    e("v_add_u32 v3, s18, v2")
    e("v_lshlrev_b32 v20, 1, v3")
    e("s_lshl_b32 s28, s19, 15")
    for i in range(32):
        e(f"buffer_load_ushort v{24 + i}, v20, s[20:23], s28 offen" + NT0)
        if i != 31:
            e(f"s_add_u32 s28, s28, 1024")
    e(f"v_mul_u32_u24 v21, {HS * 2}, v3")
    e("s_lshl_b32 s19, s19, 6")
    e(f"s_add_u32 s19, s19, {WS_W2T}")
    e("s_waitcnt vmcnt(0)")
    stamp(e, 2)
    for i in range(16):
        e(f"v_lshl_or_b32 v{4 + i}, v{25 + 2 * i}, 16, v{24 + 2 * i}")
    for i in range(4):
        e(f"buffer_store_dwordx4 v[{4+4*i}:{7+4*i}], v21, s[24:27], s19 offen offset:{16*i}")
    stamp(e, 3); stamp(e, 4); stamp(e, 5); stamp_rt(e, 6); stamp_flush(e, 0, 7, wsbase=6)
    e("s_endpgm")
    e("L_k0_cp:")
    if PF0:
        e(f"s_cmp_lt_u32 s2, {K0_WGS - K0_PF}")
        e("s_cbranch_scc1 L_k0_cp2")
        e(f"s_load_dwordx4 s[40:43], s[0:1], {KA_WSRE}")
        e(f"s_sub_u32 s30, s2, {K0_WGS - K0_PF}")
        e("s_waitcnt lgkmcnt(0)")
        ws_touch(e, "s30", PF0, "k0")
        e("s_endpgm")
        e("L_k0_cp2:")
    if CODEPF:
        code_touch(e, "k0c", "fnet_k1_kernel", "L_k3_done")
    e(f"s_sub_u32 s17, s2, {K0_LN + K0_T1 + K0_T2}")
    e("s_lshl_b32 s17, s17, 2")
    e("s_add_u32 s17, s17, s16")
    e("s_cmp_ge_u32 s17, 64")
    e("s_cselect_b32 s20, s10, s8")
    e("s_cselect_b32 s21, s11, s9")
    e(f"s_mov_b32 s22, {512 * 1024}")
    e("s_mov_b32 s23, 0x20000")
    e("s_and_b32 s18, s17, 63")
    e("s_lshl_b32 s18, s18, 13")
    e("s_lshl_b32 s19, s17, 13")
    e(f"s_add_u32 s19, s19, {WS_WCAT}")
    e("v_lshlrev_b32 v3, 4, v2")
    for i in range(8):
        if i == 4:
            e("s_add_u32 s18, s18, 4096")
        e(f"buffer_load_dwordx4 v[{4+4*i}:{7+4*i}], v3, s[20:23], s18 offen offset:{1024*(i%4)}" + NT0)
    e("s_waitcnt vmcnt(0)")
    for i in range(8):
        if i == 4:
            e("s_add_u32 s19, s19, 4096")
        e(f"buffer_store_dwordx4 v[{4+4*i}:{7+4*i}], v3, s[24:27], s19 offen offset:{1024*(i%4)}")
    e("L_k0_done:")
    e("s_endpgm")
    return 64


class Gemm:
    def __init__(self, tag, TM, TN, WM, WN, nsteps, NS, strideP, strideQ, swap=False, vbase=16, dyn=False):
        self.tag = tag
        self.dyn = dyn
        self.TM, self.TN, self.WM, self.WN = TM, TN, WM, WN
        self.PR, self.QR = WM * TM * 16, WN * TN * 16
        self.nsteps, self.NS = nsteps, NS
        self.sP, self.sQ = strideP, strideQ
        self.swap = swap
        self.SS = (self.PR + self.QR) * 128
        assert (self.PR // 8) % 4 == 0 and (self.QR // 8) % 4 == 0
        self.DP, self.DQ = self.PR // 32, self.QR // 32
        self.D = self.DP + self.DQ
        v = vbase
        self.vDP, self.vDQ, self.vP0b, self.vP1b, self.vQ0b, self.vQ1b = range(v, v + 6)
        self.vPa0, self.vPa1, self.vQa0, self.vQa1 = range(v + 6, v + 10)
        v = (v + 10 + 3) // 4 * 4
        self.fP = [v, v + 4 * (TM + TN)]
        self.fQ = [v + 4 * TM, v + 4 * (TM + TN) + 4 * TM]
        v += 8 * (TM + TN)
        self.acc = v
        self.vend = v + 4 * TM * TN

    def accreg(self, tm, tn):
        return self.acc + 4 * (tm * self.TN + tn)

    def setup_prod(self, e):
        g = self
        e("v_and_b32 v1, 63, v0")
        e("v_lshrrev_b32 v2, 3, v1")
        e("v_lshrrev_b32 v3, 4, v1")
        e("s_and_b32 s22, s16, 1")
        e("s_lshl_b32 s22, s22, 2")
        e("v_add_u32 v3, s22, v3")
        e("v_and_b32 v4, 7, v1")
        e("v_xor_b32 v3, v3, v4")
        e("v_lshlrev_b32 v3, 4, v3")
        e("s_lshl_b32 s22, s16, 3")
        e("v_add_u32 v2, s22, v2")
        if g.dyn:
            e(f"v_mul_lo_u32 v4, v2, s56")
            e(f"v_add_u32 v{g.vDP}, v4, v3")
            e(f"v_mul_lo_u32 v4, v2, s57")
            e(f"v_add_u32 v{g.vDQ}, v4, v3")
            for jj in range(1, g.DP):
                e(f"s_mul_i32 s{57 + jj}, s56, {32 * jj}")
            for jj in range(1, g.DQ):
                e(f"s_mul_i32 s{61 + jj}, s57, {32 * jj}")
        else:
            e(f"s_mov_b32 s22, {g.sP}")
            e(f"v_mul_lo_u32 v4, v2, s22")
            e(f"v_add_u32 v{g.vDP}, v4, v3")
            e(f"s_mov_b32 s22, {g.sQ}")
            e(f"v_mul_lo_u32 v4, v2, s22")
            e(f"v_add_u32 v{g.vDQ}, v4, v3")
        e("s_lshl_b32 s19, s16, 10")
        if ROT:
            m = 1
            while m * 2 <= g.nsteps:
                m *= 2
            e("s_lshr_b32 s22, s2, 3")
            e(f"s_and_b32 s22, s22, {m - 1}")
            e(f"s_sub_u32 s54, {g.nsteps}, s22")
            e("s_lshl_b32 s22, s22, 7")
            e("s_add_u32 s17, s17, s22")
            e("s_add_u32 s18, s18, s22")

    def setup_cons(self, e):
        g = self
        e("v_and_b32 v1, 63, v0")
        e("v_and_b32 v2, 15, v1")
        e("v_lshrrev_b32 v3, 1, v2")
        e("v_lshrrev_b32 v4, 4, v1")
        e("v_xor_b32 v3, v3, v4")
        e("v_lshlrev_b32 v3, 4, v3")
        e("v_lshlrev_b32 v2, 7, v2")
        e("v_add_u32 v2, v2, v3")
        if g.WN == 2:
            e("s_lshr_b32 s22, s16, 1")
            e("s_and_b32 s23, s16, 1")
        elif g.WN == 1:
            e("s_mov_b32 s22, s16")
            e("s_mov_b32 s23, 0")
        elif g.WN == 4:
            e("s_mov_b32 s22, 0")
            e("s_mov_b32 s23, s16")
        e(f"s_mul_i32 s22, s22, {g.TM * 2048}")
        e(f"s_mul_i32 s23, s23, {g.TN * 2048}")
        e(f"s_add_u32 s23, s23, {g.PR * 128}")
        e(f"v_add_u32 v{g.vP0b}, s22, v2")
        e(f"v_xor_b32 v{g.vP1b}, 64, v{g.vP0b}")
        e(f"v_add_u32 v{g.vQ0b}, s23, v2")
        e(f"v_xor_b32 v{g.vQ1b}, 64, v{g.vQ0b}")
        e("s_mov_b32 s20, 0")

    def dma_ops(self):
        g = self
        ops = []
        for j in range(g.D):
            isP = j < g.DP
            jj = j if isP else j - g.DP
            stride = g.sP if isP else g.sQ
            sk = "s17" if isP else "s18"
            sr = "s[8:11]" if isP else "s[12:15]"
            vd = g.vDP if isP else g.vDQ
            grp = [f"s_add_u32 m0, s19, {j * 4096}"]
            if jj == 0:
                grp.append("s_nop 0")
                grp.append(f"buffer_load_dwordx4 v{vd}, {sr}, {sk} offen" + (NTQ if (g.dyn and not isP) else "") + " lds")
            else:
                if g.dyn:
                    grp.append(f"s_add_u32 s22, {sk}, s{(57 if isP else 61) + jj}")
                else:
                    grp.append(f"s_add_u32 s22, {sk}, {jj * 32 * stride}")
                grp.append(f"buffer_load_dwordx4 v{vd}, {sr}, s22 offen" + (NTQ if (g.dyn and not isP) else "") + " lds")
            ops.append(grp)
        adv = ["s_add_u32 s17, s17, 128", "s_add_u32 s18, s18, 128",
               f"s_add_u32 s19, s19, {g.SS}", f"s_sub_u32 s22, s19, {g.NS * g.SS}",
               f"s_cmp_ge_u32 s19, {g.NS * g.SS}", "s_cselect_b32 s19, s22, s19"]
        if ROT:
            adv += ["s_sub_u32 s54, s54, 1", "s_cmp_eq_u32 s54, 0",
                    f"s_cselect_b32 s22, {g.nsteps * 128}, 0",
                    "s_sub_u32 s17, s17, s22", "s_sub_u32 s18, s18, s22"]
        if g.dyn:
            adv += ["s_sub_u32 s54, s54, 1", "s_cmp_eq_u32 s54, 0",
                    "s_cselect_b32 s12, s42, s12", "s_cselect_b32 s13, s43, s13",
                    "s_cselect_b32 s22, 4096, 0", "s_sub_u32 s18, s18, s22"]
        ops.append(adv)
        return ops

    def frag_reads(self, st):
        g = self
        va, vq = (g.vPa0, g.vQa0) if st == 0 else (g.vPa1, g.vQa1)
        ops = []
        for i in range(max(g.TM, g.TN)):
            if i < g.TM:
                r = g.fP[st] + 4 * i
                ops.append([f"ds_read_b128 v[{r}:{r+3}], v{va} offset:{i * 2048}"])
            if i < g.TN:
                r = g.fQ[st] + 4 * i
                ops.append([f"ds_read_b128 v[{r}:{r+3}], v{vq} offset:{i * 2048}"])
        return ops

    def mfmas(self, st):
        g = self
        ops = []
        if EXP == "E2" and g.tag == "k2":
            return ["s_nop 0"]
        for tm in range(g.TM):
            for tn in range(g.TN):
                a = g.accreg(tm, tn)
                p = g.fP[st] + 4 * tm
                q = g.fQ[st] + 4 * tn
                if g.swap:
                    p, q = q, p
                ops.append(f"v_mfma_f32_16x16x32_bf16 v[{a}:{a+3}], v[{p}:{p+3}], v[{q}:{q+3}], v[{a}:{a+3}]")
        return ops

    @staticmethod
    def interleave(e, mf, fillers):
        n = len(mf)
        k = len(fillers)
        fi = 0
        for i, m in enumerate(mf):
            e(m)
            want = min(k, -(-(i + 1) * k // n)) if k > n else min(k, i + 1)
            while fi < want:
                for ins in fillers[fi]:
                    e(ins)
                fi += 1
        while fi < k:
            for ins in fillers[fi]:
                e(ins)
            fi += 1

    def step(self, e, last):
        g = self
        e(f"v_add_u32 v{g.vPa1}, s20, v{g.vP1b}")
        e(f"v_add_u32 v{g.vQa1}, s20, v{g.vQ1b}")
        e(f"s_add_u32 s20, s20, {g.SS}")
        e(f"s_cmp_eq_u32 s20, {g.NS * g.SS}")
        e("s_cselect_b32 s20, 0, s20")
        e("s_waitcnt lgkmcnt(0)")
        g.interleave(e, g.mfmas(0), g.frag_reads(1))
        if not last:
            e(f"v_add_u32 v{g.vPa0}, s20, v{g.vP0b}")
            e(f"v_add_u32 v{g.vQa0}, s20, v{g.vQ0b}")
            e(f"s_waitcnt lgkmcnt(0)")
            e("s_barrier")
        else:
            e("s_waitcnt lgkmcnt(0)")
        fill = []
        if not last:
            fill += g.frag_reads(0)
        g.interleave(e, g.mfmas(1), fill)

    def run(self, e, extra_loads=None, pre_cons=None, step_extras=None, post_prod=None):
        g = self
        e("s_cmp_eq_u32 s53, 0")
        e(f"s_cbranch_scc1 L_{g.tag}_cons")
        e("s_setprio 1")
        g.setup_prod(e)
        for s in range(g.NS - 1):
            for grp in g.dma_ops():
                for ins in grp:
                    e(ins)
        e(f"s_waitcnt vmcnt({(g.NS - 2) * g.D})")
        e("s_barrier")
        nmain = g.nsteps - g.NS + 1
        if g.dyn:
            e(f"s_sub_u32 s21, s55, {g.NS - 1}")
        else:
            e(f"s_mov_b32 s21, {nmain}")
        e(f"L_{g.tag}_ploop:")
        e(f"s_waitcnt vmcnt({(g.NS - 3) * g.D})")
        e("s_barrier")
        for grp in g.dma_ops():
            for ins in grp:
                e(ins)
        e("s_sub_u32 s21, s21, 1")
        e("s_cmp_lg_u32 s21, 0")
        e(f"s_cbranch_scc1 L_{g.tag}_ploop")
        for i in range(nmain, g.nsteps - 1):
            e(f"s_waitcnt vmcnt({(g.nsteps - 2 - i) * g.D})")
            e("s_barrier")
        if post_prod:
            post_prod()
        e("s_endpgm")
        e(f"L_{g.tag}_cons:")
        g.setup_cons(e)
        if pre_cons:
            pre_cons()
        if extra_loads:
            for grp in extra_loads:
                for ins in grp:
                    e(ins)
        for r in range(g.acc, g.vend):
            e(f"v_mov_b32 v{r}, 0")
        e(f"v_mov_b32 v{g.vPa0}, v{g.vP0b}")
        e(f"v_mov_b32 v{g.vQa0}, v{g.vQ0b}")
        e("s_barrier")
        stamp(e, 2)
        for grp in g.frag_reads(0):
            e(grp[0])
        npeel = 0
        if step_extras:
            npeel = len(step_extras)
            for grp in step_extras:
                for ins in grp:
                    e(ins)
                g.step(e, False)
        if g.dyn:
            e(f"s_sub_u32 s21, s55, {1 + npeel}")
        else:
            e(f"s_mov_b32 s21, {g.nsteps - 1 - npeel}")
        e(f"L_{g.tag}_loop:")
        g.step(e, False)
        e("s_sub_u32 s21, s21, 1")
        e("s_cmp_lg_u32 s21, 0")
        e(f"s_cbranch_scc1 L_{g.tag}_loop")
        stamp(e, 3)
        g.step(e, True)
        e("s_nop 15")
        stamp(e, 4)


def bf16r_pair(e, a, b, t):
    e(f"v_cvt_pk_bf16_f32 v{t}, v{a}, v{b}")
    e(f"v_lshlrev_b32 v{a}, 16, v{t}")
    e(f"v_and_b32 v{b}, 0xffff0000, v{t}")


def gen_k1(e, name):
    kernel_head(e, name)
    e("s_cmp_ge_u32 s2, 256")
    e("s_cbranch_scc1 L_k1_done")
    stamp_rt(e, 0)
    stamp(e, 1)
    e(f"s_load_dwordx2 s[4:5], s[0:1], {KA_WS}")
    e(f"s_load_dwordx2 s[6:7], s[0:1], {KA_B1}")
    e(f"s_load_dwordx4 s[40:43], s[0:1], {KA_WSRE}")
    e("v_lshrrev_b32 v1, 6, v0")
    e("s_nop 0")
    e("v_readfirstlane_b32 s16, v1")
    e("s_nop 3")
    e("s_lshr_b32 s53, s16, 2")
    e("s_and_b32 s16, s16, 3")
    e("s_and_b32 s28, s2, 7")
    e("s_lshr_b32 s29, s2, 3")
    e("s_lshl_b32 s28, s28, 1")
    e("s_lshr_b32 s30, s29, 4")
    e("s_add_u32 s28, s28, s30")
    e("s_and_b32 s29, s29, 15")
    e("s_waitcnt lgkmcnt(0)")
    srd(e, 12, 4, WS_WCAT, 2400 * 1024)
    srd(e, 24, 4, 0, 64 << 20)
    e("s_lshl_b32 s17, s28, 17")

    def pre_ws():
        if not TOUCH1:
            return
        e("s_cmp_ge_u32 s2, 128")
        e("s_cselect_b32 s44, s42, s40")
        e("s_cselect_b32 s45, s43, s41")
        e(f"s_mov_b32 s46, {8 << 20}")
        e("s_mov_b32 s47, 0x20000")
        e("s_and_b32 s22, s2, 127")
        e("s_lshl_b32 s22, s22, 16")
        e("s_lshl_b32 s23, s16, 14")
        e("s_add_u32 s22, s22, s23")
        e("v_and_b32 v1, 63, v0")
        e("v_lshlrev_b32 v8, 7, v1")
        e("buffer_load_dword v9, v8, s[44:47], s22 offen")
        e("s_add_u32 s22, s22, 8192")
        e("buffer_load_dword v9, v8, s[44:47], s22 offen")
    e("s_cmp_ge_u32 s29, 7")
    e("s_cbranch_scc1 L_k1_typeB")
    srd(e, 8, 4, WS_XN, 2 << 20)
    e("s_mul_i32 s30, s29, 160")
    e("s_min_u32 s30, s30, 864")
    e("s_lshl_b32 s18, s30, 10")
    gA = Gemm("k1a", 4, 5, 2, 2, 8, 4, 1024, 1024, swap=False)
    gA.run(e, pre_cons=pre_ws, post_prod=(lambda: ws_touch(e, "s2", PF1, "k1a")) if PF1 else None)
    e("v_and_b32 v1, 63, v0")
    e("v_and_b32 v2, 15, v1")
    e("v_lshrrev_b32 v3, 4, v1")
    e("v_lshlrev_b32 v2, 13, v2")
    e("v_lshlrev_b32 v3, 3, v3")
    e("v_add_u32 v2, v2, v3")
    e("s_lshr_b32 s22, s16, 1")
    e("s_and_b32 s23, s16, 1")
    e("s_lshl_b32 s31, s28, 8")
    e("s_lshl_b32 s22, s22, 7")
    e("s_add_u32 s31, s31, s22")
    e(f"s_add_u32 s31, s31, {WS_ABT}")
    e("s_mul_i32 s23, s23, 80")
    e("s_add_u32 s30, s30, s23")
    for tn in range(5):
        e(f"s_add_u32 s32, s30, {16 * tn}")
        e("s_and_b32 s33, s32, 511")
        e("s_lshl_b32 s33, s33, 13")
        e("s_lshr_b32 s32, s32, 9")
        e("s_cmp_eq_u32 s32, 0")
        e("s_cselect_b32 s34, 0, 0x80008000")
        e("s_lshl_b32 s32, s32, 12")
        e("s_add_u32 s32, s32, s33")
        e("s_add_u32 s32, s32, s31")
        for tm in range(4):
            a = gA.accreg(tm, tn)
            e(f"v_cvt_pk_bf16_f32 v{a}, v{a}, v{a+1}")
            e(f"v_cvt_pk_bf16_f32 v{a+1}, v{a+2}, v{a+3}")
            e(f"v_xor_b32 v{a}, s34, v{a}")
            e(f"v_xor_b32 v{a+1}, s34, v{a+1}")
            e(f"buffer_store_dwordx2 v[{a}:{a+1}], v2, s[24:27], s32 offen offset:{tm * 32}")
    stamp(e, 5); stamp_rt(e, 6); stamp_flush(e, 1, 7)
    e("s_endpgm")
    e("L_k1_typeB:")
    srd(e, 8, 4, WS_Y2, 2 << 20)
    srd(e, 36, 6, 0, F * 2)
    e("s_sub_u32 s30, s29, 7")
    e("s_mul_i32 s30, s30, 160")
    e(f"s_min_u32 s30, s30, {HS - 160}")
    e("s_add_u32 s18, s30, 1024")
    e("s_lshl_b32 s18, s18, 10")
    gB = Gemm("k1b", 4, 5, 2, 2, 8, 4, 1024, 1024, swap=True)
    vb = gB.vend
    vt = vb + 10
    e("s_and_b32 s23, s16, 1")
    e("s_mul_i32 s23, s23, 80")
    e("s_add_u32 s30, s30, s23")
    e("v_and_b32 v1, 63, v0")
    e("v_lshrrev_b32 v3, 4, v1")
    e("v_lshlrev_b32 v5, 3, v3")
    e("s_lshl_b32 s31, s30, 1")
    extra = [[f"buffer_load_dwordx2 v[{vb+2*tn}:{vb+2*tn+1}], v5, s[36:39], s31 offen offset:{32*tn}"] for tn in range(5)]
    gB.run(e, extra_loads=extra, pre_cons=pre_ws, post_prod=(lambda: ws_touch(e, "s2", PF1, "k1b")) if PF1 else None)
    e("s_waitcnt vmcnt(0)")
    e("v_and_b32 v1, 63, v0")
    e("v_and_b32 v2, 15, v1")
    e(f"v_mul_u32_u24 v2, {HS * 2}, v2")
    e("v_add_u32 v2, v2, v5")
    e("s_lshr_b32 s22, s16, 1")
    e("s_lshl_b32 s32, s28, 7")
    e("s_lshl_b32 s22, s22, 6")
    e("s_add_u32 s32, s32, s22")
    e(f"s_mul_i32 s32, s32, {HS * 2}")
    e("s_add_u32 s32, s32, s31")
    e(f"s_add_u32 s32, s32, {WS_H}")
    k1 = -2.0 * math.sqrt(2.0 / math.pi) * math.log2(math.e)
    k2 = k1 * 0.044715
    e(f"s_mov_b32 s34, {f32bits(k1):#x}")
    e(f"s_mov_b32 s35, {f32bits(k2):#x}")
    for tn in range(5):
        b = [vt + 0, vt + 1, vt + 2, vt + 3]
        e(f"v_lshlrev_b32 v{b[0]}, 16, v{vb+2*tn}")
        e(f"v_and_b32 v{b[1]}, 0xffff0000, v{vb+2*tn}")
        e(f"v_lshlrev_b32 v{b[2]}, 16, v{vb+2*tn+1}")
        e(f"v_and_b32 v{b[3]}, 0xffff0000, v{vb+2*tn+1}")
        for tm in range(4):
            a = gB.accreg(tm, tn)
            t = vt + 4
            q = [vt + 5, vt + 6, vt + 7, vt + 8]
            bf16r_pair(e, a, a + 1, t)
            bf16r_pair(e, a + 2, a + 3, t)
            for r in range(4):
                e(f"v_add_f32 v{a+r}, v{a+r}, v{b[r]}")
            bf16r_pair(e, a, a + 1, t)
            bf16r_pair(e, a + 2, a + 3, t)
            for r in range(4):
                e(f"v_mul_f32 v{q[r]}, v{a+r}, v{a+r}")
            for r in range(4):
                e(f"v_mov_b32 v{t}, s34")
                e(f"v_fma_f32 v{q[r]}, v{q[r]}, s35, v{t}")
            for r in range(4):
                e(f"v_mul_f32 v{q[r]}, v{q[r]}, v{a+r}")
            for r in range(4):
                e(f"v_exp_f32 v{q[r]}, v{q[r]}")
            e("s_nop 0")
            for r in range(4):
                e(f"v_add_f32 v{q[r]}, 1.0, v{q[r]}")
            for r in range(4):
                e(f"v_rcp_f32 v{q[r]}, v{q[r]}")
            e("s_nop 0")
            for r in range(4):
                e(f"v_mul_f32 v{q[r]}, v{q[r]}, v{a+r}")
            e(f"v_cvt_pk_bf16_f32 v{a}, v{q[0]}, v{q[1]}")
            e(f"v_cvt_pk_bf16_f32 v{a+1}, v{q[2]}, v{q[3]}")
            e(f"s_add_u32 s33, s32, {tm * 16 * HS * 2}")
            e(f"buffer_store_dwordx2 v[{a}:{a+1}], v2, s[24:27], s33 offen offset:{tn * 32}")
    stamp(e, 5); stamp_rt(e, 6); stamp_flush(e, 1, 7)
    e("L_k1_done:")
    e("s_endpgm")
    return max(gA.vend, vt + 9), max(gA.NS * gA.SS, gB.NS * gB.SS)


def gen_k2(e, name, NS=4):
    kernel_head(e, name)
    e("s_cmp_ge_u32 s2, 256")
    e("s_cbranch_scc1 L_k2_done")
    stamp_rt(e, 0)
    stamp(e, 1)
    e(f"s_load_dwordx2 s[4:5], s[0:1], {KA_WS}")
    e(f"s_load_dwordx4 s[40:43], s[0:1], {KA_WSRE}")
    e("v_lshrrev_b32 v1, 6, v0")
    e("s_nop 0")
    e("v_readfirstlane_b32 s16, v1")
    e("s_nop 3")
    e("s_lshr_b32 s53, s16, 2")
    e("s_and_b32 s16, s16, 3")
    e("s_and_b32 s28, s2, 7")
    e("s_lshr_b32 s31, s2, 3")
    e("s_and_b32 s30, s31, 3")
    e("s_lshr_b32 s31, s31, 2")
    e("s_waitcnt lgkmcnt(0)")
    srd(e, 24, 4, WS_PART, 8 << 20)
    e("s_cmp_ge_u32 s31, 6")
    e("s_cbranch_scc1 L_k2_g3")
    e("s_mul_i32 s28, s28, 6")
    e("s_add_u32 s28, s28, s31")
    e("s_and_b32 s29, s28, 15")
    e("s_lshr_b32 s28, s28, 4")
    srd(e, 8, 4, WS_ABT, 4 << 20)
    e("s_cmp_ge_u32 s28, 2")
    e("s_cselect_b32 s12, s42, s40")
    e("s_cselect_b32 s13, s43, s41")
    e(f"s_mov_b32 s14, {8 << 20}")
    e("s_mov_b32 s15, 0x20000")
    e("s_mul_i32 s22, s28, 21")
    e("s_min_u32 s23, s28, 1")
    e("s_add_u32 s22, s22, s23")
    e("s_sub_u32 s55, 22, s23")
    e("s_lshl_b32 s22, s22, 7")
    e("s_lshl_b32 s17, s30, 20")
    e("s_add_u32 s17, s17, s22")
    e("s_and_b32 s22, s22, 4095")
    e("s_lshl_b32 s18, s29, 19")
    e("s_add_u32 s18, s18, s22")
    e("s_cmp_eq_u32 s28, 1")
    e("s_cselect_b32 s54, 10, 1000")
    e("s_mov_b32 s56, 8192")
    e("s_mov_b32 s57, 4096")
    e("s_branch L_k2_go")
    e("L_k2_g3:")
    e("s_lshl_b32 s29, s28, 1")
    e("s_add_u32 s29, s29, s31")
    e("s_sub_u32 s29, s29, 6")
    e("s_mov_b32 s28, 3")
    srd(e, 8, 4, WS_W2T, 512 * HS * 2)
    srd(e, 12, 4, WS_H, 2048 * HS * 2)
    e(f"s_mul_i32 s17, s30, {128 * HS * 2}")
    e(f"s_mul_i32 s18, s29, {128 * HS * 2}")
    e("s_mov_b32 s55, 22")
    e("s_mov_b32 s54, 1000")
    e(f"s_mov_b32 s56, {HS * 2}")
    e(f"s_mov_b32 s57, {HS * 2}")
    e("L_k2_go:")
    g = Gemm("k2", 4, 4, 2, 2, 22, NS, 0, 0, dyn=True)
    g.run(e, pre_cons=(lambda: ws_touch(e, "s2", PF2, "k2")) if PF2 else None)
    e("v_and_b32 v1, 63, v0")
    e("v_lshlrev_b32 v2, 4, v1")
    e("s_lshr_b32 s22, s16, 1")
    e("s_and_b32 s23, s16, 1")
    e("s_lshl_b32 s31, s28, 5")
    e("s_lshl_b32 s32, s30, 3")
    e("s_add_u32 s31, s31, s32")
    e("s_lshl_b32 s22, s22, 2")
    e("s_add_u32 s31, s31, s22")
    e("s_lshl_b32 s31, s31, 6")
    e("s_lshl_b32 s32, s29, 2")
    e("s_add_u32 s31, s31, s32")
    e("s_lshl_b32 s23, s23, 1")
    e("s_add_u32 s31, s31, s23")
    e("s_lshl_b32 s31, s31, 10")
    for tm in range(4):
        e(f"s_add_u32 s32, s31, {tm * 64 * 1024}")
        for tp in range(2):
            a = g.accreg(tm, 2 * tp)
            for i in range(4):
                e(f"v_cvt_pk_bf16_f32 v{a+i}, v{a+2*i}, v{a+2*i+1}")
            e(f"buffer_store_dwordx4 v[{a}:{a+3}], v2, s[24:27], s32 offen offset:{tp * 1024}")
    stamp(e, 5); stamp_rt(e, 6); stamp_flush(e, 2, 7)
    e("L_k2_done:")
    e("s_endpgm")
    return g.vend, g.NS * g.SS


K3_WGS = 512


def gen_k3(e, name):
    kernel_head(e, name)
    e(f"s_cmp_ge_u32 s2, {K3_WGS}")
    e("s_cbranch_scc1 L_k3_done")
    stamp_rt(e, 0)
    stamp(e, 1)
    e(f"s_load_dwordx2 s[4:5], s[0:1], {KA_WS}")
    e(f"s_load_dwordx2 s[6:7], s[0:1], {KA_X}")
    e(f"s_load_dwordx4 s[40:43], s[0:1], {KA_B2}")
    e("v_lshrrev_b32 v1, 6, v0")
    e("v_and_b32 v2, 63, v0")
    e("s_nop 0")
    e("v_readfirstlane_b32 s16, v1")
    e("v_lshlrev_b32 v5, 4, v2")
    e("v_and_b32 v3, 15, v2")
    e("v_lshrrev_b32 v4, 4, v2")
    e("v_lshlrev_b32 v6, 3, v4")
    e("v_lshlrev_b32 v7, 10, v3")
    e("v_add_u32 v7, v7, v6")
    e("s_lshl_b32 s28, s2, 2")
    e("s_add_u32 s28, s28, s16")
    e("s_and_b32 s29, s28, 31")
    e("s_lshr_b32 s30, s28, 5")
    e("s_lshl_b32 s48, s29, 6")
    e("s_add_u32 s48, s48, s30")
    e("s_lshl_b32 s48, s48, 10")
    e("s_lshl_b32 s49, s29, 5")
    e("s_lshl_b32 s50, s30, 15")
    e("s_add_u32 s50, s50, s49")
    e("s_waitcnt lgkmcnt(0)")
    srd(e, 24, 4, WS_PART, 8 << 20)
    srd(e, 32, 6, 0, 2 << 20)
    srd(e, 36, 40, 0, 1024)
    srd(e, 44, 42, 0, 2 << 20)
    for sl in (3, 0, 1, 2):
        e(f"s_add_u32 s51, s48, {sl * 32 * 64 * 1024}")
        e(f"buffer_load_dwordx4 v[{8+4*sl}:{11+4*sl}], v5, s[24:27], s51 offen")
        if sl == 3:
            e("buffer_load_dwordx2 v[24:25], v6, s[36:39], s49 offen")
    e("s_add_u32 s51, s50, 16384")
    e("buffer_load_dwordx2 v[26:27], v7, s[32:35], s50 offen")
    e("buffer_load_dwordx2 v[28:29], v7, s[32:35], s51 offen")
    nl2e = -math.log2(math.e)
    e(f"s_mov_b32 s52, {f32bits(nl2e):#x}")
    b = [30, 31, 32, 33]
    t = 34
    z = list(range(36, 44))
    q = list(range(44, 52))
    p0 = list(range(52, 60))
    p1 = list(range(60, 68))
    e("s_waitcnt vmcnt(5)")
    stamp(e, 2)
    e(f"v_lshlrev_b32 v{b[0]}, 16, v24")
    e(f"v_and_b32 v{b[1]}, 0xffff0000, v24")
    e(f"v_lshlrev_b32 v{b[2]}, 16, v25")
    e(f"v_and_b32 v{b[3]}, 0xffff0000, v25")
    for i in range(4):
        e(f"v_lshlrev_b32 v{z[2*i]}, 16, v{20+i}")
        e(f"v_and_b32 v{z[2*i+1]}, 0xffff0000, v{20+i}")
    for i in range(8):
        e(f"v_add_f32 v{z[i]}, v{z[i]}, v{b[i%4]}")
    for i in range(0, 8, 2):
        bf16r_pair(e, z[i], z[i + 1], t)
    for i in range(8):
        e(f"v_mul_f32 v{q[i]}, s52, v{z[i]}")
    for i in range(8):
        e(f"v_exp_f32 v{q[i]}, v{q[i]}")
    e("s_nop 0")
    for i in range(8):
        e(f"v_add_f32 v{q[i]}, 1.0, v{q[i]}")
    for i in range(8):
        e(f"v_rcp_f32 v{q[i]}, v{q[i]}")
    e("s_nop 0")
    for i in range(8):
        e(f"v_mul_f32 v{z[i]}, v{q[i]}, v{z[i]}")
    for i in range(0, 8, 2):
        bf16r_pair(e, z[i], z[i + 1], t)
    e("s_waitcnt vmcnt(2)")
    for i in range(4):
        e(f"v_lshlrev_b32 v{p0[2*i]}, 16, v{8+i}")
        e(f"v_and_b32 v{p0[2*i+1]}, 0xffff0000, v{8+i}")
        e(f"v_lshlrev_b32 v{p1[2*i]}, 16, v{12+i}")
        e(f"v_and_b32 v{p1[2*i+1]}, 0xffff0000, v{12+i}")
        e(f"v_lshlrev_b32 v{q[2*i]}, 16, v{16+i}")
        e(f"v_and_b32 v{q[2*i+1]}, 0xffff0000, v{16+i}")
    for i in range(8):
        e(f"v_add_f32 v{p0[i]}, v{p0[i]}, v{p1[i]}")
    for i in range(8):
        e(f"v_add_f32 v{p0[i]}, v{p0[i]}, v{q[i]}")
    for i in range(0, 8, 2):
        bf16r_pair(e, p0[i], p0[i + 1], t)
    for i in range(8):
        e(f"v_mul_f32 v{z[i]}, v{z[i]}, v{p0[i]}")
    for i in range(0, 8, 2):
        bf16r_pair(e, z[i], z[i + 1], t)
    e("s_waitcnt vmcnt(0)")
    for i in range(4):
        e(f"v_lshlrev_b32 v{q[2*i]}, 16, v{26+i}")
        e(f"v_and_b32 v{q[2*i+1]}, 0xffff0000, v{26+i}")
    for i in range(8):
        e(f"v_add_f32 v{z[i]}, v{z[i]}, v{q[i]}")
    for i in range(4):
        e(f"v_cvt_pk_bf16_f32 v{8+i}, v{z[2*i]}, v{z[2*i+1]}")
    e("buffer_store_dwordx2 v[8:9], v7, s[44:47], s50 offen")
    e("buffer_store_dwordx2 v[10:11], v7, s[44:47], s51 offen")
    stamp(e, 3); stamp(e, 4); stamp(e, 5); stamp_rt(e, 6); stamp_flush(e, 3, 7)
    e("L_k3_done:")
    e("s_endpgm")
    return 68, 0


def main(out):
    e = E()
    n0, n1, n2, n3 = "fnet_k0_kernel", "fnet_k1_kernel", "fnet_k2_kernel", "fnet_k3_kernel"
    v0 = gen_k0(e, n0)
    v1, l1 = gen_k1(e, n1)
    v2, l2 = gen_k2(e, n2)
    v3, l3 = gen_k3(e, n3)
    hdr = open("cdna_kernels/" + NAME + ".s.ref").read().split("; Override launch geometry")[0]
    s = hdr
    s += f"; @launch kernel={n0} grid=({K0_WGS},1,1) block=(256,1,1) lds=0\n"
    s += f"; @launch kernel={n1} grid=(256,1,1) block=(512,1,1) lds={l1}\n"
    s += f"; @launch kernel={n2} grid=(256,1,1) block=(512,1,1) lds={l2}\n"
    s += f"; @launch kernel={n3} grid=({K3_WGS},1,1) block=(256,1,1) lds={l3}\n"
    s += '.amdgcn_target "amdgcn-amd-amdhsa--gfx950"\n.text\n'
    s += e.text()
    s += '.section .rodata,"a"\n'
    for n, v in ((n0, v0), (n1, v1), (n2, v2), (n3, v3)):
        s += ".p2align 6\n" + kdesc(n, v)
    open(out, "w").write(s)
    print("vgprs", v0, v1, v2, v3, "lds", l1, l2, l3)


if __name__ == "__main__":
    if len(sys.argv) > 2 and sys.argv[2] == "instr":
        INSTR = True
    if len(sys.argv) > 2 and sys.argv[2] == "hstamp":
        INSTR = 2
    main(sys.argv[1] if len(sys.argv) > 1 else "cdna_kernels/" + NAME + ".s")
```

```python
import sys, math, os
EXP = os.environ.get('EXP', '')

NAME = "recurrent_scan__spectral_fnet__mixer_channel_mlp__prompt"

WS_XN = 0
WS_Y2 = 2 << 20
WS_WCAT = 4 << 20
WS_W2T = 8 << 20
WS_ABT = 10 << 20
WS_H = 16 << 20
WS_PART = 32 << 20
HS = 1408
F = 1376

KA_X, KA_WSRE, KA_WSIM, KA_WDRE, KA_WDIM, KA_BX, KA_W1, KA_B1, KA_W2, KA_B2, KA_OUT, KA_DBG, KA_WS = [8 * i for i in range(13)]


INSTR = False
ROT = False
TOUCH1 = int(os.environ.get('TOUCH1', '0'))
TOUCH2 = int(os.environ.get('TOUCH2', '1'))
TOUCH3 = int(os.environ.get('TOUCH3', '0'))
WS_DBG = 100 << 20
K3_SKIP = int(os.environ.get('K3_SKIP', '2'))


def stamp(e, k):
    if INSTR:
        e(f"s_memtime s[{70 + 2 * k}:{71 + 2 * k}]")


def stamp_rt(e, k):
    if INSTR:
        e(f"s_memrealtime s[{70 + 2 * k}:{71 + 2 * k}]")


def stamp_flush(e, kidx, n, wsbase=4):
    if not INSTR:
        return
    if INSTR == 2:
        e(f"s_load_dwordx2 s[96:97], s[0:1], {KA_DBG}")
        e("s_waitcnt lgkmcnt(0)")
        e(f"s_add_u32 s96, s96, {512 * (3 - kidx)}")
        e("s_addc_u32 s97, s97, 0")
        e("s_mov_b32 s98, 256")
        e("s_mov_b32 s99, 0x20000")
        e("v_mov_b32 v1, 0")
        e("v_mov_b32 v2, s70")
        e("v_mov_b32 v3, s82")
        e("s_and_b32 s100, s2, 7")
        e("v_or_b32 v4, s100, v0")
        e("v_cmp_eq_u32 vcc, 0, v4")
        e("s_and_saveexec_b64 s[100:101], vcc")
        e(f"buffer_atomic_umax v3, v1, s[96:99], 0 offen offset:{8 * kidx + 4}")
        e("v_or_b32 v4, s2, v0")
        e("v_cmp_eq_u32 vcc, 0, v4")
        e("s_and_saveexec_b64 s[100:101], vcc")
        e(f"buffer_store_dword v2, v1, s[96:99], 0 offen offset:{8 * kidx}")
        return
    e("s_waitcnt lgkmcnt(0)")
    e("s_getreg_b32 s84, hwreg(HW_REG_XCC_ID)")
    n = 8
    e(f"s_add_u32 s96, s{wsbase}, {WS_DBG + kidx * (1 << 18)}")
    e(f"s_addc_u32 s97, s{wsbase + 1}, 0")
    e(f"s_mov_b32 s98, {1 << 18}")
    e("s_mov_b32 s99, 0x20000")
    e("s_lshl_b32 s100, s2, 2")
    e("s_add_u32 s100, s100, s16")
    e("s_lshl_b32 s100, s100, 6")
    e("v_mov_b32 v1, 0")
    for k in range(n):
        e(f"v_mov_b32 v2, s{70 + 2 * k}")
        e(f"buffer_store_dword v2, v1, s[96:99], s100 offen offset:{4 * k}")


class E:
    def __init__(self):
        self.L = []

    def __call__(self, s):
        for line in s.split("\n"):
            line = line.strip()
            if line:
                self.L.append(("    " if not line.endswith(":") else "") + line)

    def text(self):
        return "\n".join(self.L) + "\n"


def f32bits(x):
    import struct
    return struct.unpack("<I", struct.pack("<f", x))[0]


def srd(e, d, base, off, nbytes):
    if off:
        e(f"s_add_u32 s{d}, s{base}, {off}")
        e(f"s_addc_u32 s{d+1}, s{base+1}, 0")
    else:
        e(f"s_mov_b32 s{d}, s{base}")
        e(f"s_mov_b32 s{d+1}, s{base+1}")
    e(f"s_mov_b32 s{d+2}, {nbytes}")
    e(f"s_mov_b32 s{d+3}, 0x20000")


def kernel_head(e, name):
    e(f".globl {name}")
    e(".p2align 8")
    e(f".type {name},@function")
    e(f"{name}:")


def kdesc(name, vgpr, sgpr=102):
    v = (vgpr + 3) // 4 * 4
    return f""".amdhsa_kernel {name}
  .amdhsa_next_free_vgpr {v}
  .amdhsa_next_free_sgpr {sgpr}
  .amdhsa_accum_offset {v}
  .amdhsa_group_segment_fixed_size 0
  .amdhsa_kernarg_size 104
  .amdhsa_user_sgpr_count 2
  .amdhsa_user_sgpr_kernarg_segment_ptr 1
  .amdhsa_system_sgpr_workgroup_id_x 1
.end_amdhsa_kernel
"""


NT0 = ' nt' if int(os.environ.get('NT0', '0')) else ''
NTT = ' nt' if int(os.environ.get('NTT', '0')) else ''
NTQ = ' nt' if int(os.environ.get('NTQ', '0')) else ''
CODEPF = int(os.environ.get('CODEPF', '0'))


def code_touch(e, tag, lo, hi, vt=40):
    e("s_getpc_b64 s[64:65]")
    e(f"L_{tag}_pc:")
    e(f"s_add_u32 s64, s64, {lo}-L_{tag}_pc")
    e("s_addc_u32 s65, s65, 0")
    e(f"v_and_b32 v{vt}, 255, v0")
    e(f"v_lshlrev_b32 v{vt}, 7, v{vt}")
    e(f"v_min_u32 v{vt}, {hi}-{lo}-4, v{vt}")
    e(f"global_load_dword v{vt+1}, v{vt}, s[64:65]")


def ws_touch(e, idreg, groups, tag, sw="s16", sre=40, sd=44):
    e(f"s_lshr_b32 s22, {idreg}, 3")
    e("s_cmp_ge_u32 s22, 24")
    e(f"s_cbranch_scc1 L_{tag}_notouch")
    srd(e, sd, sre, 0, 8 << 20)
    srd(e, sd + 4, sre + 2, 0, 8 << 20)
    e(f"s_and_b32 s23, {idreg}, 7")
    e("s_mul_i32 s23, s23, 6")
    e("s_lshr_b32 s31, s22, 2")
    e("s_add_u32 s23, s23, s31")
    e("s_and_b32 s22, s22, 3")
    e("s_lshl_b32 s22, s22, 2")
    e(f"s_add_u32 s22, s22, {sw}")
    e("s_lshl_b32 s22, s22, 3")
    e("s_and_b32 s31, s23, 15")
    e("s_lshl_b32 s31, s31, 7")
    e("s_add_u32 s22, s22, s31")
    e("s_lshr_b32 s23, s23, 4")
    e("s_mul_i32 s31, s23, 21")
    e("s_min_u32 s32, s23, 1")
    e("s_add_u32 s31, s31, s32")
    e("s_sub_u32 s32, 22, s32")
    e("s_add_u32 s32, s32, s31")
    e("v_and_b32 v1, 63, v0")
    e("v_lshrrev_b32 v2, 3, v1")
    e("v_add_u32 v2, s22, v2")
    e("v_lshlrev_b32 v2, 12, v2")
    e("v_and_b32 v3, 7, v1")
    e("v_add_u32 v3, s31, v3")
    e("v_mov_b32 v7, -1")
    for i in groups:
        e(f"v_add_u32 v4, {8 * i}, v3")
        e("v_lshl_add_u32 v5, v4, 7, v2")
        e("v_cmp_gt_u32 vcc, s32, v4")
        e("v_cndmask_b32 v5, v7, v5, vcc")
        e("v_add_u32 v6, 0xfffff000, v5")
        e("v_cndmask_b32 v6, v7, v6, vcc")
        e("v_cmp_gt_u32 vcc, 32, v4")
        e("v_cndmask_b32 v5, v7, v5, vcc")
        e("v_cndmask_b32 v6, v6, v7, vcc")
        e(f"buffer_load_dword v8, v5, s[{sd}:{sd+3}], 0 offen" + NTT)
        e(f"buffer_load_dword v8, v6, s[{sd+4}:{sd+7}], 0 offen" + NTT)
    e(f"L_{tag}_notouch:")


def wave_reduce(e, regs, sbase):
    for ctl in ("quad_perm:[1,0,3,2]", "quad_perm:[2,3,0,1]", "row_half_mirror", "row_mirror"):
        e("s_nop 1")
        for r in regs:
            e(f"v_add_f32_dpp v{r}, v{r}, v{r} {ctl} row_mask:0xf bank_mask:0xf")
    e("s_nop 1")
    for i, r in enumerate(regs):
        for j in range(4):
            e(f"v_readlane_b32 s{sbase + 4 * i + j}, v{r}, {16 * j}")
    e("s_nop 1")
    for i, r in enumerate(regs):
        e(f"v_mov_b32 v{r}, s{sbase + 4 * i}")
        for j in range(1, 4):
            e(f"v_add_f32 v{r}, s{sbase + 4 * i + j}, v{r}")


def bf16r_scalar(e, r):
    e(f"v_cvt_pk_bf16_f32 v{r}, v{r}, v{r}")
    e(f"v_lshlrev_b32 v{r}, 16, v{r}")


def ln_pass(e, Fr, T, P):
    rows = range(len(Fr))
    for R in rows:
        f, t = Fr[R], T[R]
        e(f"v_add_f32 v{t[0]}, v{f[0]}, v{f[1]}")
        for i in range(2, 8):
            e(f"v_add_f32 v{t[0]}, v{t[0]}, v{f[i]}")
    wave_reduce(e, [T[R][0] for R in rows], 40)
    for R in rows:
        f, t = Fr[R], T[R]
        e(f"v_mul_f32 v{t[0]}, {f32bits(1.0/512):#x}, v{t[0]}")
        e(f"v_sub_f32 v{t[2]}, v{f[0]}, v{t[0]}")
        e(f"v_mul_f32 v{t[1]}, v{t[2]}, v{t[2]}")
        for i in range(1, 8):
            e(f"v_sub_f32 v{t[2]}, v{f[i]}, v{t[0]}")
            e(f"v_fmac_f32 v{t[1]}, v{t[2]}, v{t[2]}")
    wave_reduce(e, [T[R][1] for R in rows], 40)
    for R in rows:
        f, t = Fr[R], T[R]
        e(f"v_mul_f32 v{t[1]}, {f32bits(1.0/512):#x}, v{t[1]}")
        bf16r_scalar(e, t[0])
        bf16r_scalar(e, t[1])
        e(f"v_add_f32 v{t[1]}, {f32bits(1e-5):#x}, v{t[1]}")
        bf16r_scalar(e, t[1])
        e(f"v_sqrt_f32 v{t[1]}, v{t[1]}")
        e("s_nop 0")
        bf16r_scalar(e, t[1])
        e(f"v_rcp_f32 v{t[2]}, v{t[1]}")
        e("s_nop 0")
        for i in range(0, 8, 2):
            e(f"v_sub_f32 v{f[i]}, v{f[i]}, v{t[0]}")
            e(f"v_sub_f32 v{f[i+1]}, v{f[i+1]}, v{t[0]}")
            e(f"v_cvt_pk_bf16_f32 v{t[3]}, v{f[i]}, v{f[i+1]}")
            e(f"v_lshlrev_b32 v{f[i]}, 16, v{t[3]}")
            e(f"v_and_b32 v{f[i+1]}, 0xffff0000, v{t[3]}")
            for j in (i, i + 1):
                e(f"v_mul_f32 v{t[3]}, v{f[j]}, v{t[2]}")
                e(f"v_fma_f32 v{t[4]}, -v{t[3]}, v{t[1]}, v{f[j]}")
                e(f"v_fma_f32 v{f[j]}, v{t[4]}, v{t[2]}, v{t[3]}")
            e(f"v_cvt_pk_bf16_f32 v{P[R][i//2]}, v{f[i]}, v{f[i+1]}")
            e(f"v_lshlrev_b32 v{f[i]}, 16, v{P[R][i//2]}")
            e(f"v_and_b32 v{f[i+1]}, 0xffff0000, v{P[R][i//2]}")


K0_LN, K0_T1, K0_T2, K0_CP = 256, 88, 88, 32
PF0 = [int(c) for c in os.environ.get('PF0', '')]
PF1 = [int(c) for c in os.environ.get('PF1', '')]
PF2 = [int(c) for c in os.environ.get('PF2', '')]
K0_PF = 192 if PF0 else 0
K0_WGS = K0_LN + K0_T1 + K0_T2 + K0_CP + K0_PF


def gen_k0(e, name):
    kernel_head(e, name)
    e(f"s_cmp_ge_u32 s2, {K0_WGS}")
    e(f"s_cbranch_scc1 L_k0_done")
    stamp_rt(e, 0); stamp(e, 1)
    e(f"s_load_dwordx2 s[4:5], s[0:1], {KA_X}")
    e(f"s_load_dwordx2 s[6:7], s[0:1], {KA_WS}")
    e(f"s_load_dwordx4 s[8:11], s[0:1], {KA_WDRE}")
    e(f"s_load_dwordx2 s[12:13], s[0:1], {KA_W1}")
    e(f"s_load_dwordx2 s[14:15], s[0:1], {KA_W2}")
    e("v_lshrrev_b32 v1, 6, v0")
    e("v_and_b32 v2, 63, v0")
    e("s_nop 0")
    e("v_readfirstlane_b32 s16, v1")
    e("s_waitcnt lgkmcnt(0)")
    srd(e, 24, 6, 0, 64 << 20)
    e(f"s_cmp_ge_u32 s2, {K0_LN}")
    e("s_cbranch_scc1 L_k0_notln")
    srd(e, 20, 4, 0, 2 << 20)
    e("s_lshl_b32 s17, s2, 3")
    e("s_lshl_b32 s18, s16, 1")
    e("s_add_u32 s17, s17, s18")
    e("s_lshl_b32 s17, s17, 10")
    e("v_lshlrev_b32 v3, 4, v2")
    e("v_add_u32 v3, s17, v3")
    e("buffer_load_dwordx4 v[4:7], v3, s[20:23], 0 offen" + NT0)
    e("buffer_load_dwordx4 v[8:11], v3, s[20:23], 0 offen offset:1024" + NT0)
    Fr = [list(range(16, 24)), list(range(24, 32))]
    T = [list(range(32, 38)), list(range(38, 44))]
    P = [list(range(44, 48)), list(range(48, 52))]
    e("s_waitcnt vmcnt(0)")
    stamp(e, 2)
    for R in range(2):
        for i in range(4):
            e(f"v_lshlrev_b32 v{Fr[R][2*i]}, 16, v{4+4*R+i}")
            e(f"v_and_b32 v{Fr[R][2*i+1]}, 0xffff0000, v{4+4*R+i}")
    ln_pass(e, Fr, T, P)
    e("buffer_store_dwordx4 v[44:47], v3, s[24:27], 0 offen")
    e("buffer_store_dwordx4 v[48:51], v3, s[24:27], 0 offen offset:1024")
    P2 = [list(range(52, 56)), list(range(56, 60))]
    ln_pass(e, Fr, T, P2)
    e(f"s_mov_b32 s17, {WS_Y2}")
    e("buffer_store_dwordx4 v[52:55], v3, s[24:27], s17 offen")
    e("buffer_store_dwordx4 v[56:59], v3, s[24:27], s17 offen offset:1024")
    stamp(e, 3); stamp(e, 4); stamp(e, 5); stamp_rt(e, 6); stamp_flush(e, 0, 7, wsbase=6)
    e("s_endpgm")
    e("L_k0_notln:")
    e(f"s_cmp_ge_u32 s2, {K0_LN + K0_T1}")
    e("s_cbranch_scc1 L_k0_nott1")
    srd(e, 20, 12, 0, 512 * F * 2)
    e(f"s_sub_u32 s17, s2, {K0_LN}")
    e("s_lshl_b32 s17, s17, 2")
    e("s_add_u32 s17, s17, s16")
    e("s_lshr_b32 s18, s17, 4")
    e("s_and_b32 s19, s17, 15")
    e("s_lshl_b32 s18, s18, 6")
    e("v_add_u32 v3, s18, v2")
    e("v_lshlrev_b32 v20, 1, v3")
    e(f"s_mul_i32 s28, s19, {32 * F * 2}")
    for i in range(32):
        e(f"buffer_load_ushort v{24 + i}, v20, s[20:23], s28 offen" + NT0)
        if i != 31:
            e(f"s_add_u32 s28, s28, {F * 2}")
    e("v_lshlrev_b32 v21, 10, v3")
    e("s_lshl_b32 s19, s19, 6")
    e(f"s_add_u32 s19, s19, {WS_WCAT + 1024 * 1024}")
    e(f"v_cmp_gt_u32 vcc, {F}, v3")
    e("s_and_saveexec_b64 s[30:31], vcc")
    e("s_cbranch_execz L_k0_done")
    e("s_waitcnt vmcnt(0)")
    stamp(e, 2)
    for i in range(16):
        e(f"v_lshl_or_b32 v{4 + i}, v{25 + 2 * i}, 16, v{24 + 2 * i}")
    for i in range(4):
        e(f"buffer_store_dwordx4 v[{4+4*i}:{7+4*i}], v21, s[24:27], s19 offen offset:{16*i}")
    stamp(e, 3); stamp(e, 4); stamp(e, 5); stamp_rt(e, 6); stamp_flush(e, 0, 7, wsbase=6)
    e("s_endpgm")
    e("L_k0_nott1:")
    e(f"s_cmp_ge_u32 s2, {K0_LN + K0_T1 + K0_T2}")
    e("s_cbranch_scc1 L_k0_cp")
    srd(e, 20, 14, 0, F * 512 * 2)
    e(f"s_sub_u32 s17, s2, {K0_LN + K0_T1}")
    e("s_lshl_b32 s17, s17, 2")
    e("s_add_u32 s17, s17, s16")
    e("s_and_b32 s18, s17, 7")
    e("s_lshr_b32 s19, s17, 3")
    e("s_lshl_b32 s18, s18, 6")
    e("v_add_u32 v3, s18, v2")
    e("v_lshlrev_b32 v20, 1, v3")
    e("s_lshl_b32 s28, s19, 15")
    for i in range(32):
        e(f"buffer_load_ushort v{24 + i}, v20, s[20:23], s28 offen" + NT0)
        if i != 31:
            e(f"s_add_u32 s28, s28, 1024")
    e(f"v_mul_u32_u24 v21, {HS * 2}, v3")
    e("s_lshl_b32 s19, s19, 6")
    e(f"s_add_u32 s19, s19, {WS_W2T}")
    e("s_waitcnt vmcnt(0)")
    stamp(e, 2)
    for i in range(16):
        e(f"v_lshl_or_b32 v{4 + i}, v{25 + 2 * i}, 16, v{24 + 2 * i}")
    for i in range(4):
        e(f"buffer_store_dwordx4 v[{4+4*i}:{7+4*i}], v21, s[24:27], s19 offen offset:{16*i}")
    stamp(e, 3); stamp(e, 4); stamp(e, 5); stamp_rt(e, 6); stamp_flush(e, 0, 7, wsbase=6)
    e("s_endpgm")
    e("L_k0_cp:")
    if PF0:
        e(f"s_cmp_lt_u32 s2, {K0_WGS - K0_PF}")
        e("s_cbranch_scc1 L_k0_cp2")
        e(f"s_load_dwordx4 s[40:43], s[0:1], {KA_WSRE}")
        e(f"s_sub_u32 s30, s2, {K0_WGS - K0_PF}")
        e("s_waitcnt lgkmcnt(0)")
        ws_touch(e, "s30", PF0, "k0")
        e("s_endpgm")
        e("L_k0_cp2:")
    if CODEPF:
        code_touch(e, "k0c", "fnet_k1_kernel", "L_k3_done")
    e(f"s_sub_u32 s17, s2, {K0_LN + K0_T1 + K0_T2}")
    e("s_lshl_b32 s17, s17, 2")
    e("s_add_u32 s17, s17, s16")
    e("s_cmp_ge_u32 s17, 64")
    e("s_cselect_b32 s20, s10, s8")
    e("s_cselect_b32 s21, s11, s9")
    e(f"s_mov_b32 s22, {512 * 1024}")
    e("s_mov_b32 s23, 0x20000")
    e("s_and_b32 s18, s17, 63")
    e("s_lshl_b32 s18, s18, 13")
    e("s_lshl_b32 s19, s17, 13")
    e(f"s_add_u32 s19, s19, {WS_WCAT}")
    e("v_lshlrev_b32 v3, 4, v2")
    for i in range(8):
        if i == 4:
            e("s_add_u32 s18, s18, 4096")
        e(f"buffer_load_dwordx4 v[{4+4*i}:{7+4*i}], v3, s[20:23], s18 offen offset:{1024*(i%4)}" + NT0)
    e("s_waitcnt vmcnt(0)")
    for i in range(8):
        if i == 4:
            e("s_add_u32 s19, s19, 4096")
        e(f"buffer_store_dwordx4 v[{4+4*i}:{7+4*i}], v3, s[24:27], s19 offen offset:{1024*(i%4)}")
    e("L_k0_done:")
    e("s_endpgm")
    return 64


class Gemm:
    def __init__(self, tag, TM, TN, WM, WN, nsteps, NS, strideP, strideQ, swap=False, vbase=16, dyn=False):
        self.tag = tag
        self.dyn = dyn
        self.TM, self.TN, self.WM, self.WN = TM, TN, WM, WN
        self.PR, self.QR = WM * TM * 16, WN * TN * 16
        self.nsteps, self.NS = nsteps, NS
        self.sP, self.sQ = strideP, strideQ
        self.swap = swap
        self.SS = (self.PR + self.QR) * 128
        assert (self.PR // 8) % 4 == 0 and (self.QR // 8) % 4 == 0
        self.DP, self.DQ = self.PR // 32, self.QR // 32
        self.D = self.DP + self.DQ
        v = vbase
        self.vDP, self.vDQ, self.vP0b, self.vP1b, self.vQ0b, self.vQ1b = range(v, v + 6)
        self.vPa0, self.vPa1, self.vQa0, self.vQa1 = range(v + 6, v + 10)
        v = (v + 10 + 3) // 4 * 4
        self.fP = [v, v + 4 * (TM + TN)]
        self.fQ = [v + 4 * TM, v + 4 * (TM + TN) + 4 * TM]
        v += 8 * (TM + TN)
        self.acc = v
        self.vend = v + 4 * TM * TN

    def accreg(self, tm, tn):
        return self.acc + 4 * (tm * self.TN + tn)

    def setup_prod(self, e):
        g = self
        e("v_and_b32 v1, 63, v0")
        e("v_lshrrev_b32 v2, 3, v1")
        e("v_lshrrev_b32 v3, 4, v1")
        e("s_and_b32 s22, s16, 1")
        e("s_lshl_b32 s22, s22, 2")
        e("v_add_u32 v3, s22, v3")
        e("v_and_b32 v4, 7, v1")
        e("v_xor_b32 v3, v3, v4")
        e("v_lshlrev_b32 v3, 4, v3")
        e("s_lshl_b32 s22, s16, 3")
        e("v_add_u32 v2, s22, v2")
        if g.dyn:
            e(f"v_mul_lo_u32 v4, v2, s56")
            e(f"v_add_u32 v{g.vDP}, v4, v3")
            e(f"v_mul_lo_u32 v4, v2, s57")
            e(f"v_add_u32 v{g.vDQ}, v4, v3")
            for jj in range(1, g.DP):
                e(f"s_mul_i32 s{57 + jj}, s56, {32 * jj}")
            for jj in range(1, g.DQ):
                e(f"s_mul_i32 s{61 + jj}, s57, {32 * jj}")
        else:
            e(f"s_mov_b32 s22, {g.sP}")
            e(f"v_mul_lo_u32 v4, v2, s22")
            e(f"v_add_u32 v{g.vDP}, v4, v3")
            e(f"s_mov_b32 s22, {g.sQ}")
            e(f"v_mul_lo_u32 v4, v2, s22")
            e(f"v_add_u32 v{g.vDQ}, v4, v3")
        e("s_lshl_b32 s19, s16, 10")
        if ROT:
            m = 1
            while m * 2 <= g.nsteps:
                m *= 2
            e("s_lshr_b32 s22, s2, 3")
            e(f"s_and_b32 s22, s22, {m - 1}")
            e(f"s_sub_u32 s54, {g.nsteps}, s22")
            e("s_lshl_b32 s22, s22, 7")
            e("s_add_u32 s17, s17, s22")
            e("s_add_u32 s18, s18, s22")

    def setup_cons(self, e):
        g = self
        e("v_and_b32 v1, 63, v0")
        e("v_and_b32 v2, 15, v1")
        e("v_lshrrev_b32 v3, 1, v2")
        e("v_lshrrev_b32 v4, 4, v1")
        e("v_xor_b32 v3, v3, v4")
        e("v_lshlrev_b32 v3, 4, v3")
        e("v_lshlrev_b32 v2, 7, v2")
        e("v_add_u32 v2, v2, v3")
        if g.WN == 2:
            e("s_lshr_b32 s22, s16, 1")
            e("s_and_b32 s23, s16, 1")
        elif g.WN == 1:
            e("s_mov_b32 s22, s16")
            e("s_mov_b32 s23, 0")
        elif g.WN == 4:
            e("s_mov_b32 s22, 0")
            e("s_mov_b32 s23, s16")
        e(f"s_mul_i32 s22, s22, {g.TM * 2048}")
        e(f"s_mul_i32 s23, s23, {g.TN * 2048}")
        e(f"s_add_u32 s23, s23, {g.PR * 128}")
        e(f"v_add_u32 v{g.vP0b}, s22, v2")
        e(f"v_xor_b32 v{g.vP1b}, 64, v{g.vP0b}")
        e(f"v_add_u32 v{g.vQ0b}, s23, v2")
        e(f"v_xor_b32 v{g.vQ1b}, 64, v{g.vQ0b}")
        e("s_mov_b32 s20, 0")

    def dma_ops(self):
        g = self
        ops = []
        for j in range(g.D):
            isP = j < g.DP
            jj = j if isP else j - g.DP
            stride = g.sP if isP else g.sQ
            sk = "s17" if isP else "s18"
            sr = "s[8:11]" if isP else "s[12:15]"
            vd = g.vDP if isP else g.vDQ
            grp = [f"s_add_u32 m0, s19, {j * 4096}"]
            if jj == 0:
                grp.append("s_nop 0")
                grp.append(f"buffer_load_dwordx4 v{vd}, {sr}, {sk} offen" + (NTQ if (g.dyn and not isP) else "") + " lds")
            else:
                if g.dyn:
                    grp.append(f"s_add_u32 s22, {sk}, s{(57 if isP else 61) + jj}")
                else:
                    grp.append(f"s_add_u32 s22, {sk}, {jj * 32 * stride}")
                grp.append(f"buffer_load_dwordx4 v{vd}, {sr}, s22 offen" + (NTQ if (g.dyn and not isP) else "") + " lds")
            ops.append(grp)
        adv = ["s_add_u32 s17, s17, 128", "s_add_u32 s18, s18, 128",
               f"s_add_u32 s19, s19, {g.SS}", f"s_sub_u32 s22, s19, {g.NS * g.SS}",
               f"s_cmp_ge_u32 s19, {g.NS * g.SS}", "s_cselect_b32 s19, s22, s19"]
        if ROT:
            adv += ["s_sub_u32 s54, s54, 1", "s_cmp_eq_u32 s54, 0",
                    f"s_cselect_b32 s22, {g.nsteps * 128}, 0",
                    "s_sub_u32 s17, s17, s22", "s_sub_u32 s18, s18, s22"]
        if g.dyn:
            adv += ["s_sub_u32 s54, s54, 1", "s_cmp_eq_u32 s54, 0",
                    "s_cselect_b32 s12, s42, s12", "s_cselect_b32 s13, s43, s13",
                    "s_cselect_b32 s22, 4096, 0", "s_sub_u32 s18, s18, s22"]
        ops.append(adv)
        return ops

    def frag_reads(self, st):
        g = self
        va, vq = (g.vPa0, g.vQa0) if st == 0 else (g.vPa1, g.vQa1)
        ops = []
        for i in range(max(g.TM, g.TN)):
            if i < g.TM:
                r = g.fP[st] + 4 * i
                ops.append([f"ds_read_b128 v[{r}:{r+3}], v{va} offset:{i * 2048}"])
            if i < g.TN:
                r = g.fQ[st] + 4 * i
                ops.append([f"ds_read_b128 v[{r}:{r+3}], v{vq} offset:{i * 2048}"])
        return ops

    def mfmas(self, st):
        g = self
        ops = []
        if EXP == "E2" and g.tag == "k2":
            return ["s_nop 0"]
        for tm in range(g.TM):
            for tn in range(g.TN):
                a = g.accreg(tm, tn)
                p = g.fP[st] + 4 * tm
                q = g.fQ[st] + 4 * tn
                if g.swap:
                    p, q = q, p
                ops.append(f"v_mfma_f32_16x16x32_bf16 v[{a}:{a+3}], v[{p}:{p+3}], v[{q}:{q+3}], v[{a}:{a+3}]")
        return ops

    @staticmethod
    def interleave(e, mf, fillers):
        n = len(mf)
        k = len(fillers)
        fi = 0
        for i, m in enumerate(mf):
            e(m)
            want = min(k, -(-(i + 1) * k // n)) if k > n else min(k, i + 1)
            while fi < want:
                for ins in fillers[fi]:
                    e(ins)
                fi += 1
        while fi < k:
            for ins in fillers[fi]:
                e(ins)
            fi += 1

    def step(self, e, last):
        g = self
        e(f"v_add_u32 v{g.vPa1}, s20, v{g.vP1b}")
        e(f"v_add_u32 v{g.vQa1}, s20, v{g.vQ1b}")
        e(f"s_add_u32 s20, s20, {g.SS}")
        e(f"s_cmp_eq_u32 s20, {g.NS * g.SS}")
        e("s_cselect_b32 s20, 0, s20")
        e("s_waitcnt lgkmcnt(0)")
        g.interleave(e, g.mfmas(0), g.frag_reads(1))
        if not last:
            e(f"v_add_u32 v{g.vPa0}, s20, v{g.vP0b}")
            e(f"v_add_u32 v{g.vQa0}, s20, v{g.vQ0b}")
            e(f"s_waitcnt lgkmcnt(0)")
            e("s_barrier")
        else:
            e("s_waitcnt lgkmcnt(0)")
        fill = []
        if not last:
            fill += g.frag_reads(0)
        g.interleave(e, g.mfmas(1), fill)

    def run(self, e, extra_loads=None, pre_cons=None, step_extras=None, post_prod=None):
        g = self
        e("s_cmp_eq_u32 s53, 0")
        e(f"s_cbranch_scc1 L_{g.tag}_cons")
        e("s_setprio 1")
        g.setup_prod(e)
        for s in range(g.NS - 1):
            for grp in g.dma_ops():
                for ins in grp:
                    e(ins)
        e(f"s_waitcnt vmcnt({(g.NS - 2) * g.D})")
        e("s_barrier")
        nmain = g.nsteps - g.NS + 1
        if g.dyn:
            e(f"s_sub_u32 s21, s55, {g.NS - 1}")
        else:
            e(f"s_mov_b32 s21, {nmain}")
        e(f"L_{g.tag}_ploop:")
        e(f"s_waitcnt vmcnt({(g.NS - 3) * g.D})")
        e("s_barrier")
        for grp in g.dma_ops():
            for ins in grp:
                e(ins)
        e("s_sub_u32 s21, s21, 1")
        e("s_cmp_lg_u32 s21, 0")
        e(f"s_cbranch_scc1 L_{g.tag}_ploop")
        for i in range(nmain, g.nsteps - 1):
            e(f"s_waitcnt vmcnt({(g.nsteps - 2 - i) * g.D})")
            e("s_barrier")
        if post_prod:
            post_prod()
        e("s_endpgm")
        e(f"L_{g.tag}_cons:")
        g.setup_cons(e)
        if pre_cons:
            pre_cons()
        if extra_loads:
            for grp in extra_loads:
                for ins in grp:
                    e(ins)
        for r in range(g.acc, g.vend):
            e(f"v_mov_b32 v{r}, 0")
        e(f"v_mov_b32 v{g.vPa0}, v{g.vP0b}")
        e(f"v_mov_b32 v{g.vQa0}, v{g.vQ0b}")
        e("s_barrier")
        stamp(e, 2)
        for grp in g.frag_reads(0):
            e(grp[0])
        npeel = 0
        if step_extras:
            npeel = len(step_extras)
            for grp in step_extras:
                for ins in grp:
                    e(ins)
                g.step(e, False)
        if g.dyn:
            e(f"s_sub_u32 s21, s55, {1 + npeel}")
        else:
            e(f"s_mov_b32 s21, {g.nsteps - 1 - npeel}")
        e(f"L_{g.tag}_loop:")
        g.step(e, False)
        e("s_sub_u32 s21, s21, 1")
        e("s_cmp_lg_u32 s21, 0")
        e(f"s_cbranch_scc1 L_{g.tag}_loop")
        stamp(e, 3)
        g.step(e, True)
        e("s_nop 15")
        stamp(e, 4)


def bf16r_pair(e, a, b, t):
    e(f"v_cvt_pk_bf16_f32 v{t}, v{a}, v{b}")
    e(f"v_lshlrev_b32 v{a}, 16, v{t}")
    e(f"v_and_b32 v{b}, 0xffff0000, v{t}")


def gen_k1(e, name):
    kernel_head(e, name)
    e("s_cmp_ge_u32 s2, 256")
    e("s_cbranch_scc1 L_k1_done")
    stamp_rt(e, 0)
    stamp(e, 1)
    e(f"s_load_dwordx2 s[4:5], s[0:1], {KA_WS}")
    e(f"s_load_dwordx2 s[6:7], s[0:1], {KA_B1}")
    e(f"s_load_dwordx4 s[40:43], s[0:1], {KA_WSRE}")
    e("v_lshrrev_b32 v1, 6, v0")
    e("s_nop 0")
    e("v_readfirstlane_b32 s16, v1")
    e("s_nop 3")
    e("s_lshr_b32 s53, s16, 2")
    e("s_and_b32 s16, s16, 3")
    e("s_and_b32 s28, s2, 7")
    e("s_lshr_b32 s29, s2, 3")
    e("s_lshl_b32 s28, s28, 1")
    e("s_lshr_b32 s30, s29, 4")
    e("s_add_u32 s28, s28, s30")
    e("s_and_b32 s29, s29, 15")
    e("s_waitcnt lgkmcnt(0)")
    srd(e, 12, 4, WS_WCAT, 2400 * 1024)
    srd(e, 24, 4, 0, 64 << 20)
    e("s_lshl_b32 s17, s28, 17")

    def pre_ws():
        if not TOUCH1:
            return
        e("s_cmp_ge_u32 s2, 128")
        e("s_cselect_b32 s44, s42, s40")
        e("s_cselect_b32 s45, s43, s41")
        e(f"s_mov_b32 s46, {8 << 20}")
        e("s_mov_b32 s47, 0x20000")
        e("s_and_b32 s22, s2, 127")
        e("s_lshl_b32 s22, s22, 16")
        e("s_lshl_b32 s23, s16, 14")
        e("s_add_u32 s22, s22, s23")
        e("v_and_b32 v1, 63, v0")
        e("v_lshlrev_b32 v8, 7, v1")
        e("buffer_load_dword v9, v8, s[44:47], s22 offen")
        e("s_add_u32 s22, s22, 8192")
        e("buffer_load_dword v9, v8, s[44:47], s22 offen")
    e("s_cmp_ge_u32 s29, 7")
    e("s_cbranch_scc1 L_k1_typeB")
    srd(e, 8, 4, WS_XN, 2 << 20)
    e("s_mul_i32 s30, s29, 160")
    e("s_min_u32 s30, s30, 864")
    e("s_lshl_b32 s18, s30, 10")
    gA = Gemm("k1a", 4, 5, 2, 2, 8, 4, 1024, 1024, swap=False)
    gA.run(e, pre_cons=pre_ws, post_prod=(lambda: ws_touch(e, "s2", PF1, "k1a")) if PF1 else None)
    e("v_and_b32 v1, 63, v0")
    e("v_and_b32 v2, 15, v1")
    e("v_lshrrev_b32 v3, 4, v1")
    e("v_lshlrev_b32 v2, 13, v2")
    e("v_lshlrev_b32 v3, 3, v3")
    e("v_add_u32 v2, v2, v3")
    e("s_lshr_b32 s22, s16, 1")
    e("s_and_b32 s23, s16, 1")
    e("s_lshl_b32 s31, s28, 8")
    e("s_lshl_b32 s22, s22, 7")
    e("s_add_u32 s31, s31, s22")
    e(f"s_add_u32 s31, s31, {WS_ABT}")
    e("s_mul_i32 s23, s23, 80")
    e("s_add_u32 s30, s30, s23")
    for tn in range(5):
        e(f"s_add_u32 s32, s30, {16 * tn}")
        e("s_and_b32 s33, s32, 511")
        e("s_lshl_b32 s33, s33, 13")
        e("s_lshr_b32 s32, s32, 9")
        e("s_cmp_eq_u32 s32, 0")
        e("s_cselect_b32 s34, 0, 0x80008000")
        e("s_lshl_b32 s32, s32, 12")
        e("s_add_u32 s32, s32, s33")
        e("s_add_u32 s32, s32, s31")
        for tm in range(4):
            a = gA.accreg(tm, tn)
            e(f"v_cvt_pk_bf16_f32 v{a}, v{a}, v{a+1}")
            e(f"v_cvt_pk_bf16_f32 v{a+1}, v{a+2}, v{a+3}")
            e(f"v_xor_b32 v{a}, s34, v{a}")
            e(f"v_xor_b32 v{a+1}, s34, v{a+1}")
            e(f"buffer_store_dwordx2 v[{a}:{a+1}], v2, s[24:27], s32 offen offset:{tm * 32}")
    stamp(e, 5); stamp_rt(e, 6); stamp_flush(e, 1, 7)
    e("s_endpgm")
    e("L_k1_typeB:")
    srd(e, 8, 4, WS_Y2, 2 << 20)
    srd(e, 36, 6, 0, F * 2)
    e("s_sub_u32 s30, s29, 7")
    e("s_mul_i32 s30, s30, 160")
    e(f"s_min_u32 s30, s30, {HS - 160}")
    e("s_add_u32 s18, s30, 1024")
    e("s_lshl_b32 s18, s18, 10")
    gB = Gemm("k1b", 4, 5, 2, 2, 8, 4, 1024, 1024, swap=True)
    vb = gB.vend
    vt = vb + 10
    e("s_and_b32 s23, s16, 1")
    e("s_mul_i32 s23, s23, 80")
    e("s_add_u32 s30, s30, s23")
    e("v_and_b32 v1, 63, v0")
    e("v_lshrrev_b32 v3, 4, v1")
    e("v_lshlrev_b32 v5, 3, v3")
    e("s_lshl_b32 s31, s30, 1")
    extra = [[f"buffer_load_dwordx2 v[{vb+2*tn}:{vb+2*tn+1}], v5, s[36:39], s31 offen offset:{32*tn}"] for tn in range(5)]
    gB.run(e, extra_loads=extra, pre_cons=pre_ws, post_prod=(lambda: ws_touch(e, "s2", PF1, "k1b")) if PF1 else None)
    e("s_waitcnt vmcnt(0)")
    e("v_and_b32 v1, 63, v0")
    e("v_and_b32 v2, 15, v1")
    e(f"v_mul_u32_u24 v2, {HS * 2}, v2")
    e("v_add_u32 v2, v2, v5")
    e("s_lshr_b32 s22, s16, 1")
    e("s_lshl_b32 s32, s28, 7")
    e("s_lshl_b32 s22, s22, 6")
    e("s_add_u32 s32, s32, s22")
    e(f"s_mul_i32 s32, s32, {HS * 2}")
    e("s_add_u32 s32, s32, s31")
    e(f"s_add_u32 s32, s32, {WS_H}")
    k1 = -2.0 * math.sqrt(2.0 / math.pi) * math.log2(math.e)
    k2 = k1 * 0.044715
    e(f"s_mov_b32 s34, {f32bits(k1):#x}")
    e(f"s_mov_b32 s35, {f32bits(k2):#x}")
    for tn in range(5):
        b = [vt + 0, vt + 1, vt + 2, vt + 3]
        e(f"v_lshlrev_b32 v{b[0]}, 16, v{vb+2*tn}")
        e(f"v_and_b32 v{b[1]}, 0xffff0000, v{vb+2*tn}")
        e(f"v_lshlrev_b32 v{b[2]}, 16, v{vb+2*tn+1}")
        e(f"v_and_b32 v{b[3]}, 0xffff0000, v{vb+2*tn+1}")
        for tm in range(4):
            a = gB.accreg(tm, tn)
            t = vt + 4
            q = [vt + 5, vt + 6, vt + 7, vt + 8]
            bf16r_pair(e, a, a + 1, t)
            bf16r_pair(e, a + 2, a + 3, t)
            for r in range(4):
                e(f"v_add_f32 v{a+r}, v{a+r}, v{b[r]}")
            bf16r_pair(e, a, a + 1, t)
            bf16r_pair(e, a + 2, a + 3, t)
            for r in range(4):
                e(f"v_mul_f32 v{q[r]}, v{a+r}, v{a+r}")
            for r in range(4):
                e(f"v_mov_b32 v{t}, s34")
                e(f"v_fma_f32 v{q[r]}, v{q[r]}, s35, v{t}")
            for r in range(4):
                e(f"v_mul_f32 v{q[r]}, v{q[r]}, v{a+r}")
            for r in range(4):
                e(f"v_exp_f32 v{q[r]}, v{q[r]}")
            e("s_nop 0")
            for r in range(4):
                e(f"v_add_f32 v{q[r]}, 1.0, v{q[r]}")
            for r in range(4):
                e(f"v_rcp_f32 v{q[r]}, v{q[r]}")
            e("s_nop 0")
            for r in range(4):
                e(f"v_mul_f32 v{q[r]}, v{q[r]}, v{a+r}")
            e(f"v_cvt_pk_bf16_f32 v{a}, v{q[0]}, v{q[1]}")
            e(f"v_cvt_pk_bf16_f32 v{a+1}, v{q[2]}, v{q[3]}")
            e(f"s_add_u32 s33, s32, {tm * 16 * HS * 2}")
            e(f"buffer_store_dwordx2 v[{a}:{a+1}], v2, s[24:27], s33 offen offset:{tn * 32}")
    stamp(e, 5); stamp_rt(e, 6); stamp_flush(e, 1, 7)
    e("L_k1_done:")
    e("s_endpgm")
    return max(gA.vend, vt + 9), max(gA.NS * gA.SS, gB.NS * gB.SS)


def gen_k2(e, name, NS=4):
    kernel_head(e, name)
    e("s_cmp_ge_u32 s2, 256")
    e("s_cbranch_scc1 L_k2_done")
    stamp_rt(e, 0)
    stamp(e, 1)
    e(f"s_load_dwordx2 s[4:5], s[0:1], {KA_WS}")
    e(f"s_load_dwordx4 s[40:43], s[0:1], {KA_WSRE}")
    e("v_lshrrev_b32 v1, 6, v0")
    e("s_nop 0")
    e("v_readfirstlane_b32 s16, v1")
    e("s_nop 3")
    e("s_lshr_b32 s53, s16, 2")
    e("s_and_b32 s16, s16, 3")
    e("s_and_b32 s28, s2, 7")
    e("s_lshr_b32 s31, s2, 3")
    e("s_and_b32 s30, s31, 3")
    e("s_lshr_b32 s31, s31, 2")
    e("s_waitcnt lgkmcnt(0)")
    srd(e, 24, 4, WS_PART, 8 << 20)
    e("s_cmp_ge_u32 s31, 6")
    e("s_cbranch_scc1 L_k2_g3")
    e("s_mul_i32 s28, s28, 6")
    e("s_add_u32 s28, s28, s31")
    e("s_and_b32 s29, s28, 15")
    e("s_lshr_b32 s28, s28, 4")
    srd(e, 8, 4, WS_ABT, 4 << 20)
    e("s_cmp_ge_u32 s28, 2")
    e("s_cselect_b32 s12, s42, s40")
    e("s_cselect_b32 s13, s43, s41")
    e(f"s_mov_b32 s14, {8 << 20}")
    e("s_mov_b32 s15, 0x20000")
    e("s_mul_i32 s22, s28, 21")
    e("s_min_u32 s23, s28, 1")
    e("s_add_u32 s22, s22, s23")
    e("s_sub_u32 s55, 22, s23")
    e("s_lshl_b32 s22, s22, 7")
    e("s_lshl_b32 s17, s30, 20")
    e("s_add_u32 s17, s17, s22")
    e("s_and_b32 s22, s22, 4095")
    e("s_lshl_b32 s18, s29, 19")
    e("s_add_u32 s18, s18, s22")
    e("s_cmp_eq_u32 s28, 1")
    e("s_cselect_b32 s54, 10, 1000")
    e("s_mov_b32 s56, 8192")
    e("s_mov_b32 s57, 4096")
    e("s_branch L_k2_go")
    e("L_k2_g3:")
    e("s_lshl_b32 s29, s28, 1")
    e("s_add_u32 s29, s29, s31")
    e("s_sub_u32 s29, s29, 6")
    e("s_mov_b32 s28, 3")
    srd(e, 8, 4, WS_W2T, 512 * HS * 2)
    srd(e, 12, 4, WS_H, 2048 * HS * 2)
    e(f"s_mul_i32 s17, s30, {128 * HS * 2}")
    e(f"s_mul_i32 s18, s29, {128 * HS * 2}")
    e("s_mov_b32 s55, 22")
    e("s_mov_b32 s54, 1000")
    e(f"s_mov_b32 s56, {HS * 2}")
    e(f"s_mov_b32 s57, {HS * 2}")
    e("L_k2_go:")
    g = Gemm("k2", 4, 4, 2, 2, 22, NS, 0, 0, dyn=True)
    g.run(e, pre_cons=(lambda: ws_touch(e, "s2", PF2, "k2")) if PF2 else None)
    e("v_and_b32 v1, 63, v0")
    e("v_lshlrev_b32 v2, 4, v1")
    e("s_lshr_b32 s22, s16, 1")
    e("s_and_b32 s23, s16, 1")
    e("s_lshl_b32 s31, s28, 5")
    e("s_lshl_b32 s32, s30, 3")
    e("s_add_u32 s31, s31, s32")
    e("s_lshl_b32 s22, s22, 2")
    e("s_add_u32 s31, s31, s22")
    e("s_lshl_b32 s31, s31, 6")
    e("s_lshl_b32 s32, s29, 2")
    e("s_add_u32 s31, s31, s32")
    e("s_lshl_b32 s23, s23, 1")
    e("s_add_u32 s31, s31, s23")
    e("s_lshl_b32 s31, s31, 10")
    for tm in range(4):
        e(f"s_add_u32 s32, s31, {tm * 64 * 1024}")
        for tp in range(2):
            a = g.accreg(tm, 2 * tp)
            for i in range(4):
                e(f"v_cvt_pk_bf16_f32 v{a+i}, v{a+2*i}, v{a+2*i+1}")
            e(f"buffer_store_dwordx4 v[{a}:{a+3}], v2, s[24:27], s32 offen offset:{tp * 1024}")
    stamp(e, 5); stamp_rt(e, 6); stamp_flush(e, 2, 7)
    e("L_k2_done:")
    e("s_endpgm")
    return g.vend, g.NS * g.SS


K3_WGS = 512


def gen_k3(e, name):
    kernel_head(e, name)
    e(f"s_cmp_ge_u32 s2, {K3_WGS}")
    e("s_cbranch_scc1 L_k3_done")
    stamp_rt(e, 0)
    stamp(e, 1)
    e(f"s_load_dwordx2 s[4:5], s[0:1], {KA_WS}")
    e(f"s_load_dwordx2 s[6:7], s[0:1], {KA_X}")
    e(f"s_load_dwordx4 s[40:43], s[0:1], {KA_B2}")
    e("v_lshrrev_b32 v1, 6, v0")
    e("v_and_b32 v2, 63, v0")
    e("s_nop 0")
    e("v_readfirstlane_b32 s16, v1")
    e("v_lshlrev_b32 v5, 4, v2")
    e("v_and_b32 v3, 15, v2")
    e("v_lshrrev_b32 v4, 4, v2")
    e("v_lshlrev_b32 v6, 3, v4")
    e("v_lshlrev_b32 v7, 10, v3")
    e("v_add_u32 v7, v7, v6")
    e("s_lshl_b32 s28, s2, 2")
    e("s_add_u32 s28, s28, s16")
    e("s_and_b32 s29, s28, 31")
    e("s_lshr_b32 s30, s28, 5")
    e("s_lshl_b32 s48, s29, 6")
    e("s_add_u32 s48, s48, s30")
    e("s_lshl_b32 s48, s48, 10")
    e("s_lshl_b32 s49, s29, 5")
    e("s_lshl_b32 s50, s30, 15")
    e("s_add_u32 s50, s50, s49")
    e("s_waitcnt lgkmcnt(0)")
    srd(e, 24, 4, WS_PART, 8 << 20)
    srd(e, 32, 6, 0, 2 << 20)
    srd(e, 36, 40, 0, 1024)
    srd(e, 44, 42, 0, 2 << 20)
    for sl in (3, 0, 1, 2):
        e(f"s_add_u32 s51, s48, {sl * 32 * 64 * 1024}")
        e(f"buffer_load_dwordx4 v[{8+4*sl}:{11+4*sl}], v5, s[24:27], s51 offen")
        if sl == 3:
            e("buffer_load_dwordx2 v[24:25], v6, s[36:39], s49 offen")
    e("s_add_u32 s51, s50, 16384")
    e("buffer_load_dwordx2 v[26:27], v7, s[32:35], s50 offen")
    e("buffer_load_dwordx2 v[28:29], v7, s[32:35], s51 offen")
    nl2e = -math.log2(math.e)
    e(f"s_mov_b32 s52, {f32bits(nl2e):#x}")
    b = [30, 31, 32, 33]
    t = 34
    z = list(range(36, 44))
    q = list(range(44, 52))
    p0 = list(range(52, 60))
    p1 = list(range(60, 68))
    e("s_waitcnt vmcnt(5)")
    stamp(e, 2)
    e(f"v_lshlrev_b32 v{b[0]}, 16, v24")
    e(f"v_and_b32 v{b[1]}, 0xffff0000, v24")
    e(f"v_lshlrev_b32 v{b[2]}, 16, v25")
    e(f"v_and_b32 v{b[3]}, 0xffff0000, v25")
    for i in range(4):
        e(f"v_lshlrev_b32 v{z[2*i]}, 16, v{20+i}")
        e(f"v_and_b32 v{z[2*i+1]}, 0xffff0000, v{20+i}")
    for i in range(8):
        e(f"v_add_f32 v{z[i]}, v{z[i]}, v{b[i%4]}")
    for i in range(0, 8, 2):
        bf16r_pair(e, z[i], z[i + 1], t)
    for i in range(8):
        e(f"v_mul_f32 v{q[i]}, s52, v{z[i]}")
    for i in range(8):
        e(f"v_exp_f32 v{q[i]}, v{q[i]}")
    e("s_nop 0")
    for i in range(8):
        e(f"v_add_f32 v{q[i]}, 1.0, v{q[i]}")
    for i in range(8):
        e(f"v_rcp_f32 v{q[i]}, v{q[i]}")
    e("s_nop 0")
    for i in range(8):
        e(f"v_mul_f32 v{z[i]}, v{q[i]}, v{z[i]}")
    for i in range(0, 8, 2):
        bf16r_pair(e, z[i], z[i + 1], t)
    e("s_waitcnt vmcnt(2)")
    for i in range(4):
        e(f"v_lshlrev_b32 v{p0[2*i]}, 16, v{8+i}")
        e(f"v_and_b32 v{p0[2*i+1]}, 0xffff0000, v{8+i}")
        e(f"v_lshlrev_b32 v{p1[2*i]}, 16, v{12+i}")
        e(f"v_and_b32 v{p1[2*i+1]}, 0xffff0000, v{12+i}")
        e(f"v_lshlrev_b32 v{q[2*i]}, 16, v{16+i}")
        e(f"v_and_b32 v{q[2*i+1]}, 0xffff0000, v{16+i}")
    for i in range(8):
        e(f"v_add_f32 v{p0[i]}, v{p0[i]}, v{p1[i]}")
    for i in range(8):
        e(f"v_add_f32 v{p0[i]}, v{p0[i]}, v{q[i]}")
    for i in range(0, 8, 2):
        bf16r_pair(e, p0[i], p0[i + 1], t)
    for i in range(8):
        e(f"v_mul_f32 v{z[i]}, v{z[i]}, v{p0[i]}")
    for i in range(0, 8, 2):
        bf16r_pair(e, z[i], z[i + 1], t)
    e("s_waitcnt vmcnt(0)")
    for i in range(4):
        e(f"v_lshlrev_b32 v{q[2*i]}, 16, v{26+i}")
        e(f"v_and_b32 v{q[2*i+1]}, 0xffff0000, v{26+i}")
    for i in range(8):
        e(f"v_add_f32 v{z[i]}, v{z[i]}, v{q[i]}")
    for i in range(4):
        e(f"v_cvt_pk_bf16_f32 v{8+i}, v{z[2*i]}, v{z[2*i+1]}")
    e("buffer_store_dwordx2 v[8:9], v7, s[44:47], s50 offen")
    e("buffer_store_dwordx2 v[10:11], v7, s[44:47], s51 offen")
    stamp(e, 3); stamp(e, 4); stamp(e, 5); stamp_rt(e, 6); stamp_flush(e, 3, 7)
    e("L_k3_done:")
    e("s_endpgm")
    return 68, 0


def main(out):
    e = E()
    n0, n1, n2, n3 = "fnet_k0_kernel", "fnet_k1_kernel", "fnet_k2_kernel", "fnet_k3_kernel"
    v0 = gen_k0(e, n0)
    v1, l1 = gen_k1(e, n1)
    v2, l2 = gen_k2(e, n2)
    v3, l3 = gen_k3(e, n3)
    hdr = open("cdna_kernels/" + NAME + ".s.ref").read().split("; Override launch geometry")[0]
    s = hdr
    s += f"; @launch kernel={n0} grid=({K0_WGS},1,1) block=(256,1,1) lds=0\n"
    s += f"; @launch kernel={n1} grid=(256,1,1) block=(512,1,1) lds={l1}\n"
    s += f"; @launch kernel={n2} grid=(256,1,1) block=(512,1,1) lds={l2}\n"
    s += f"; @launch kernel={n3} grid=({K3_WGS},1,1) block=(256,1,1) lds={l3}\n"
    s += '.amdgcn_target "amdgcn-amd-amdhsa--gfx950"\n.text\n'
    s += e.text()
    s += '.section .rodata,"a"\n'
    for n, v in ((n0, v0), (n1, v1), (n2, v2), (n3, v3)):
        s += ".p2align 6\n" + kdesc(n, v)
    open(out, "w").write(s)
    print("vgprs", v0, v1, v2, v3, "lds", l1, l2, l3)


if __name__ == "__main__":
    if len(sys.argv) > 2 and sys.argv[2] == "instr":
        INSTR = True
    if len(sys.argv) > 2 and sys.argv[2] == "hstamp":
        INSTR = 2
    main(sys.argv[1] if len(sys.argv) > 1 else "cdna_kernels/" + NAME + ".s")
```

```python
import sys, math, os
EXP = os.environ.get('EXP', '')

NAME = "recurrent_scan__spectral_fnet__mixer_channel_mlp__prompt"

WS_XN = 0
WS_Y2 = 2 << 20
WS_WCAT = 4 << 20
WS_W2T = 8 << 20
WS_ABT = 10 << 20
WS_H = 16 << 20
WS_PART = 32 << 20
HS = 1408
F = 1376

KA_X, KA_WSRE, KA_WSIM, KA_WDRE, KA_WDIM, KA_BX, KA_W1, KA_B1, KA_W2, KA_B2, KA_OUT, KA_DBG, KA_WS = [8 * i for i in range(13)]


INSTR = False
ROT = False
TOUCH1 = int(os.environ.get('TOUCH1', '0'))
TOUCH2 = int(os.environ.get('TOUCH2', '1'))
TOUCH3 = int(os.environ.get('TOUCH3', '0'))
WS_DBG = 100 << 20
K3_SKIP = int(os.environ.get('K3_SKIP', '2'))


def stamp(e, k):
    if INSTR:
        e(f"s_memtime s[{70 + 2 * k}:{71 + 2 * k}]")


def stamp_rt(e, k):
    if INSTR:
        e(f"s_memrealtime s[{70 + 2 * k}:{71 + 2 * k}]")


def stamp_flush(e, kidx, n, wsbase=4):
    if not INSTR:
        return
    if INSTR == 2:
        e(f"s_load_dwordx2 s[96:97], s[0:1], {KA_DBG}")
        e("s_waitcnt lgkmcnt(0)")
        e(f"s_add_u32 s96, s96, {512 * (3 - kidx)}")
        e("s_addc_u32 s97, s97, 0")
        e("s_mov_b32 s98, 256")
        e("s_mov_b32 s99, 0x20000")
        e("v_mov_b32 v1, 0")
        e("v_mov_b32 v2, s70")
        e("v_mov_b32 v3, s82")
        e("s_and_b32 s100, s2, 7")
        e("v_or_b32 v4, s100, v0")
        e("v_cmp_eq_u32 vcc, 0, v4")
        e("s_and_saveexec_b64 s[100:101], vcc")
        e(f"buffer_atomic_umax v3, v1, s[96:99], 0 offen offset:{8 * kidx + 4}")
        e("v_or_b32 v4, s2, v0")
        e("v_cmp_eq_u32 vcc, 0, v4")
        e("s_and_saveexec_b64 s[100:101], vcc")
        e(f"buffer_store_dword v2, v1, s[96:99], 0 offen offset:{8 * kidx}")
        return
    e("s_waitcnt lgkmcnt(0)")
    e("s_getreg_b32 s84, hwreg(HW_REG_XCC_ID)")
    n = 8
    e(f"s_add_u32 s96, s{wsbase}, {WS_DBG + kidx * (1 << 18)}")
    e(f"s_addc_u32 s97, s{wsbase + 1}, 0")
    e(f"s_mov_b32 s98, {1 << 18}")
    e("s_mov_b32 s99, 0x20000")
    e("s_lshl_b32 s100, s2, 2")
    e("s_add_u32 s100, s100, s16")
    e("s_lshl_b32 s100, s100, 6")
    e("v_mov_b32 v1, 0")
    for k in range(n):
        e(f"v_mov_b32 v2, s{70 + 2 * k}")
        e(f"buffer_store_dword v2, v1, s[96:99], s100 offen offset:{4 * k}")


class E:
    def __init__(self):
        self.L = []

    def __call__(self, s):
        for line in s.split("\n"):
            line = line.strip()
            if line:
                self.L.append(("    " if not line.endswith(":") else "") + line)

    def text(self):
        return "\n".join(self.L) + "\n"


def f32bits(x):
    import struct
    return struct.unpack("<I", struct.pack("<f", x))[0]


def srd(e, d, base, off, nbytes):
    if off:
        e(f"s_add_u32 s{d}, s{base}, {off}")
        e(f"s_addc_u32 s{d+1}, s{base+1}, 0")
    else:
        e(f"s_mov_b32 s{d}, s{base}")
        e(f"s_mov_b32 s{d+1}, s{base+1}")
    e(f"s_mov_b32 s{d+2}, {nbytes}")
    e(f"s_mov_b32 s{d+3}, 0x20000")


def kernel_head(e, name):
    e(f".globl {name}")
    e(".p2align 8")
    e(f".type {name},@function")
    e(f"{name}:")


def kdesc(name, vgpr, sgpr=102):
    v = (vgpr + 3) // 4 * 4
    return f""".amdhsa_kernel {name}
  .amdhsa_next_free_vgpr {v}
  .amdhsa_next_free_sgpr {sgpr}
  .amdhsa_accum_offset {v}
  .amdhsa_group_segment_fixed_size 0
  .amdhsa_kernarg_size 104
  .amdhsa_user_sgpr_count 2
  .amdhsa_user_sgpr_kernarg_segment_ptr 1
  .amdhsa_system_sgpr_workgroup_id_x 1
.end_amdhsa_kernel
"""


NT0 = ' nt' if int(os.environ.get('NT0', '0')) else ''
NTT = ' nt' if int(os.environ.get('NTT', '0')) else ''
NTQ = ' nt' if int(os.environ.get('NTQ', '0')) else ''
BARFIRST = int(os.environ.get('BARFIRST', '1'))
CODEPF = int(os.environ.get('CODEPF', '0'))


def code_touch(e, tag, lo, hi, vt=40):
    e("s_getpc_b64 s[64:65]")
    e(f"L_{tag}_pc:")
    e(f"s_add_u32 s64, s64, {lo}-L_{tag}_pc")
    e("s_addc_u32 s65, s65, 0")
    e(f"v_and_b32 v{vt}, 255, v0")
    e(f"v_lshlrev_b32 v{vt}, 7, v{vt}")
    e(f"v_min_u32 v{vt}, {hi}-{lo}-4, v{vt}")
    e(f"global_load_dword v{vt+1}, v{vt}, s[64:65]")


def ws_touch(e, idreg, groups, tag, sw="s16", sre=40, sd=44):
    e(f"s_lshr_b32 s22, {idreg}, 3")
    e("s_cmp_ge_u32 s22, 24")
    e(f"s_cbranch_scc1 L_{tag}_notouch")
    srd(e, sd, sre, 0, 8 << 20)
    srd(e, sd + 4, sre + 2, 0, 8 << 20)
    e(f"s_and_b32 s23, {idreg}, 7")
    e("s_mul_i32 s23, s23, 6")
    e("s_lshr_b32 s31, s22, 2")
    e("s_add_u32 s23, s23, s31")
    e("s_and_b32 s22, s22, 3")
    e("s_lshl_b32 s22, s22, 2")
    e(f"s_add_u32 s22, s22, {sw}")
    e("s_lshl_b32 s22, s22, 3")
    e("s_and_b32 s31, s23, 15")
    e("s_lshl_b32 s31, s31, 7")
    e("s_add_u32 s22, s22, s31")
    e("s_lshr_b32 s23, s23, 4")
    e("s_mul_i32 s31, s23, 21")
    e("s_min_u32 s32, s23, 1")
    e("s_add_u32 s31, s31, s32")
    e("s_sub_u32 s32, 22, s32")
    e("s_add_u32 s32, s32, s31")
    e("v_and_b32 v1, 63, v0")
    e("v_lshrrev_b32 v2, 3, v1")
    e("v_add_u32 v2, s22, v2")
    e("v_lshlrev_b32 v2, 12, v2")
    e("v_and_b32 v3, 7, v1")
    e("v_add_u32 v3, s31, v3")
    e("v_mov_b32 v7, -1")
    for i in groups:
        e(f"v_add_u32 v4, {8 * i}, v3")
        e("v_lshl_add_u32 v5, v4, 7, v2")
        e("v_cmp_gt_u32 vcc, s32, v4")
        e("s_nop 1")
        e("v_cndmask_b32 v5, v7, v5, vcc")
        e("v_add_u32 v6, 0xfffff000, v5")
        e("v_cndmask_b32 v6, v7, v6, vcc")
        e("v_cmp_gt_u32 vcc, 32, v4")
        e("s_nop 1")
        e("v_cndmask_b32 v5, v7, v5, vcc")
        e("v_cndmask_b32 v6, v6, v7, vcc")
        e(f"buffer_load_dword v8, v5, s[{sd}:{sd+3}], 0 offen" + NTT)
        e(f"buffer_load_dword v8, v6, s[{sd+4}:{sd+7}], 0 offen" + NTT)
    e(f"L_{tag}_notouch:")


def wave_reduce(e, regs, sbase):
    for ctl in ("quad_perm:[1,0,3,2]", "quad_perm:[2,3,0,1]", "row_half_mirror", "row_mirror"):
        e("s_nop 1")
        for r in regs:
            e(f"v_add_f32_dpp v{r}, v{r}, v{r} {ctl} row_mask:0xf bank_mask:0xf")
    e("s_nop 1")
    for i, r in enumerate(regs):
        for j in range(4):
            e(f"v_readlane_b32 s{sbase + 4 * i + j}, v{r}, {16 * j}")
    e("s_nop 1")
    for i, r in enumerate(regs):
        e(f"v_mov_b32 v{r}, s{sbase + 4 * i}")
        for j in range(1, 4):
            e(f"v_add_f32 v{r}, s{sbase + 4 * i + j}, v{r}")


def bf16r_scalar(e, r):
    e(f"v_cvt_pk_bf16_f32 v{r}, v{r}, v{r}")
    e(f"v_lshlrev_b32 v{r}, 16, v{r}")


def ln_pass(e, Fr, T, P):
    rows = range(len(Fr))
    for R in rows:
        f, t = Fr[R], T[R]
        e(f"v_add_f32 v{t[0]}, v{f[0]}, v{f[1]}")
        for i in range(2, 8):
            e(f"v_add_f32 v{t[0]}, v{t[0]}, v{f[i]}")
    wave_reduce(e, [T[R][0] for R in rows], 40)
    for R in rows:
        f, t = Fr[R], T[R]
        e(f"v_mul_f32 v{t[0]}, {f32bits(1.0/512):#x}, v{t[0]}")
        e(f"v_sub_f32 v{t[2]}, v{f[0]}, v{t[0]}")
        e(f"v_mul_f32 v{t[1]}, v{t[2]}, v{t[2]}")
        for i in range(1, 8):
            e(f"v_sub_f32 v{t[2]}, v{f[i]}, v{t[0]}")
            e(f"v_fmac_f32 v{t[1]}, v{t[2]}, v{t[2]}")
    wave_reduce(e, [T[R][1] for R in rows], 40)
    for R in rows:
        f, t = Fr[R], T[R]
        e(f"v_mul_f32 v{t[1]}, {f32bits(1.0/512):#x}, v{t[1]}")
        bf16r_scalar(e, t[0])
        bf16r_scalar(e, t[1])
        e(f"v_add_f32 v{t[1]}, {f32bits(1e-5):#x}, v{t[1]}")
        bf16r_scalar(e, t[1])
        e(f"v_sqrt_f32 v{t[1]}, v{t[1]}")
        e("s_nop 0")
        bf16r_scalar(e, t[1])
        e(f"v_rcp_f32 v{t[2]}, v{t[1]}")
        e("s_nop 0")
        for i in range(0, 8, 2):
            e(f"v_sub_f32 v{f[i]}, v{f[i]}, v{t[0]}")
            e(f"v_sub_f32 v{f[i+1]}, v{f[i+1]}, v{t[0]}")
            e(f"v_cvt_pk_bf16_f32 v{t[3]}, v{f[i]}, v{f[i+1]}")
            e(f"v_lshlrev_b32 v{f[i]}, 16, v{t[3]}")
            e(f"v_and_b32 v{f[i+1]}, 0xffff0000, v{t[3]}")
            for j in (i, i + 1):
                e(f"v_mul_f32 v{t[3]}, v{f[j]}, v{t[2]}")
                e(f"v_fma_f32 v{t[4]}, -v{t[3]}, v{t[1]}, v{f[j]}")
                e(f"v_fma_f32 v{f[j]}, v{t[4]}, v{t[2]}, v{t[3]}")
            e(f"v_cvt_pk_bf16_f32 v{P[R][i//2]}, v{f[i]}, v{f[i+1]}")
            e(f"v_lshlrev_b32 v{f[i]}, 16, v{P[R][i//2]}")
            e(f"v_and_b32 v{f[i+1]}, 0xffff0000, v{P[R][i//2]}")


K0_LN, K0_T1, K0_T2, K0_CP = 256, 88, 88, 32
PF0 = [int(c) for c in os.environ.get('PF0', '')]
PF1 = [int(c) for c in os.environ.get('PF1', '')]
PF2 = [int(c) for c in os.environ.get('PF2', '')]
K0_PF = 192 if PF0 else 0
K0_WGS = K0_LN + K0_T1 + K0_T2 + K0_CP + K0_PF


def gen_k0(e, name):
    kernel_head(e, name)
    e(f"s_cmp_ge_u32 s2, {K0_WGS}")
    e(f"s_cbranch_scc1 L_k0_done")
    stamp_rt(e, 0); stamp(e, 1)
    e(f"s_load_dwordx2 s[4:5], s[0:1], {KA_X}")
    e(f"s_load_dwordx2 s[6:7], s[0:1], {KA_WS}")
    e(f"s_load_dwordx4 s[8:11], s[0:1], {KA_WDRE}")
    e(f"s_load_dwordx2 s[12:13], s[0:1], {KA_W1}")
    e(f"s_load_dwordx2 s[14:15], s[0:1], {KA_W2}")
    e("v_lshrrev_b32 v1, 6, v0")
    e("v_and_b32 v2, 63, v0")
    e("s_nop 0")
    e("v_readfirstlane_b32 s16, v1")
    e("s_waitcnt lgkmcnt(0)")
    srd(e, 24, 6, 0, 64 << 20)
    e(f"s_cmp_ge_u32 s2, {K0_LN}")
    e("s_cbranch_scc1 L_k0_notln")
    srd(e, 20, 4, 0, 2 << 20)
    e("s_lshl_b32 s17, s2, 3")
    e("s_lshl_b32 s18, s16, 1")
    e("s_add_u32 s17, s17, s18")
    e("s_lshl_b32 s17, s17, 10")
    e("v_lshlrev_b32 v3, 4, v2")
    e("v_add_u32 v3, s17, v3")
    e("buffer_load_dwordx4 v[4:7], v3, s[20:23], 0 offen" + NT0)
    e("buffer_load_dwordx4 v[8:11], v3, s[20:23], 0 offen offset:1024" + NT0)
    Fr = [list(range(16, 24)), list(range(24, 32))]
    T = [list(range(32, 38)), list(range(38, 44))]
    P = [list(range(44, 48)), list(range(48, 52))]
    e("s_waitcnt vmcnt(0)")
    stamp(e, 2)
    for R in range(2):
        for i in range(4):
            e(f"v_lshlrev_b32 v{Fr[R][2*i]}, 16, v{4+4*R+i}")
            e(f"v_and_b32 v{Fr[R][2*i+1]}, 0xffff0000, v{4+4*R+i}")
    ln_pass(e, Fr, T, P)
    e("buffer_store_dwordx4 v[44:47], v3, s[24:27], 0 offen")
    e("buffer_store_dwordx4 v[48:51], v3, s[24:27], 0 offen offset:1024")
    P2 = [list(range(52, 56)), list(range(56, 60))]
    ln_pass(e, Fr, T, P2)
    e(f"s_mov_b32 s17, {WS_Y2}")
    e("buffer_store_dwordx4 v[52:55], v3, s[24:27], s17 offen")
    e("buffer_store_dwordx4 v[56:59], v3, s[24:27], s17 offen offset:1024")
    stamp(e, 3); stamp(e, 4); stamp(e, 5); stamp_rt(e, 6); stamp_flush(e, 0, 7, wsbase=6)
    e("s_endpgm")
    e("L_k0_notln:")
    e(f"s_cmp_ge_u32 s2, {K0_LN + K0_T1}")
    e("s_cbranch_scc1 L_k0_nott1")
    srd(e, 20, 12, 0, 512 * F * 2)
    e(f"s_sub_u32 s17, s2, {K0_LN}")
    e("s_lshl_b32 s17, s17, 2")
    e("s_add_u32 s17, s17, s16")
    e("s_lshr_b32 s18, s17, 4")
    e("s_and_b32 s19, s17, 15")
    e("s_lshl_b32 s18, s18, 6")
    e("v_add_u32 v3, s18, v2")
    e("v_lshlrev_b32 v20, 1, v3")
    e(f"s_mul_i32 s28, s19, {32 * F * 2}")
    for i in range(32):
        e(f"buffer_load_ushort v{24 + i}, v20, s[20:23], s28 offen" + NT0)
        if i != 31:
            e(f"s_add_u32 s28, s28, {F * 2}")
    e("v_lshlrev_b32 v21, 10, v3")
    e("s_lshl_b32 s19, s19, 6")
    e(f"s_add_u32 s19, s19, {WS_WCAT + 1024 * 1024}")
    e(f"v_cmp_gt_u32 vcc, {F}, v3")
    e("s_and_saveexec_b64 s[30:31], vcc")
    e("s_cbranch_execz L_k0_done")
    e("s_waitcnt vmcnt(0)")
    stamp(e, 2)
    for i in range(16):
        e(f"v_lshl_or_b32 v{4 + i}, v{25 + 2 * i}, 16, v{24 + 2 * i}")
    for i in range(4):
        e(f"buffer_store_dwordx4 v[{4+4*i}:{7+4*i}], v21, s[24:27], s19 offen offset:{16*i}")
    stamp(e, 3); stamp(e, 4); stamp(e, 5); stamp_rt(e, 6); stamp_flush(e, 0, 7, wsbase=6)
    e("s_endpgm")
    e("L_k0_nott1:")
    e(f"s_cmp_ge_u32 s2, {K0_LN + K0_T1 + K0_T2}")
    e("s_cbranch_scc1 L_k0_cp")
    srd(e, 20, 14, 0, F * 512 * 2)
    e(f"s_sub_u32 s17, s2, {K0_LN + K0_T1}")
    e("s_lshl_b32 s17, s17, 2")
    e("s_add_u32 s17, s17, s16")
    e("s_and_b32 s18, s17, 7")
    e("s_lshr_b32 s19, s17, 3")
    e("s_lshl_b32 s18, s18, 6")
    e("v_add_u32 v3, s18, v2")
    e("v_lshlrev_b32 v20, 1, v3")
    e("s_lshl_b32 s28, s19, 15")
    for i in range(32):
        e(f"buffer_load_ushort v{24 + i}, v20, s[20:23], s28 offen" + NT0)
        if i != 31:
            e(f"s_add_u32 s28, s28, 1024")
    e(f"v_mul_u32_u24 v21, {HS * 2}, v3")
    e("s_lshl_b32 s19, s19, 6")
    e(f"s_add_u32 s19, s19, {WS_W2T}")
    e("s_waitcnt vmcnt(0)")
    stamp(e, 2)
    for i in range(16):
        e(f"v_lshl_or_b32 v{4 + i}, v{25 + 2 * i}, 16, v{24 + 2 * i}")
    for i in range(4):
        e(f"buffer_store_dwordx4 v[{4+4*i}:{7+4*i}], v21, s[24:27], s19 offen offset:{16*i}")
    stamp(e, 3); stamp(e, 4); stamp(e, 5); stamp_rt(e, 6); stamp_flush(e, 0, 7, wsbase=6)
    e("s_endpgm")
    e("L_k0_cp:")
    if PF0:
        e(f"s_cmp_lt_u32 s2, {K0_WGS - K0_PF}")
        e("s_cbranch_scc1 L_k0_cp2")
        e(f"s_load_dwordx4 s[40:43], s[0:1], {KA_WSRE}")
        e(f"s_sub_u32 s30, s2, {K0_WGS - K0_PF}")
        e("s_waitcnt lgkmcnt(0)")
        ws_touch(e, "s30", PF0, "k0")
        e("s_endpgm")
        e("L_k0_cp2:")
    if CODEPF:
        code_touch(e, "k0c", "fnet_k1_kernel", "L_k3_done")
    e(f"s_sub_u32 s17, s2, {K0_LN + K0_T1 + K0_T2}")
    e("s_lshl_b32 s17, s17, 2")
    e("s_add_u32 s17, s17, s16")
    e("s_cmp_ge_u32 s17, 64")
    e("s_cselect_b32 s20, s10, s8")
    e("s_cselect_b32 s21, s11, s9")
    e(f"s_mov_b32 s22, {512 * 1024}")
    e("s_mov_b32 s23, 0x20000")
    e("s_and_b32 s18, s17, 63")
    e("s_lshl_b32 s18, s18, 13")
    e("s_lshl_b32 s19, s17, 13")
    e(f"s_add_u32 s19, s19, {WS_WCAT}")
    e("v_lshlrev_b32 v3, 4, v2")
    for i in range(8):
        if i == 4:
            e("s_add_u32 s18, s18, 4096")
        e(f"buffer_load_dwordx4 v[{4+4*i}:{7+4*i}], v3, s[20:23], s18 offen offset:{1024*(i%4)}" + NT0)
    e("s_waitcnt vmcnt(0)")
    for i in range(8):
        if i == 4:
            e("s_add_u32 s19, s19, 4096")
        e(f"buffer_store_dwordx4 v[{4+4*i}:{7+4*i}], v3, s[24:27], s19 offen offset:{1024*(i%4)}")
    e("L_k0_done:")
    e("s_endpgm")
    return 64


class Gemm:
    def __init__(self, tag, TM, TN, WM, WN, nsteps, NS, strideP, strideQ, swap=False, vbase=16, dyn=False):
        self.tag = tag
        self.dyn = dyn
        self.TM, self.TN, self.WM, self.WN = TM, TN, WM, WN
        self.PR, self.QR = WM * TM * 16, WN * TN * 16
        self.nsteps, self.NS = nsteps, NS
        self.sP, self.sQ = strideP, strideQ
        self.swap = swap
        self.SS = (self.PR + self.QR) * 128
        assert (self.PR // 8) % 4 == 0 and (self.QR // 8) % 4 == 0
        self.DP, self.DQ = self.PR // 32, self.QR // 32
        self.D = self.DP + self.DQ
        v = vbase
        self.vDP, self.vDQ, self.vP0b, self.vP1b, self.vQ0b, self.vQ1b = range(v, v + 6)
        self.vPa0, self.vPa1, self.vQa0, self.vQa1 = range(v + 6, v + 10)
        v = (v + 10 + 3) // 4 * 4
        self.fP = [v, v + 4 * (TM + TN)]
        self.fQ = [v + 4 * TM, v + 4 * (TM + TN) + 4 * TM]
        v += 8 * (TM + TN)
        self.acc = v
        self.vend = v + 4 * TM * TN

    def accreg(self, tm, tn):
        return self.acc + 4 * (tm * self.TN + tn)

    def setup_prod(self, e):
        g = self
        e("v_and_b32 v1, 63, v0")
        e("v_lshrrev_b32 v2, 3, v1")
        e("v_lshrrev_b32 v3, 4, v1")
        e("s_and_b32 s22, s16, 1")
        e("s_lshl_b32 s22, s22, 2")
        e("v_add_u32 v3, s22, v3")
        e("v_and_b32 v4, 7, v1")
        e("v_xor_b32 v3, v3, v4")
        e("v_lshlrev_b32 v3, 4, v3")
        e("s_lshl_b32 s22, s16, 3")
        e("v_add_u32 v2, s22, v2")
        if g.dyn:
            e(f"v_mul_lo_u32 v4, v2, s56")
            e(f"v_add_u32 v{g.vDP}, v4, v3")
            e(f"v_mul_lo_u32 v4, v2, s57")
            e(f"v_add_u32 v{g.vDQ}, v4, v3")
            for jj in range(1, g.DP):
                e(f"s_mul_i32 s{57 + jj}, s56, {32 * jj}")
            for jj in range(1, g.DQ):
                e(f"s_mul_i32 s{61 + jj}, s57, {32 * jj}")
        else:
            e(f"s_mov_b32 s22, {g.sP}")
            e(f"v_mul_lo_u32 v4, v2, s22")
            e(f"v_add_u32 v{g.vDP}, v4, v3")
            e(f"s_mov_b32 s22, {g.sQ}")
            e(f"v_mul_lo_u32 v4, v2, s22")
            e(f"v_add_u32 v{g.vDQ}, v4, v3")
        e("s_lshl_b32 s19, s16, 10")
        if ROT:
            m = 1
            while m * 2 <= g.nsteps:
                m *= 2
            e("s_lshr_b32 s22, s2, 3")
            e(f"s_and_b32 s22, s22, {m - 1}")
            e(f"s_sub_u32 s54, {g.nsteps}, s22")
            e("s_lshl_b32 s22, s22, 7")
            e("s_add_u32 s17, s17, s22")
            e("s_add_u32 s18, s18, s22")

    def setup_cons(self, e):
        g = self
        e("v_and_b32 v1, 63, v0")
        e("v_and_b32 v2, 15, v1")
        e("v_lshrrev_b32 v3, 1, v2")
        e("v_lshrrev_b32 v4, 4, v1")
        e("v_xor_b32 v3, v3, v4")
        e("v_lshlrev_b32 v3, 4, v3")
        e("v_lshlrev_b32 v2, 7, v2")
        e("v_add_u32 v2, v2, v3")
        if g.WN == 2:
            e("s_lshr_b32 s22, s16, 1")
            e("s_and_b32 s23, s16, 1")
        elif g.WN == 1:
            e("s_mov_b32 s22, s16")
            e("s_mov_b32 s23, 0")
        elif g.WN == 4:
            e("s_mov_b32 s22, 0")
            e("s_mov_b32 s23, s16")
        e(f"s_mul_i32 s22, s22, {g.TM * 2048}")
        e(f"s_mul_i32 s23, s23, {g.TN * 2048}")
        e(f"s_add_u32 s23, s23, {g.PR * 128}")
        e(f"v_add_u32 v{g.vP0b}, s22, v2")
        e(f"v_xor_b32 v{g.vP1b}, 64, v{g.vP0b}")
        e(f"v_add_u32 v{g.vQ0b}, s23, v2")
        e(f"v_xor_b32 v{g.vQ1b}, 64, v{g.vQ0b}")
        e("s_mov_b32 s20, 0")

    def dma_ops(self):
        g = self
        ops = []
        for j in range(g.D):
            isP = j < g.DP
            jj = j if isP else j - g.DP
            stride = g.sP if isP else g.sQ
            sk = "s17" if isP else "s18"
            sr = "s[8:11]" if isP else "s[12:15]"
            vd = g.vDP if isP else g.vDQ
            grp = [f"s_add_u32 m0, s19, {j * 4096}"]
            if jj == 0:
                grp.append("s_nop 0")
                grp.append(f"buffer_load_dwordx4 v{vd}, {sr}, {sk} offen" + (NTQ if (g.dyn and not isP) else "") + " lds")
            else:
                if g.dyn:
                    grp.append(f"s_add_u32 s22, {sk}, s{(57 if isP else 61) + jj}")
                else:
                    grp.append(f"s_add_u32 s22, {sk}, {jj * 32 * stride}")
                grp.append(f"buffer_load_dwordx4 v{vd}, {sr}, s22 offen" + (NTQ if (g.dyn and not isP) else "") + " lds")
            ops.append(grp)
        adv = ["s_add_u32 s17, s17, 128", "s_add_u32 s18, s18, 128",
               f"s_add_u32 s19, s19, {g.SS}", f"s_sub_u32 s22, s19, {g.NS * g.SS}",
               f"s_cmp_ge_u32 s19, {g.NS * g.SS}", "s_cselect_b32 s19, s22, s19"]
        if ROT:
            adv += ["s_sub_u32 s54, s54, 1", "s_cmp_eq_u32 s54, 0",
                    f"s_cselect_b32 s22, {g.nsteps * 128}, 0",
                    "s_sub_u32 s17, s17, s22", "s_sub_u32 s18, s18, s22"]
        if g.dyn:
            adv += ["s_sub_u32 s54, s54, 1", "s_cmp_eq_u32 s54, 0",
                    "s_cselect_b32 s12, s42, s12", "s_cselect_b32 s13, s43, s13",
                    "s_cselect_b32 s22, 4096, 0", "s_sub_u32 s18, s18, s22"]
        ops.append(adv)
        return ops

    def frag_reads(self, st):
        g = self
        va, vq = (g.vPa0, g.vQa0) if st == 0 else (g.vPa1, g.vQa1)
        ops = []
        for i in range(max(g.TM, g.TN)):
            if i < g.TM:
                r = g.fP[st] + 4 * i
                ops.append([f"ds_read_b128 v[{r}:{r+3}], v{va} offset:{i * 2048}"])
            if i < g.TN:
                r = g.fQ[st] + 4 * i
                ops.append([f"ds_read_b128 v[{r}:{r+3}], v{vq} offset:{i * 2048}"])
        return ops

    def mfmas(self, st):
        g = self
        ops = []
        if EXP == "E2" and g.tag == "k2":
            return ["s_nop 0"]
        for tm in range(g.TM):
            for tn in range(g.TN):
                a = g.accreg(tm, tn)
                p = g.fP[st] + 4 * tm
                q = g.fQ[st] + 4 * tn
                if g.swap:
                    p, q = q, p
                ops.append(f"v_mfma_f32_16x16x32_bf16 v[{a}:{a+3}], v[{p}:{p+3}], v[{q}:{q+3}], v[{a}:{a+3}]")
        return ops

    @staticmethod
    def interleave(e, mf, fillers):
        n = len(mf)
        k = len(fillers)
        fi = 0
        for i, m in enumerate(mf):
            e(m)
            want = min(k, -(-(i + 1) * k // n)) if k > n else min(k, i + 1)
            while fi < want:
                for ins in fillers[fi]:
                    e(ins)
                fi += 1
        while fi < k:
            for ins in fillers[fi]:
                e(ins)
            fi += 1

    def step(self, e, last):
        g = self
        e(f"v_add_u32 v{g.vPa1}, s20, v{g.vP1b}")
        e(f"v_add_u32 v{g.vQa1}, s20, v{g.vQ1b}")
        e(f"s_add_u32 s20, s20, {g.SS}")
        e(f"s_cmp_eq_u32 s20, {g.NS * g.SS}")
        e("s_cselect_b32 s20, 0, s20")
        e("s_waitcnt lgkmcnt(0)")
        g.interleave(e, g.mfmas(0), g.frag_reads(1))
        if not last:
            e(f"v_add_u32 v{g.vPa0}, s20, v{g.vP0b}")
            e(f"v_add_u32 v{g.vQa0}, s20, v{g.vQ0b}")
            e(f"s_waitcnt lgkmcnt(0)")
            e("s_barrier")
        else:
            e("s_waitcnt lgkmcnt(0)")
        fill = []
        if not last:
            fill += g.frag_reads(0)
        g.interleave(e, g.mfmas(1), fill)

    def run(self, e, extra_loads=None, pre_cons=None, step_extras=None, post_prod=None):
        g = self
        e("s_cmp_eq_u32 s53, 0")
        e(f"s_cbranch_scc1 L_{g.tag}_cons")
        e("s_setprio 1")
        g.setup_prod(e)
        for s in range(g.NS - 1):
            for grp in g.dma_ops():
                for ins in grp:
                    e(ins)
        e(f"s_waitcnt vmcnt({(g.NS - 2) * g.D})")
        e("s_barrier")
        nmain = g.nsteps - g.NS + 1
        if g.dyn:
            e(f"s_sub_u32 s21, s55, {g.NS - 1}")
        else:
            e(f"s_mov_b32 s21, {nmain}")
        e(f"L_{g.tag}_ploop:")
        e(f"s_waitcnt vmcnt({(g.NS - 3) * g.D})")
        e("s_barrier")
        for grp in g.dma_ops():
            for ins in grp:
                e(ins)
        e("s_sub_u32 s21, s21, 1")
        e("s_cmp_lg_u32 s21, 0")
        e(f"s_cbranch_scc1 L_{g.tag}_ploop")
        for i in range(nmain, g.nsteps - 1):
            e(f"s_waitcnt vmcnt({(g.nsteps - 2 - i) * g.D})")
            e("s_barrier")
        if post_prod:
            post_prod()
        e("s_endpgm")
        e(f"L_{g.tag}_cons:")
        g.setup_cons(e)
        if pre_cons:
            pre_cons()
        if extra_loads:
            for grp in extra_loads:
                for ins in grp:
                    e(ins)
        for r in range(g.acc, g.vend):
            e(f"v_mov_b32 v{r}, 0")
        e(f"v_mov_b32 v{g.vPa0}, v{g.vP0b}")
        e(f"v_mov_b32 v{g.vQa0}, v{g.vQ0b}")
        e("s_barrier")
        stamp(e, 2)
        for grp in g.frag_reads(0):
            e(grp[0])
        npeel = 0
        if step_extras:
            npeel = len(step_extras)
            for grp in step_extras:
                for ins in grp:
                    e(ins)
                g.step(e, False)
        if g.dyn:
            e(f"s_sub_u32 s21, s55, {1 + npeel}")
        else:
            e(f"s_mov_b32 s21, {g.nsteps - 1 - npeel}")
        e(f"L_{g.tag}_loop:")
        g.step(e, False)
        e("s_sub_u32 s21, s21, 1")
        e("s_cmp_lg_u32 s21, 0")
        e(f"s_cbranch_scc1 L_{g.tag}_loop")
        stamp(e, 3)
        g.step(e, True)
        e("s_nop 15")
        stamp(e, 4)


def bf16r_pair(e, a, b, t):
    e(f"v_cvt_pk_bf16_f32 v{t}, v{a}, v{b}")
    e(f"v_lshlrev_b32 v{a}, 16, v{t}")
    e(f"v_and_b32 v{b}, 0xffff0000, v{t}")


def gen_k1(e, name):
    kernel_head(e, name)
    e("s_cmp_ge_u32 s2, 256")
    e("s_cbranch_scc1 L_k1_done")
    stamp_rt(e, 0)
    stamp(e, 1)
    e(f"s_load_dwordx2 s[4:5], s[0:1], {KA_WS}")
    e(f"s_load_dwordx2 s[6:7], s[0:1], {KA_B1}")
    e(f"s_load_dwordx4 s[40:43], s[0:1], {KA_WSRE}")
    e("v_lshrrev_b32 v1, 6, v0")
    e("s_nop 0")
    e("v_readfirstlane_b32 s16, v1")
    e("s_nop 3")
    e("s_lshr_b32 s53, s16, 2")
    e("s_and_b32 s16, s16, 3")
    e("s_and_b32 s28, s2, 7")
    e("s_lshr_b32 s29, s2, 3")
    e("s_lshl_b32 s28, s28, 1")
    e("s_lshr_b32 s30, s29, 4")
    e("s_add_u32 s28, s28, s30")
    e("s_and_b32 s29, s29, 15")
    e("s_waitcnt lgkmcnt(0)")
    srd(e, 12, 4, WS_WCAT, 2400 * 1024)
    srd(e, 24, 4, 0, 64 << 20)
    e("s_lshl_b32 s17, s28, 17")

    def pre_ws():
        if not TOUCH1:
            return
        e("s_cmp_ge_u32 s2, 128")
        e("s_cselect_b32 s44, s42, s40")
        e("s_cselect_b32 s45, s43, s41")
        e(f"s_mov_b32 s46, {8 << 20}")
        e("s_mov_b32 s47, 0x20000")
        e("s_and_b32 s22, s2, 127")
        e("s_lshl_b32 s22, s22, 16")
        e("s_lshl_b32 s23, s16, 14")
        e("s_add_u32 s22, s22, s23")
        e("v_and_b32 v1, 63, v0")
        e("v_lshlrev_b32 v8, 7, v1")
        e("buffer_load_dword v9, v8, s[44:47], s22 offen")
        e("s_add_u32 s22, s22, 8192")
        e("buffer_load_dword v9, v8, s[44:47], s22 offen")
    e("s_cmp_ge_u32 s29, 7")
    e("s_cbranch_scc1 L_k1_typeB")
    srd(e, 8, 4, WS_XN, 2 << 20)
    e("s_mul_i32 s30, s29, 160")
    e("s_min_u32 s30, s30, 864")
    e("s_lshl_b32 s18, s30, 10")
    gA = Gemm("k1a", 4, 5, 2, 2, 8, 4, 1024, 1024, swap=False)
    gA.run(e, pre_cons=pre_ws, post_prod=(lambda: ws_touch(e, "s2", PF1, "k1a")) if PF1 else None)
    e("v_and_b32 v1, 63, v0")
    e("v_and_b32 v2, 15, v1")
    e("v_lshrrev_b32 v3, 4, v1")
    e("v_lshlrev_b32 v2, 13, v2")
    e("v_lshlrev_b32 v3, 3, v3")
    e("v_add_u32 v2, v2, v3")
    e("s_lshr_b32 s22, s16, 1")
    e("s_and_b32 s23, s16, 1")
    e("s_lshl_b32 s31, s28, 8")
    e("s_lshl_b32 s22, s22, 7")
    e("s_add_u32 s31, s31, s22")
    e(f"s_add_u32 s31, s31, {WS_ABT}")
    e("s_mul_i32 s23, s23, 80")
    e("s_add_u32 s30, s30, s23")
    for tn in range(5):
        e(f"s_add_u32 s32, s30, {16 * tn}")
        e("s_and_b32 s33, s32, 511")
        e("s_lshl_b32 s33, s33, 13")
        e("s_lshr_b32 s32, s32, 9")
        e("s_cmp_eq_u32 s32, 0")
        e("s_cselect_b32 s34, 0, 0x80008000")
        e("s_lshl_b32 s32, s32, 12")
        e("s_add_u32 s32, s32, s33")
        e("s_add_u32 s32, s32, s31")
        for tm in range(4):
            a = gA.accreg(tm, tn)
            e(f"v_cvt_pk_bf16_f32 v{a}, v{a}, v{a+1}")
            e(f"v_cvt_pk_bf16_f32 v{a+1}, v{a+2}, v{a+3}")
            e(f"v_xor_b32 v{a}, s34, v{a}")
            e(f"v_xor_b32 v{a+1}, s34, v{a+1}")
            e(f"buffer_store_dwordx2 v[{a}:{a+1}], v2, s[24:27], s32 offen offset:{tm * 32}")
    stamp(e, 5); stamp_rt(e, 6); stamp_flush(e, 1, 7)
    e("s_endpgm")
    e("L_k1_typeB:")
    srd(e, 8, 4, WS_Y2, 2 << 20)
    srd(e, 36, 6, 0, F * 2)
    e("s_sub_u32 s30, s29, 7")
    e("s_mul_i32 s30, s30, 160")
    e(f"s_min_u32 s30, s30, {HS - 160}")
    e("s_add_u32 s18, s30, 1024")
    e("s_lshl_b32 s18, s18, 10")
    gB = Gemm("k1b", 4, 5, 2, 2, 8, 4, 1024, 1024, swap=True)
    vb = gB.vend
    vt = vb + 10
    e("s_and_b32 s23, s16, 1")
    e("s_mul_i32 s23, s23, 80")
    e("s_add_u32 s30, s30, s23")
    e("v_and_b32 v1, 63, v0")
    e("v_lshrrev_b32 v3, 4, v1")
    e("v_lshlrev_b32 v5, 3, v3")
    e("s_lshl_b32 s31, s30, 1")
    extra = [[f"buffer_load_dwordx2 v[{vb+2*tn}:{vb+2*tn+1}], v5, s[36:39], s31 offen offset:{32*tn}"] for tn in range(5)]
    gB.run(e, extra_loads=extra, pre_cons=pre_ws, post_prod=(lambda: ws_touch(e, "s2", PF1, "k1b")) if PF1 else None)
    e("s_waitcnt vmcnt(0)")
    e("v_and_b32 v1, 63, v0")
    e("v_and_b32 v2, 15, v1")
    e(f"v_mul_u32_u24 v2, {HS * 2}, v2")
    e("v_add_u32 v2, v2, v5")
    e("s_lshr_b32 s22, s16, 1")
    e("s_lshl_b32 s32, s28, 7")
    e("s_lshl_b32 s22, s22, 6")
    e("s_add_u32 s32, s32, s22")
    e(f"s_mul_i32 s32, s32, {HS * 2}")
    e("s_add_u32 s32, s32, s31")
    e(f"s_add_u32 s32, s32, {WS_H}")
    k1 = -2.0 * math.sqrt(2.0 / math.pi) * math.log2(math.e)
    k2 = k1 * 0.044715
    e(f"s_mov_b32 s34, {f32bits(k1):#x}")
    e(f"s_mov_b32 s35, {f32bits(k2):#x}")
    for tn in range(5):
        b = [vt + 0, vt + 1, vt + 2, vt + 3]
        e(f"v_lshlrev_b32 v{b[0]}, 16, v{vb+2*tn}")
        e(f"v_and_b32 v{b[1]}, 0xffff0000, v{vb+2*tn}")
        e(f"v_lshlrev_b32 v{b[2]}, 16, v{vb+2*tn+1}")
        e(f"v_and_b32 v{b[3]}, 0xffff0000, v{vb+2*tn+1}")
        for tm in range(4):
            a = gB.accreg(tm, tn)
            t = vt + 4
            q = [vt + 5, vt + 6, vt + 7, vt + 8]
            bf16r_pair(e, a, a + 1, t)
            bf16r_pair(e, a + 2, a + 3, t)
            for r in range(4):
                e(f"v_add_f32 v{a+r}, v{a+r}, v{b[r]}")
            bf16r_pair(e, a, a + 1, t)
            bf16r_pair(e, a + 2, a + 3, t)
            for r in range(4):
                e(f"v_mul_f32 v{q[r]}, v{a+r}, v{a+r}")
            for r in range(4):
                e(f"v_mov_b32 v{t}, s34")
                e(f"v_fma_f32 v{q[r]}, v{q[r]}, s35, v{t}")
            for r in range(4):
                e(f"v_mul_f32 v{q[r]}, v{q[r]}, v{a+r}")
            for r in range(4):
                e(f"v_exp_f32 v{q[r]}, v{q[r]}")
            e("s_nop 0")
            for r in range(4):
                e(f"v_add_f32 v{q[r]}, 1.0, v{q[r]}")
            for r in range(4):
                e(f"v_rcp_f32 v{q[r]}, v{q[r]}")
            e("s_nop 0")
            for r in range(4):
                e(f"v_mul_f32 v{q[r]}, v{q[r]}, v{a+r}")
            e(f"v_cvt_pk_bf16_f32 v{a}, v{q[0]}, v{q[1]}")
            e(f"v_cvt_pk_bf16_f32 v{a+1}, v{q[2]}, v{q[3]}")
            e(f"s_add_u32 s33, s32, {tm * 16 * HS * 2}")
            e(f"buffer_store_dwordx2 v[{a}:{a+1}], v2, s[24:27], s33 offen offset:{tn * 32}")
    stamp(e, 5); stamp_rt(e, 6); stamp_flush(e, 1, 7)
    e("L_k1_done:")
    e("s_endpgm")
    return max(gA.vend, vt + 9), max(gA.NS * gA.SS, gB.NS * gB.SS)


class GemmF(Gemm):
    QSRD = [44, 48, 56, 60, 64]

    def __init__(self, tag, qtr):
        super().__init__(tag, 4, 5, 2, 2, 8, 4, 1024, 1024, swap=qtr)
        self.qtr = qtr
        self.ones = self.vend
        self.accS = self.vend + 4
        self.accC = self.accS + 16
        self.vend = self.accC + 20
        self.vDQ5 = list(range(40, 45))
        self.var = None

    def setup_prod(self, e):
        g = self
        super().setup_prod(e)
        if g.qtr:
            e("s_lshl_b32 s22, s16, 6")
            e("v_add_u32 v5, s22, v1")
            e("s_movk_i32 s22, 3277")
            e(f"s_movk_i32 s23, {F * 2}")
            e("s_lshr_b32 s31, s30, 3")
            e("v_mov_b32 v10, 0x40000000")
            for j in range(5):
                e(f"v_add_u32 v6, {256 * j}, v5")
                e("v_mul_lo_u32 v7, v6, s22")
                e("v_lshrrev_b32 v7, 16, v7")
                e("v_mul_u32_u24 v8, 20, v7")
                e("v_sub_u32 v8, v6, v8")
                e("v_lshrrev_b32 v9, 2, v7")
                e("v_and_b32 v9, 2, v9")
                e("v_xor_b32 v8, v8, v9")
                e("v_mul_lo_u32 v7, v7, s23")
                e(f"v_lshl_add_u32 v{g.vDQ5[j]}, v8, 4, v7")
                e("v_add_u32 v8, s31, v8")
                e(f"v_cmp_gt_u32 vcc, {F // 8}, v8")
                e("s_nop 1")
                e(f"v_cndmask_b32 v{g.vDQ5[j]}, v10, v{g.vDQ5[j]}, vcc")

    def dma_ops(self):
        g = self
        ops = []
        for j in range(g.D):
            isP = j < g.DP
            jj = j if isP else j - g.DP
            grp = [f"s_add_u32 m0, s19, {j * 4096}"]
            if isP:
                if jj == 0:
                    grp += ["s_nop 0", f"buffer_load_dwordx4 v{g.vDP}, s[8:11], s17 offen lds"]
                else:
                    grp += [f"s_add_u32 s22, s17, {jj * 32 * 1024}", f"buffer_load_dwordx4 v{g.vDP}, s[8:11], s22 offen lds"]
            elif g.qtr:
                grp += ["s_nop 0", f"buffer_load_dwordx4 v{g.vDQ5[jj]}, s[12:15], s18 offen lds"]
            else:
                r = g.QSRD[jj]
                grp += ["s_nop 0", f"buffer_load_dwordx4 v{g.vDQ}, s[{r}:{r+3}], s18 offen lds"]
            ops.append(grp)
        adv = ["s_add_u32 s17, s17, 128", f"s_add_u32 s18, s18, {64 * F * 2 if g.qtr else 128}",
               f"s_add_u32 s19, s19, {g.SS}", f"s_sub_u32 s22, s19, {g.NS * g.SS}",
               f"s_cmp_ge_u32 s19, {g.NS * g.SS}", "s_cselect_b32 s19, s22, s19"]
        ops.append(adv)
        return ops

    def setup_cons(self, e):
        g = self
        super().setup_cons(e)
        if g.qtr:
            e("v_lshrrev_b32 v2, 4, v1")
            e("v_lshlrev_b32 v3, 3, v2")
            e("v_bfe_u32 v4, v1, 2, 2")
            e("v_add_u32 v3, v3, v4")
            e("v_mul_u32_u24 v3, 320, v3")
            e("v_and_b32 v4, 3, v1")
            e("v_lshl_add_u32 v3, v4, 3, v3")
            e("s_and_b32 s23, s16, 1")
            e("s_mul_i32 s22, s23, 160")
            e(f"s_add_u32 s22, s22, {g.PR * 128}")
            e("v_add_u32 v3, s22, v3")
            e("v_and_b32 v2, 1, v2")
            e("v_lshlrev_b32 v2, 5, v2")
            e("s_cmp_eq_u32 s23, 0")
            e("s_cselect_b32 s22, 1, -1")
            e("v_mul_lo_u32 v2, v2, s22")
            e(f"v_add_u32 v{g.vQ0b}, v3, v2")
            e(f"v_sub_u32 v{g.vQ1b}, v3, v2")
        for i in range(4):
            e(f"v_mov_b32 v{g.ones + i}, 0x3f803f80")

    def frag_reads(self, st):
        g = self
        if not g.qtr:
            return super().frag_reads(st)
        va = g.vPa0 if st == 0 else g.vPa1
        ops = []
        for i in range(5):
            if i < 4:
                r = g.fP[st] + 4 * i
                ops.append([f"ds_read_b128 v[{r}:{r+3}], v{va} offset:{i * 2048}"])
            r = g.fQ[st] + 4 * i
            vq = g.vQa0 if i % 2 == 0 else g.vQa1
            for h in range(2):
                ops.append([f"ds_read_b64_tr_b16 v[{r+2*h}:{r+2*h+1}], v{vq} offset:{i * 32 + h * 1280 + st * 10240}"])
        return ops

    def mfmas(self, st):
        g = self
        ops = super().mfmas(st)
        wm, wn = g.var
        o = g.ones
        ex = []
        for tm in range(4):
            a = g.accS + 4 * tm
            p = g.fP[st] + 4 * tm
            A = p if wn == 0 else o
            ex.append(f"v_mfma_f32_16x16x32_bf16 v[{a}:{a+3}], v[{A}:{A+3}], v[{p}:{p+3}], v[{a}:{a+3}]")
        if wm == st:
            for tn in range(5):
                a = g.accC + 4 * tn
                q = g.fQ[st] + 4 * tn
                A, B = (q, o) if g.qtr else (o, q)
                ex.append(f"v_mfma_f32_16x16x32_bf16 v[{a}:{a+3}], v[{A}:{A+3}], v[{B}:{B+3}], v[{a}:{a+3}]")
        return ops + ex

    def step(self, e, last):
        g = self
        if not g.qtr:
            return super().step(e, last)
        e(f"v_add_u32 v{g.vPa1}, s20, v{g.vP1b}")
        e(f"s_add_u32 s20, s20, {g.SS}")
        e(f"s_cmp_eq_u32 s20, {g.NS * g.SS}")
        e("s_cselect_b32 s20, 0, s20")
        e("s_waitcnt lgkmcnt(0)")
        g.interleave(e, g.mfmas(0), g.frag_reads(1))
        if not last:
            e(f"v_add_u32 v{g.vPa0}, s20, v{g.vP0b}")
            e(f"v_add_u32 v{g.vQa0}, s20, v{g.vQ0b}")
            e(f"v_add_u32 v{g.vQa1}, s20, v{g.vQ1b}")
            e(f"s_waitcnt lgkmcnt(0)")
            e("s_barrier")
        else:
            e("s_waitcnt lgkmcnt(0)")
        g.interleave(e, g.mfmas(1), [] if last else g.frag_reads(0))

    SC = 4 * 36864
    SC_SQ, SC_SUM, SC_CS, SC_AB = SC, SC + 512, SC + 1024, SC + 2560
    LDS = SC + 2560 + 2048

    def run(self, e, extra_loads, post_issue, post_finish):
        g = self
        t = g.tag
        e("s_cmp_eq_u32 s53, 0")
        e(f"s_cbranch_scc1 L_{t}_cons")
        e("s_setprio 1")
        g.setup_prod(e)
        for s_ in range(g.NS - 1):
            for grp in g.dma_ops():
                for ins in grp:
                    e(ins)
        e(f"s_waitcnt vmcnt({(g.NS - 2) * g.D})")
        e("s_barrier")
        nmain = g.nsteps - g.NS + 1
        e(f"s_mov_b32 s21, {nmain}")
        e(f"L_{t}_ploop:")
        e(f"s_waitcnt vmcnt({(g.NS - 3) * g.D})")
        e("s_barrier")
        for grp in g.dma_ops():
            for ins in grp:
                e(ins)
        e("s_sub_u32 s21, s21, 1")
        e("s_cmp_lg_u32 s21, 0")
        e(f"s_cbranch_scc1 L_{t}_ploop")
        for i in range(nmain, g.nsteps - 1):
            e(f"s_waitcnt vmcnt({(g.nsteps - 2 - i) * g.D})")
            e("s_barrier")
        e("s_setprio 0")
        if BARFIRST:
            e("s_barrier")
        post_issue()
        if not BARFIRST:
            e("s_barrier")
        post_finish()
        e("s_endpgm")
        e(f"L_{t}_cons:")
        g.setup_cons(e)
        for grp in extra_loads:
            for ins in grp:
                e(ins)
        for r in list(range(g.acc, g.ones)) + list(range(g.accS, g.vend)):
            e(f"v_mov_b32 v{r}, 0")
        e(f"v_mov_b32 v{g.vPa0}, v{g.vP0b}")
        e(f"v_mov_b32 v{g.vQa0}, v{g.vQ0b}")
        if g.qtr:
            e(f"v_mov_b32 v{g.vQa1}, v{g.vQ1b}")
        e("v_and_b32 v1, 63, v0")
        e("v_and_b32 v2, 15, v1")
        e("v_lshrrev_b32 v3, 4, v1")
        e("s_lshr_b32 s34, s16, 1")
        e("s_and_b32 s35, s16, 1")
        e("s_barrier")
        stamp(e, 2)
        for grp in g.frag_reads(0):
            e(grp[0])
        e(f"s_mov_b32 s21, {g.nsteps - 1}")
        for w in range(1, 4):
            e(f"s_cmp_eq_u32 s16, {w}")
            e(f"s_cbranch_scc1 L_{t}_loop{w}")
        for w in range(4):
            g.var = (w >> 1, w & 1)
            wm, wn = g.var
            e(f"L_{t}_loop{w}:")
            g.step(e, False)
            e("s_sub_u32 s21, s21, 1")
            e("s_cmp_lg_u32 s21, 0")
            e(f"s_cbranch_scc1 L_{t}_loop{w}")
            stamp(e, 3)
            g.step(e, True)
            e("v_lshlrev_b32 v4, 2, v2")
            e(f"v_add_u32 v13, {g.SC}, v4")
            if wn == 0:
                e("v_and_b32 v5, 3, v1")
                e("v_cmp_eq_u32 s[86:87], 1, v5")
                e("v_cmp_eq_u32 s[88:89], 2, v5")
                e("v_cmp_eq_u32 s[90:91], 3, v5")
                e("v_lshrrev_b32 v5, 2, v2")
                e("v_cmp_eq_u32 vcc, v5, v3")
                e("s_nop 7")
                for tm in range(4):
                    a = g.accS + 4 * tm
                    for i in range(1, 4):
                        e(f"v_cndmask_b32 v{a}, v{a}, v{a+i}, s[{84+2*i}:{85+2*i}]")
            else:
                e("v_cmp_gt_u32 vcc, 16, v1")
                e("s_nop 7")
            e("s_and_saveexec_b64 s[92:93], vcc")
            for tm in range(4):
                e(f"ds_write_b32 v13, v{g.accS + 4 * tm} offset:{(g.SC_SQ if wn == 0 else g.SC_SUM) - g.SC + 256 * wm + 64 * tm}")
            e("s_mov_b64 exec, s[92:93]")
            if w != 3:
                e(f"s_branch L_{t}_join")
        e(f"L_{t}_join:")
        stamp(e, 4)
        e("s_mul_i32 s22, s16, 320")
        e(f"s_add_u32 s22, s22, {g.SC_CS}")
        if g.qtr:
            e("v_lshl_add_u32 v5, v3, 4, s22")
            e("v_cmp_eq_u32 vcc, 0, v2")
        else:
            e("v_add_u32 v5, s22, v4")
            e("v_cmp_gt_u32 vcc, 16, v1")
        e("s_and_saveexec_b64 s[92:93], vcc")
        for tn in range(5):
            a = g.accC + 4 * tn
            if g.qtr:
                e(f"ds_write_b128 v5, v[{a}:{a+3}] offset:{64 * tn}")
            else:
                e(f"ds_write_b32 v5, v{a} offset:{64 * tn}")
        e("s_mov_b64 exec, s[92:93]")
        e("s_waitcnt lgkmcnt(0)")
        e("s_barrier")
        f0 = g.fP[0]
        e("s_xor_b32 s23, s16, 2")
        e("s_mul_i32 s23, s23, 320")
        e("s_sub_u32 s23, s23, s22")
        e(f"s_add_u32 s23, s23, {g.SC_CS}")
        e("v_add_u32 v5, s23, v5")
        for tn in range(5):
            if g.qtr:
                e(f"ds_read_b128 v[{f0+4*tn}:{f0+4*tn+3}], v5 offset:{64 * tn}")
            else:
                e(f"ds_read_b32 v{f0+4*tn}, v5 offset:{64 * tn}")
        e("s_lshl_b32 s22, s34, 8")
        e(f"s_add_u32 s22, s22, {g.SC}")
        e("v_lshl_add_u32 v6, v1, 2, s22")
        e(f"ds_read_b32 v7, v6 offset:{g.SC_SUM - g.SC}")
        e(f"ds_read_b32 v8, v6 offset:{g.SC_SQ - g.SC}")
        e("s_waitcnt lgkmcnt(2)")
        for tn in range(5):
            a = g.accC + 4 * tn
            for i in range(4 if g.qtr else 1):
                e(f"v_add_f32 v{a+i}, v{a+i}, v{f0+4*tn+i}")
        e("s_waitcnt lgkmcnt(0)")
        inv = f"{f32bits(1.0 / 512):#x}"
        eps = f"{f32bits(1e-5):#x}"
        e(f"v_mul_f32 v7, {inv}, v7")
        e(f"v_mul_f32 v8, {inv}, v8")
        e("v_fma_f32 v8, -v7, v7, v8")
        e("v_max_f32 v8, 0, v8")
        e("v_mov_b32 v9, v7")
        bf16r_scalar(e, 9)
        e("v_mov_b32 v10, v8")
        bf16r_scalar(e, 10)
        e(f"v_add_f32 v10, {eps}, v10")
        bf16r_scalar(e, 10)
        e("v_sqrt_f32 v10, v10")
        e("s_nop 0")
        bf16r_scalar(e, 10)
        e("v_rcp_f32 v10, v10")
        e("s_nop 0")
        if g.qtr:
            e("v_sub_f32 v11, v7, v9")
            e("v_mul_f32 v11, v11, v10")
            bf16r_scalar(e, 11)
            e("v_mul_f32 v8, v8, v10")
            e("v_mul_f32 v8, v8, v10")
            bf16r_scalar(e, 8)
            e(f"v_add_f32 v8, {eps}, v8")
            bf16r_scalar(e, 8)
            e("v_sqrt_f32 v8, v8")
            e("s_nop 0")
            bf16r_scalar(e, 8)
            e("v_rcp_f32 v8, v8")
            e("s_nop 0")
            e("v_fma_f32 v9, v9, v10, v11")
            e("v_mul_f32 v9, v9, v8")
            e("v_mul_f32 v10, v10, v8")
        else:
            e("v_mul_f32 v9, v9, v10")
        e("s_lshl_b32 s22, s16, 9")
        e(f"s_add_u32 s22, s22, {g.SC_AB}")
        e("v_lshl_add_u32 v6, v1, 2, s22")
        e("ds_write_b32 v6, v10")
        e("ds_write_b32 v6, v9 offset:256")
        e("s_waitcnt lgkmcnt(0)")
        g.al, g.be = f0 + 20, f0 + 36
        if g.qtr:
            e("v_lshl_add_u32 v6, v2, 2, s22")
            for tm in range(4):
                e(f"ds_read_b32 v{g.al + tm}, v6 offset:{64 * tm}")
                e(f"ds_read_b32 v{g.be + tm}, v6 offset:{256 + 64 * tm}")
        else:
            e("v_lshl_add_u32 v6, v3, 4, s22")
            for tm in range(4):
                e(f"ds_read_b128 v[{g.al + 4*tm}:{g.al + 4*tm + 3}], v6 offset:{64 * tm}")
                e(f"ds_read_b128 v[{g.be + 4*tm}:{g.be + 4*tm + 3}], v6 offset:{256 + 64 * tm}")
        e("s_waitcnt lgkmcnt(0)")


def gen_k1n(e, name):
    kernel_head(e, name)
    e("s_cmp_ge_u32 s2, 256")
    e("s_cbranch_scc1 L_k1_done")
    stamp_rt(e, 0)
    stamp(e, 1)
    e(f"s_load_dwordx2 s[4:5], s[0:1], {KA_WS}")
    e(f"s_load_dwordx2 s[90:91], s[0:1], {KA_X}")
    e(f"s_load_dwordx4 s[40:43], s[0:1], {KA_WSRE}")
    e(f"s_load_dwordx4 s[84:87], s[0:1], {KA_WDRE}")
    e(f"s_load_dwordx4 s[92:95], s[0:1], {KA_W1}")
    e(f"s_load_dwordx2 s[6:7], s[0:1], {KA_W2}")
    e("v_lshrrev_b32 v1, 6, v0")
    e("s_nop 0")
    e("v_readfirstlane_b32 s16, v1")
    e("s_nop 3")
    e("s_lshr_b32 s53, s16, 2")
    e("s_and_b32 s16, s16, 3")
    e("s_and_b32 s28, s2, 7")
    e("s_lshr_b32 s29, s2, 3")
    e("s_lshl_b32 s28, s28, 1")
    e("s_lshr_b32 s30, s29, 4")
    e("s_add_u32 s28, s28, s30")
    e("s_and_b32 s29, s29, 15")
    e("s_waitcnt lgkmcnt(0)")
    srd(e, 8, 90, 0, 2 << 20)
    srd(e, 24, 4, 0, 64 << 20)
    e("s_lshl_b32 s17, s28, 17")

    def mk_post(tag):
        def issue():
            if PF1:
                ws_touch(e, "s2", PF1, tag)
            e("s_lshl_b32 s31, s16, 8")
            e("s_add_u32 s31, s31, s2")
            e("s_cmp_ge_u32 s31, 352")
            e(f"s_cbranch_scc1 L_{tag}_not2")
            srd(e, 20, 6, 0, F * 512 * 2)
            e("v_and_b32 v2, 63, v0")
            e("s_and_b32 s18, s31, 7")
            e("s_lshr_b32 s19, s31, 3")
            e("s_lshl_b32 s18, s18, 6")
            e("v_add_u32 v3, s18, v2")
            e("v_lshlrev_b32 v20, 1, v3")
            e("s_lshl_b32 s28, s19, 15")
            for i in range(32):
                e(f"buffer_load_ushort v{24 + i}, v20, s[20:23], s28 offen")
                if i != 31:
                    e(f"s_add_u32 s28, s28, 1024")
            e(f"v_mul_u32_u24 v21, {HS * 2}, v3")
            e("s_lshl_b32 s19, s19, 6")
            e(f"s_add_u32 s19, s19, {WS_W2T}")
            e(f"L_{tag}_not2:")

        def finish():
            e("s_cmp_ge_u32 s31, 352")
            e(f"s_cbranch_scc1 L_k1_done")
            e("s_waitcnt vmcnt(0)")
            for i in range(16):
                e(f"v_lshl_or_b32 v{4 + i}, v{25 + 2 * i}, 16, v{24 + 2 * i}")
            for i in range(4):
                e(f"buffer_store_dwordx4 v[{4+4*i}:{7+4*i}], v21, s[24:27], s19 offen offset:{16*i}")
        return issue, finish

    e("s_cmp_ge_u32 s29, 7")
    e("s_cbranch_scc1 L_k1_typeB")
    e("s_mul_i32 s30, s29, 160")
    e("s_min_u32 s30, s30, 864")
    e("s_mov_b32 s18, 0")
    for jj, r in enumerate(GemmF.QSRD):
        e(f"s_add_u32 s22, s30, {32 * jj}")
        e("s_cmp_ge_u32 s22, 512")
        e(f"s_cselect_b32 s{r}, s86, s84")
        e(f"s_cselect_b32 s{r+1}, s87, s85")
        e("s_and_b32 s22, s22, 511")
        e("s_lshl_b32 s22, s22, 10")
        e(f"s_add_u32 s{r}, s{r}, s22")
        e(f"s_addc_u32 s{r+1}, s{r+1}, 0")
        e(f"s_mov_b32 s{r+2}, {32 * 1024}")
        e(f"s_mov_b32 s{r+3}, 0x20000")
    gA = GemmF("k1a", False)
    gA.run(e, [], *mk_post("k1a"))
    f0 = gA.fP[0]
    e("s_mul_i32 s22, s16, 12288")
    e("v_mul_u32_u24 v4, 144, v2")
    e("v_lshl_add_u32 v4, v3, 3, v4")
    e("v_add_u32 v4, s22, v4")
    e("s_mul_i32 s23, s35, 80")
    e("s_add_u32 s30, s30, s23")
    tq = f0 + 52
    for tn in range(5):
        e(f"s_add_u32 s32, s30, {16 * tn}")
        e("s_cmp_ge_u32 s32, 512")
        e("s_cselect_b32 s33, 0x80008000, 0")
        c = gA.accC + 4 * tn
        for tm in range(4):
            a = gA.accreg(tm, tn)
            al, be = gA.al + 4 * tm, gA.be + 4 * tm
            for i in (0, 2):
                e(f"v_pk_mul_f32 v[{tq+i}:{tq+i+1}], v[{be+i}:{be+i+1}], v[{c}:{c+1}] op_sel_hi:[1,0]")
            for i in (0, 2):
                e(f"v_pk_fma_f32 v[{a+i}:{a+i+1}], v[{al+i}:{al+i+1}], v[{a+i}:{a+i+1}], v[{tq+i}:{tq+i+1}] neg_lo:[0,0,1] neg_hi:[0,0,1]")
            e(f"v_cvt_pk_bf16_f32 v{a}, v{a}, v{a+1}")
            e(f"v_cvt_pk_bf16_f32 v{a+1}, v{a+2}, v{a+3}")
            e(f"v_xor_b32 v{a}, s33, v{a}")
            e(f"v_xor_b32 v{a+1}, s33, v{a+1}")
            e(f"ds_write_b64 v4, v[{a}:{a+1}] offset:{tn * 16 * 144 + tm * 32}")
    e("v_lshrrev_b32 v5, 3, v1")
    e("v_and_b32 v6, 7, v1")
    e("v_mul_u32_u24 v4, 144, v5")
    e("v_lshl_add_u32 v4, v6, 4, v4")
    e("v_add_u32 v4, s22, v4")
    e("v_lshlrev_b32 v5, 13, v5")
    e("v_lshl_add_u32 v5, v6, 4, v5")
    e("s_lshl_b32 s31, s28, 8")
    e("s_lshl_b32 s22, s34, 7")
    e("s_add_u32 s31, s31, s22")
    e(f"s_add_u32 s31, s31, {WS_ABT}")
    e("s_waitcnt lgkmcnt(0)")
    for i in range(10):
        e(f"ds_read_b128 v[{gA.acc+4*i}:{gA.acc+4*i+3}], v4 offset:{i * 8 * 144}")
    for i in range(10):
        e(f"s_add_u32 s32, s30, {8 * i}")
        e("s_and_b32 s33, s32, 511")
        e("s_lshl_b32 s33, s33, 13")
        e("s_lshr_b32 s32, s32, 9")
        e("s_lshl_b32 s32, s32, 12")
        e("s_add_u32 s32, s32, s33")
        e("s_add_u32 s32, s32, s31")
        e(f"s_waitcnt lgkmcnt({9 - i})")
        e(f"buffer_store_dwordx4 v[{gA.acc+4*i}:{gA.acc+4*i+3}], v5, s[24:27], s32 offen")
    stamp(e, 5); stamp_rt(e, 6); stamp_flush(e, 1, 7)
    e("s_endpgm")
    e("L_k1_typeB:")
    srd(e, 12, 92, 0, 512 * F * 2)
    srd(e, 36, 94, 0, F * 2)
    e("s_sub_u32 s30, s29, 7")
    e("s_mul_i32 s30, s30, 160")
    e(f"s_min_u32 s30, s30, {HS - 160}")
    e("s_lshl_b32 s18, s30, 1")
    gB = GemmF("k1b", True)
    vb = gB.vend
    e("s_and_b32 s23, s16, 1")
    e("s_mul_i32 s23, s23, 80")
    e("s_add_u32 s33, s30, s23")
    e("v_and_b32 v1, 63, v0")
    e("v_lshrrev_b32 v3, 4, v1")
    e("v_lshlrev_b32 v12, 3, v3")
    e("s_lshl_b32 s33, s33, 1")
    extra = [[f"buffer_load_dwordx2 v[{vb+2*tn}:{vb+2*tn+1}], v12, s[36:39], s33 offen offset:{32*tn}"] for tn in range(5)]
    gB.run(e, extra, *mk_post("k1b"))
    e("s_waitcnt vmcnt(0)")
    f0 = gB.fP[0]
    e("s_mul_i32 s22, s16, 12288")
    e("v_mul_u32_u24 v4, 176, v2")
    e("v_add_u32 v4, v4, v12")
    e("v_add_u32 v4, s22, v4")
    k1 = -2.0 * math.sqrt(2.0 / math.pi) * math.log2(math.e)
    k2 = k1 * 0.044715
    kk = f0 + 52
    e(f"v_mov_b32 v{kk}, {f32bits(k1):#x}")
    e(f"v_mov_b32 v{kk+1}, {f32bits(k2):#x}")
    e(f"v_mov_b32 v{kk+2}, 1.0")
    b = f0 + 56
    q = f0 + 60
    for tn in range(5):
        e(f"v_lshlrev_b32 v{b}, 16, v{vb+2*tn}")
        e(f"v_and_b32 v{b+1}, 0xffff0000, v{vb+2*tn}")
        e(f"v_lshlrev_b32 v{b+2}, 16, v{vb+2*tn+1}")
        e(f"v_and_b32 v{b+3}, 0xffff0000, v{vb+2*tn+1}")
        c = gB.accC + 4 * tn
        for tm in range(4):
            a = gB.accreg(tm, tn)
            al, be = gB.al + tm, gB.be + tm
            def bc(r):
                return (f"v[{r}:{r+1}]", 0) if r % 2 == 0 else (f"v[{r-1}:{r}]", 1)
            bs, bsel = bc(be)
            as_, asel = bc(al)
            for i in (0, 2):
                e(f"v_pk_fma_f32 v[{q+i}:{q+i+1}], {bs}, v[{c+i}:{c+i+1}], v[{b+i}:{b+i+1}] op_sel:[{bsel},0,0] op_sel_hi:[{bsel},1,1] neg_lo:[1,0,0] neg_hi:[1,0,0]")
            for i in (0, 2):
                e(f"v_pk_fma_f32 v[{a+i}:{a+i+1}], {as_}, v[{a+i}:{a+i+1}], v[{q+i}:{q+i+1}] op_sel:[{asel},0,0] op_sel_hi:[{asel},1,1]")
            for i in (0, 2):
                e(f"v_pk_mul_f32 v[{q+i}:{q+i+1}], v[{a+i}:{a+i+1}], v[{a+i}:{a+i+1}]")
            for i in (0, 2):
                e(f"v_pk_fma_f32 v[{q+i}:{q+i+1}], v[{q+i}:{q+i+1}], v[{kk}:{kk+1}], v[{kk}:{kk+1}] op_sel:[0,1,0] op_sel_hi:[1,1,0]")
            for i in (0, 2):
                e(f"v_pk_mul_f32 v[{q+i}:{q+i+1}], v[{q+i}:{q+i+1}], v[{a+i}:{a+i+1}]")
            for r in range(4):
                e(f"v_exp_f32 v{q+r}, v{q+r}")
            e("s_nop 0")
            for i in (0, 2):
                e(f"v_pk_add_f32 v[{q+i}:{q+i+1}], v[{q+i}:{q+i+1}], v[{kk+2}:{kk+3}] op_sel_hi:[1,0]")
            for r in range(4):
                e(f"v_rcp_f32 v{q+r}, v{q+r}")
            e("s_nop 0")
            for i in (0, 2):
                e(f"v_pk_mul_f32 v[{q+i}:{q+i+1}], v[{q+i}:{q+i+1}], v[{a+i}:{a+i+1}]")
            e(f"v_cvt_pk_bf16_f32 v{a}, v{q}, v{q+1}")
            e(f"v_cvt_pk_bf16_f32 v{a+1}, v{q+2}, v{q+3}")
            e(f"ds_write_b64 v4, v[{a}:{a+1}] offset:{tm * 16 * 176 + tn * 32}")
    e("v_mul_u32_u24 v5, 205, v1")
    e("v_lshrrev_b32 v5, 11, v5")
    e("v_mul_u32_u24 v6, 10, v5")
    e("v_sub_u32 v6, v1, v6")
    e("v_mul_u32_u24 v4, 176, v5")
    e("v_lshl_add_u32 v4, v6, 4, v4")
    e("v_add_u32 v4, s22, v4")
    e(f"v_mul_u32_u24 v7, {HS * 2}, v5")
    e("v_lshl_add_u32 v7, v6, 4, v7")
    e("s_lshl_b32 s32, s28, 7")
    e("s_lshl_b32 s22, s34, 6")
    e("s_add_u32 s32, s32, s22")
    e(f"s_mul_i32 s32, s32, {HS * 2}")
    e("s_add_u32 s32, s32, s33")
    e(f"s_add_u32 s32, s32, {WS_H}")
    e("v_cmp_gt_u32 vcc, 60, v1")
    e("v_cmp_gt_u32 s[86:87], 40, v1")
    e("s_waitcnt lgkmcnt(0)")
    e("s_mov_b64 exec, vcc")
    for i in range(11):
        if i == 10:
            e("s_mov_b64 exec, s[86:87]")
        e(f"ds_read_b128 v[{gB.acc+4*i}:{gB.acc+4*i+3}], v4 offset:{i * 6 * 176}")
    e("s_mov_b64 exec, vcc")
    for i in range(11):
        if i == 10:
            e("s_mov_b64 exec, s[86:87]")
        e(f"s_waitcnt lgkmcnt({10 - i})")
        e(f"buffer_store_dwordx4 v[{gB.acc+4*i}:{gB.acc+4*i+3}], v7, s[24:27], s32 offen")
        if i != 10:
            e(f"s_add_u32 s32, s32, {6 * HS * 2}")
    e("s_mov_b64 exec, -1")
    stamp(e, 5); stamp_rt(e, 6); stamp_flush(e, 1, 7)
    e("L_k1_done:")
    e("s_endpgm")
    return vb + 10, GemmF.LDS


def gen_k2(e, name, NS=4):
    kernel_head(e, name)
    e("s_cmp_ge_u32 s2, 256")
    e("s_cbranch_scc1 L_k2_done")
    stamp_rt(e, 0)
    stamp(e, 1)
    e(f"s_load_dwordx2 s[4:5], s[0:1], {KA_WS}")
    e(f"s_load_dwordx4 s[40:43], s[0:1], {KA_WSRE}")
    e("v_lshrrev_b32 v1, 6, v0")
    e("s_nop 0")
    e("v_readfirstlane_b32 s16, v1")
    e("s_nop 3")
    e("s_lshr_b32 s53, s16, 2")
    e("s_and_b32 s16, s16, 3")
    e("s_and_b32 s28, s2, 7")
    e("s_lshr_b32 s31, s2, 3")
    e("s_and_b32 s30, s31, 3")
    e("s_lshr_b32 s31, s31, 2")
    e("s_waitcnt lgkmcnt(0)")
    srd(e, 24, 4, WS_PART, 8 << 20)
    e("s_cmp_ge_u32 s31, 6")
    e("s_cbranch_scc1 L_k2_g3")
    e("s_mul_i32 s28, s28, 6")
    e("s_add_u32 s28, s28, s31")
    e("s_and_b32 s29, s28, 15")
    e("s_lshr_b32 s28, s28, 4")
    srd(e, 8, 4, WS_ABT, 4 << 20)
    e("s_cmp_ge_u32 s28, 2")
    e("s_cselect_b32 s12, s42, s40")
    e("s_cselect_b32 s13, s43, s41")
    e(f"s_mov_b32 s14, {8 << 20}")
    e("s_mov_b32 s15, 0x20000")
    e("s_mul_i32 s22, s28, 21")
    e("s_min_u32 s23, s28, 1")
    e("s_add_u32 s22, s22, s23")
    e("s_sub_u32 s55, 22, s23")
    e("s_lshl_b32 s22, s22, 7")
    e("s_lshl_b32 s17, s30, 20")
    e("s_add_u32 s17, s17, s22")
    e("s_and_b32 s22, s22, 4095")
    e("s_lshl_b32 s18, s29, 19")
    e("s_add_u32 s18, s18, s22")
    e("s_cmp_eq_u32 s28, 1")
    e("s_cselect_b32 s54, 10, 1000")
    e("s_mov_b32 s56, 8192")
    e("s_mov_b32 s57, 4096")
    e("s_branch L_k2_go")
    e("L_k2_g3:")
    e("s_lshl_b32 s29, s28, 1")
    e("s_add_u32 s29, s29, s31")
    e("s_sub_u32 s29, s29, 6")
    e("s_mov_b32 s28, 3")
    srd(e, 8, 4, WS_W2T, 512 * HS * 2)
    srd(e, 12, 4, WS_H, 2048 * HS * 2)
    e(f"s_mul_i32 s17, s30, {128 * HS * 2}")
    e(f"s_mul_i32 s18, s29, {128 * HS * 2}")
    e("s_mov_b32 s55, 22")
    e("s_mov_b32 s54, 1000")
    e(f"s_mov_b32 s56, {HS * 2}")
    e(f"s_mov_b32 s57, {HS * 2}")
    e("L_k2_go:")
    g = Gemm("k2", 4, 4, 2, 2, 22, NS, 0, 0, dyn=True)
    g.run(e, pre_cons=(lambda: ws_touch(e, "s2", PF2, "k2")) if PF2 else None)
    e("v_and_b32 v1, 63, v0")
    e("v_lshlrev_b32 v2, 4, v1")
    e("s_lshr_b32 s22, s16, 1")
    e("s_and_b32 s23, s16, 1")
    e("s_lshl_b32 s31, s28, 5")
    e("s_lshl_b32 s32, s30, 3")
    e("s_add_u32 s31, s31, s32")
    e("s_lshl_b32 s22, s22, 2")
    e("s_add_u32 s31, s31, s22")
    e("s_lshl_b32 s31, s31, 6")
    e("s_lshl_b32 s32, s29, 2")
    e("s_add_u32 s31, s31, s32")
    e("s_lshl_b32 s23, s23, 1")
    e("s_add_u32 s31, s31, s23")
    e("s_lshl_b32 s31, s31, 10")
    for tm in range(4):
        e(f"s_add_u32 s32, s31, {tm * 64 * 1024}")
        for tp in range(2):
            a = g.accreg(tm, 2 * tp)
            for i in range(4):
                e(f"v_cvt_pk_bf16_f32 v{a+i}, v{a+2*i}, v{a+2*i+1}")
            e(f"buffer_store_dwordx4 v[{a}:{a+3}], v2, s[24:27], s32 offen offset:{tp * 1024}")
    stamp(e, 5); stamp_rt(e, 6); stamp_flush(e, 2, 7)
    e("L_k2_done:")
    e("s_endpgm")
    return g.vend, g.NS * g.SS


K3_WGS = 512


def gen_k3(e, name):
    kernel_head(e, name)
    e(f"s_cmp_ge_u32 s2, {K3_WGS}")
    e("s_cbranch_scc1 L_k3_done")
    stamp_rt(e, 0)
    stamp(e, 1)
    e(f"s_load_dwordx2 s[4:5], s[0:1], {KA_WS}")
    e(f"s_load_dwordx2 s[6:7], s[0:1], {KA_X}")
    e(f"s_load_dwordx4 s[40:43], s[0:1], {KA_B2}")
    e("v_lshrrev_b32 v1, 6, v0")
    e("v_and_b32 v2, 63, v0")
    e("s_nop 0")
    e("v_readfirstlane_b32 s16, v1")
    e("v_lshlrev_b32 v5, 4, v2")
    e("v_and_b32 v3, 15, v2")
    e("v_lshrrev_b32 v4, 4, v2")
    e("v_lshlrev_b32 v6, 3, v4")
    e("v_lshlrev_b32 v7, 10, v3")
    e("v_add_u32 v7, v7, v6")
    e("s_lshl_b32 s28, s2, 2")
    e("s_add_u32 s28, s28, s16")
    e("s_and_b32 s29, s28, 31")
    e("s_lshr_b32 s30, s28, 5")
    e("s_lshl_b32 s48, s29, 6")
    e("s_add_u32 s48, s48, s30")
    e("s_lshl_b32 s48, s48, 10")
    e("s_lshl_b32 s49, s29, 5")
    e("s_lshl_b32 s50, s30, 15")
    e("s_add_u32 s50, s50, s49")
    e("s_waitcnt lgkmcnt(0)")
    srd(e, 24, 4, WS_PART, 8 << 20)
    srd(e, 32, 6, 0, 2 << 20)
    srd(e, 36, 40, 0, 1024)
    srd(e, 44, 42, 0, 2 << 20)
    for sl in (3, 0, 1, 2):
        e(f"s_add_u32 s51, s48, {sl * 32 * 64 * 1024}")
        e(f"buffer_load_dwordx4 v[{8+4*sl}:{11+4*sl}], v5, s[24:27], s51 offen")
        if sl == 3:
            e("buffer_load_dwordx2 v[24:25], v6, s[36:39], s49 offen")
    e("s_add_u32 s51, s50, 16384")
    e("buffer_load_dwordx2 v[26:27], v7, s[32:35], s50 offen")
    e("buffer_load_dwordx2 v[28:29], v7, s[32:35], s51 offen")
    nl2e = -math.log2(math.e)
    e(f"s_mov_b32 s52, {f32bits(nl2e):#x}")
    b = [30, 31, 32, 33]
    t = 34
    z = list(range(36, 44))
    q = list(range(44, 52))
    p0 = list(range(52, 60))
    p1 = list(range(60, 68))
    e("s_waitcnt vmcnt(5)")
    stamp(e, 2)
    e(f"v_lshlrev_b32 v{b[0]}, 16, v24")
    e(f"v_and_b32 v{b[1]}, 0xffff0000, v24")
    e(f"v_lshlrev_b32 v{b[2]}, 16, v25")
    e(f"v_and_b32 v{b[3]}, 0xffff0000, v25")
    for i in range(4):
        e(f"v_lshlrev_b32 v{z[2*i]}, 16, v{20+i}")
        e(f"v_and_b32 v{z[2*i+1]}, 0xffff0000, v{20+i}")
    for i in range(8):
        e(f"v_add_f32 v{z[i]}, v{z[i]}, v{b[i%4]}")
    for i in range(0, 8, 2):
        bf16r_pair(e, z[i], z[i + 1], t)
    for i in range(8):
        e(f"v_mul_f32 v{q[i]}, s52, v{z[i]}")
    for i in range(8):
        e(f"v_exp_f32 v{q[i]}, v{q[i]}")
    e("s_nop 0")
    for i in range(8):
        e(f"v_add_f32 v{q[i]}, 1.0, v{q[i]}")
    for i in range(8):
        e(f"v_rcp_f32 v{q[i]}, v{q[i]}")
    e("s_nop 0")
    for i in range(8):
        e(f"v_mul_f32 v{z[i]}, v{q[i]}, v{z[i]}")
    for i in range(0, 8, 2):
        bf16r_pair(e, z[i], z[i + 1], t)
    e("s_waitcnt vmcnt(2)")
    for i in range(4):
        e(f"v_lshlrev_b32 v{p0[2*i]}, 16, v{8+i}")
        e(f"v_and_b32 v{p0[2*i+1]}, 0xffff0000, v{8+i}")
        e(f"v_lshlrev_b32 v{p1[2*i]}, 16, v{12+i}")
        e(f"v_and_b32 v{p1[2*i+1]}, 0xffff0000, v{12+i}")
        e(f"v_lshlrev_b32 v{q[2*i]}, 16, v{16+i}")
        e(f"v_and_b32 v{q[2*i+1]}, 0xffff0000, v{16+i}")
    for i in range(8):
        e(f"v_add_f32 v{p0[i]}, v{p0[i]}, v{p1[i]}")
    for i in range(8):
        e(f"v_add_f32 v{p0[i]}, v{p0[i]}, v{q[i]}")
    for i in range(0, 8, 2):
        bf16r_pair(e, p0[i], p0[i + 1], t)
    for i in range(8):
        e(f"v_mul_f32 v{z[i]}, v{z[i]}, v{p0[i]}")
    for i in range(0, 8, 2):
        bf16r_pair(e, z[i], z[i + 1], t)
    e("s_waitcnt vmcnt(0)")
    for i in range(4):
        e(f"v_lshlrev_b32 v{q[2*i]}, 16, v{26+i}")
        e(f"v_and_b32 v{q[2*i+1]}, 0xffff0000, v{26+i}")
    for i in range(8):
        e(f"v_add_f32 v{z[i]}, v{z[i]}, v{q[i]}")
    for i in range(4):
        e(f"v_cvt_pk_bf16_f32 v{8+i}, v{z[2*i]}, v{z[2*i+1]}")
    e("buffer_store_dwordx2 v[8:9], v7, s[44:47], s50 offen")
    e("buffer_store_dwordx2 v[10:11], v7, s[44:47], s51 offen")
    stamp(e, 3); stamp(e, 4); stamp(e, 5); stamp_rt(e, 6); stamp_flush(e, 3, 7)
    e("L_k3_done:")
    e("s_endpgm")
    return 68, 0


def main(out):
    e = E()
    n1, n2, n3 = "fnet_k1_kernel", "fnet_k2_kernel", "fnet_k3_kernel"
    v1, l1 = gen_k1n(e, n1)
    v2, l2 = gen_k2(e, n2)
    v3, l3 = gen_k3(e, n3)
    hdr = open("cdna_kernels/" + NAME + ".s.ref").read().split("; Override launch geometry")[0]
    s = hdr
    s += f"; @launch kernel={n1} grid=(256,1,1) block=(512,1,1) lds={l1}\n"
    s += f"; @launch kernel={n2} grid=(256,1,1) block=(512,1,1) lds={l2}\n"
    s += f"; @launch kernel={n3} grid=({K3_WGS},1,1) block=(256,1,1) lds={l3}\n"
    s += '.amdgcn_target "amdgcn-amd-amdhsa--gfx950"\n.text\n'
    s += e.text()
    s += '.section .rodata,"a"\n'
    for n, v in ((n1, v1), (n2, v2), (n3, v3)):
        s += ".p2align 6\n" + kdesc(n, v)
    open(out, "w").write(s)
    print("vgprs", v1, v2, v3, "lds", l1, l2, l3)


if __name__ == "__main__":
    if len(sys.argv) > 2 and sys.argv[2] == "instr":
        INSTR = True
    if len(sys.argv) > 2 and sys.argv[2] == "hstamp":
        INSTR = 2
    main(sys.argv[1] if len(sys.argv) > 1 else "cdna_kernels/" + NAME + ".s")
```

```python
import sys, math, os
EXP = os.environ.get('EXP', '')

NAME = "recurrent_scan__spectral_fnet__mixer_channel_mlp__prompt"

WS_XN = 0
WS_Y2 = 2 << 20
WS_WCAT = 4 << 20
WS_W2T = 8 << 20
WS_ABT = 10 << 20
WS_H = 16 << 20
WS_PART = 32 << 20
HS = 1408
F = 1376

KA_X, KA_WSRE, KA_WSIM, KA_WDRE, KA_WDIM, KA_BX, KA_W1, KA_B1, KA_W2, KA_B2, KA_OUT, KA_DBG, KA_WS = [8 * i for i in range(13)]


INSTR = False
ROT = False
TOUCH1 = int(os.environ.get('TOUCH1', '0'))
TOUCH2 = int(os.environ.get('TOUCH2', '1'))
TOUCH3 = int(os.environ.get('TOUCH3', '0'))
WS_DBG = 100 << 20
K3_SKIP = int(os.environ.get('K3_SKIP', '2'))


def stamp(e, k):
    if INSTR:
        e(f"s_memtime s[{70 + 2 * k}:{71 + 2 * k}]")


def stamp_rt(e, k):
    if INSTR:
        e(f"s_memrealtime s[{70 + 2 * k}:{71 + 2 * k}]")


def stamp_flush(e, kidx, n, wsbase=4):
    if not INSTR:
        return
    if INSTR == 2:
        e(f"s_load_dwordx2 s[96:97], s[0:1], {KA_DBG}")
        e("s_waitcnt lgkmcnt(0)")
        e(f"s_add_u32 s96, s96, {512 * (3 - kidx)}")
        e("s_addc_u32 s97, s97, 0")
        e("s_mov_b32 s98, 256")
        e("s_mov_b32 s99, 0x20000")
        e("v_mov_b32 v1, 0")
        e("v_mov_b32 v2, s70")
        e("v_mov_b32 v3, s82")
        e("s_and_b32 s100, s2, 7")
        e("v_or_b32 v4, s100, v0")
        e("v_cmp_eq_u32 vcc, 0, v4")
        e("s_and_saveexec_b64 s[100:101], vcc")
        e(f"buffer_atomic_umax v3, v1, s[96:99], 0 offen offset:{8 * kidx + 4}")
        e("v_or_b32 v4, s2, v0")
        e("v_cmp_eq_u32 vcc, 0, v4")
        e("s_and_saveexec_b64 s[100:101], vcc")
        e(f"buffer_store_dword v2, v1, s[96:99], 0 offen offset:{8 * kidx}")
        return
    e("s_waitcnt lgkmcnt(0)")
    e("s_getreg_b32 s84, hwreg(HW_REG_XCC_ID)")
    n = 8
    e(f"s_add_u32 s96, s{wsbase}, {WS_DBG + kidx * (1 << 18)}")
    e(f"s_addc_u32 s97, s{wsbase + 1}, 0")
    e(f"s_mov_b32 s98, {1 << 18}")
    e("s_mov_b32 s99, 0x20000")
    e("s_lshl_b32 s100, s2, 2")
    e("s_add_u32 s100, s100, s16")
    e("s_lshl_b32 s100, s100, 6")
    e("v_mov_b32 v1, 0")
    for k in range(n):
        e(f"v_mov_b32 v2, s{70 + 2 * k}")
        e(f"buffer_store_dword v2, v1, s[96:99], s100 offen offset:{4 * k}")


class E:
    def __init__(self):
        self.L = []

    def __call__(self, s):
        for line in s.split("\n"):
            line = line.strip()
            if line:
                self.L.append(("    " if not line.endswith(":") else "") + line)

    def text(self):
        return "\n".join(self.L) + "\n"


def f32bits(x):
    import struct
    return struct.unpack("<I", struct.pack("<f", x))[0]


def srd(e, d, base, off, nbytes):
    if off:
        e(f"s_add_u32 s{d}, s{base}, {off}")
        e(f"s_addc_u32 s{d+1}, s{base+1}, 0")
    else:
        e(f"s_mov_b32 s{d}, s{base}")
        e(f"s_mov_b32 s{d+1}, s{base+1}")
    e(f"s_mov_b32 s{d+2}, {nbytes}")
    e(f"s_mov_b32 s{d+3}, 0x20000")


def kernel_head(e, name):
    e(f".globl {name}")
    e(".p2align 8")
    e(f".type {name},@function")
    e(f"{name}:")


def kdesc(name, vgpr, sgpr=102):
    v = (vgpr + 3) // 4 * 4
    return f""".amdhsa_kernel {name}
  .amdhsa_next_free_vgpr {v}
  .amdhsa_next_free_sgpr {sgpr}
  .amdhsa_accum_offset {v}
  .amdhsa_group_segment_fixed_size 0
  .amdhsa_kernarg_size 104
  .amdhsa_user_sgpr_count 2
  .amdhsa_user_sgpr_kernarg_segment_ptr 1
  .amdhsa_system_sgpr_workgroup_id_x 1
.end_amdhsa_kernel
"""


NT0 = ' nt' if int(os.environ.get('NT0', '0')) else ''
NTT = ' nt' if int(os.environ.get('NTT', '0')) else ''
NTQ = ' nt' if int(os.environ.get('NTQ', '0')) else ''
BARFIRST = int(os.environ.get('BARFIRST', '1'))
CODEPF = int(os.environ.get('CODEPF', '0'))


def code_touch(e, tag, lo, hi, vt=40):
    e("s_getpc_b64 s[64:65]")
    e(f"L_{tag}_pc:")
    e(f"s_add_u32 s64, s64, {lo}-L_{tag}_pc")
    e("s_addc_u32 s65, s65, 0")
    e(f"v_and_b32 v{vt}, 255, v0")
    e(f"v_lshlrev_b32 v{vt}, 7, v{vt}")
    e(f"v_min_u32 v{vt}, {hi}-{lo}-4, v{vt}")
    e(f"global_load_dword v{vt+1}, v{vt}, s[64:65]")


def ws_touch(e, idreg, groups, tag, sw="s16", sre=40, sd=44):
    e(f"s_lshr_b32 s22, {idreg}, 3")
    e("s_cmp_ge_u32 s22, 24")
    e(f"s_cbranch_scc1 L_{tag}_notouch")
    srd(e, sd, sre, 0, 8 << 20)
    srd(e, sd + 4, sre + 2, 0, 8 << 20)
    e(f"s_and_b32 s23, {idreg}, 7")
    e("s_mul_i32 s23, s23, 6")
    e("s_lshr_b32 s31, s22, 2")
    e("s_add_u32 s23, s23, s31")
    e("s_and_b32 s22, s22, 3")
    e("s_lshl_b32 s22, s22, 2")
    e(f"s_add_u32 s22, s22, {sw}")
    e("s_lshl_b32 s22, s22, 3")
    e("s_and_b32 s31, s23, 15")
    e("s_lshl_b32 s31, s31, 7")
    e("s_add_u32 s22, s22, s31")
    e("s_lshr_b32 s23, s23, 4")
    e("s_mul_i32 s31, s23, 21")
    e("s_min_u32 s32, s23, 1")
    e("s_add_u32 s31, s31, s32")
    e("s_sub_u32 s32, 22, s32")
    e("s_add_u32 s32, s32, s31")
    e("v_and_b32 v1, 63, v0")
    e("v_lshrrev_b32 v2, 3, v1")
    e("v_add_u32 v2, s22, v2")
    e("v_lshlrev_b32 v2, 12, v2")
    e("v_and_b32 v3, 7, v1")
    e("v_add_u32 v3, s31, v3")
    e("v_mov_b32 v7, -1")
    for i in groups:
        e(f"v_add_u32 v4, {8 * i}, v3")
        e("v_lshl_add_u32 v5, v4, 7, v2")
        e("v_cmp_gt_u32 vcc, s32, v4")
        e("s_nop 1")
        e("v_cndmask_b32 v5, v7, v5, vcc")
        e("v_add_u32 v6, 0xfffff000, v5")
        e("v_cndmask_b32 v6, v7, v6, vcc")
        e("v_cmp_gt_u32 vcc, 32, v4")
        e("s_nop 1")
        e("v_cndmask_b32 v5, v7, v5, vcc")
        e("v_cndmask_b32 v6, v6, v7, vcc")
        e(f"buffer_load_dword v8, v5, s[{sd}:{sd+3}], 0 offen" + NTT)
        e(f"buffer_load_dword v8, v6, s[{sd+4}:{sd+7}], 0 offen" + NTT)
    e(f"L_{tag}_notouch:")


def wave_reduce(e, regs, sbase):
    for ctl in ("quad_perm:[1,0,3,2]", "quad_perm:[2,3,0,1]", "row_half_mirror", "row_mirror"):
        e("s_nop 1")
        for r in regs:
            e(f"v_add_f32_dpp v{r}, v{r}, v{r} {ctl} row_mask:0xf bank_mask:0xf")
    e("s_nop 1")
    for i, r in enumerate(regs):
        for j in range(4):
            e(f"v_readlane_b32 s{sbase + 4 * i + j}, v{r}, {16 * j}")
    e("s_nop 1")
    for i, r in enumerate(regs):
        e(f"v_mov_b32 v{r}, s{sbase + 4 * i}")
        for j in range(1, 4):
            e(f"v_add_f32 v{r}, s{sbase + 4 * i + j}, v{r}")


def bf16r_scalar(e, r):
    e(f"v_cvt_pk_bf16_f32 v{r}, v{r}, v{r}")
    e(f"v_lshlrev_b32 v{r}, 16, v{r}")


def ln_pass(e, Fr, T, P):
    rows = range(len(Fr))
    for R in rows:
        f, t = Fr[R], T[R]
        e(f"v_add_f32 v{t[0]}, v{f[0]}, v{f[1]}")
        for i in range(2, 8):
            e(f"v_add_f32 v{t[0]}, v{t[0]}, v{f[i]}")
    wave_reduce(e, [T[R][0] for R in rows], 40)
    for R in rows:
        f, t = Fr[R], T[R]
        e(f"v_mul_f32 v{t[0]}, {f32bits(1.0/512):#x}, v{t[0]}")
        e(f"v_sub_f32 v{t[2]}, v{f[0]}, v{t[0]}")
        e(f"v_mul_f32 v{t[1]}, v{t[2]}, v{t[2]}")
        for i in range(1, 8):
            e(f"v_sub_f32 v{t[2]}, v{f[i]}, v{t[0]}")
            e(f"v_fmac_f32 v{t[1]}, v{t[2]}, v{t[2]}")
    wave_reduce(e, [T[R][1] for R in rows], 40)
    for R in rows:
        f, t = Fr[R], T[R]
        e(f"v_mul_f32 v{t[1]}, {f32bits(1.0/512):#x}, v{t[1]}")
        bf16r_scalar(e, t[0])
        bf16r_scalar(e, t[1])
        e(f"v_add_f32 v{t[1]}, {f32bits(1e-5):#x}, v{t[1]}")
        bf16r_scalar(e, t[1])
        e(f"v_sqrt_f32 v{t[1]}, v{t[1]}")
        e("s_nop 0")
        bf16r_scalar(e, t[1])
        e(f"v_rcp_f32 v{t[2]}, v{t[1]}")
        e("s_nop 0")
        for i in range(0, 8, 2):
            e(f"v_sub_f32 v{f[i]}, v{f[i]}, v{t[0]}")
            e(f"v_sub_f32 v{f[i+1]}, v{f[i+1]}, v{t[0]}")
            e(f"v_cvt_pk_bf16_f32 v{t[3]}, v{f[i]}, v{f[i+1]}")
            e(f"v_lshlrev_b32 v{f[i]}, 16, v{t[3]}")
            e(f"v_and_b32 v{f[i+1]}, 0xffff0000, v{t[3]}")
            for j in (i, i + 1):
                e(f"v_mul_f32 v{t[3]}, v{f[j]}, v{t[2]}")
                e(f"v_fma_f32 v{t[4]}, -v{t[3]}, v{t[1]}, v{f[j]}")
                e(f"v_fma_f32 v{f[j]}, v{t[4]}, v{t[2]}, v{t[3]}")
            e(f"v_cvt_pk_bf16_f32 v{P[R][i//2]}, v{f[i]}, v{f[i+1]}")
            e(f"v_lshlrev_b32 v{f[i]}, 16, v{P[R][i//2]}")
            e(f"v_and_b32 v{f[i+1]}, 0xffff0000, v{P[R][i//2]}")


K0_LN, K0_T1, K0_T2, K0_CP = 256, 88, 88, 32
PF0 = [int(c) for c in os.environ.get('PF0', '')]
PF1 = [int(c) for c in os.environ.get('PF1', '')]
PF2 = [int(c) for c in os.environ.get('PF2', '')]
K0_PF = 192 if PF0 else 0
K0_WGS = K0_LN + K0_T1 + K0_T2 + K0_CP + K0_PF


def gen_k0(e, name):
    kernel_head(e, name)
    e(f"s_cmp_ge_u32 s2, {K0_WGS}")
    e(f"s_cbranch_scc1 L_k0_done")
    stamp_rt(e, 0); stamp(e, 1)
    e(f"s_load_dwordx2 s[4:5], s[0:1], {KA_X}")
    e(f"s_load_dwordx2 s[6:7], s[0:1], {KA_WS}")
    e(f"s_load_dwordx4 s[8:11], s[0:1], {KA_WDRE}")
    e(f"s_load_dwordx2 s[12:13], s[0:1], {KA_W1}")
    e(f"s_load_dwordx2 s[14:15], s[0:1], {KA_W2}")
    e("v_lshrrev_b32 v1, 6, v0")
    e("v_and_b32 v2, 63, v0")
    e("s_nop 0")
    e("v_readfirstlane_b32 s16, v1")
    e("s_waitcnt lgkmcnt(0)")
    srd(e, 24, 6, 0, 64 << 20)
    e(f"s_cmp_ge_u32 s2, {K0_LN}")
    e("s_cbranch_scc1 L_k0_notln")
    srd(e, 20, 4, 0, 2 << 20)
    e("s_lshl_b32 s17, s2, 3")
    e("s_lshl_b32 s18, s16, 1")
    e("s_add_u32 s17, s17, s18")
    e("s_lshl_b32 s17, s17, 10")
    e("v_lshlrev_b32 v3, 4, v2")
    e("v_add_u32 v3, s17, v3")
    e("buffer_load_dwordx4 v[4:7], v3, s[20:23], 0 offen" + NT0)
    e("buffer_load_dwordx4 v[8:11], v3, s[20:23], 0 offen offset:1024" + NT0)
    Fr = [list(range(16, 24)), list(range(24, 32))]
    T = [list(range(32, 38)), list(range(38, 44))]
    P = [list(range(44, 48)), list(range(48, 52))]
    e("s_waitcnt vmcnt(0)")
    stamp(e, 2)
    for R in range(2):
        for i in range(4):
            e(f"v_lshlrev_b32 v{Fr[R][2*i]}, 16, v{4+4*R+i}")
            e(f"v_and_b32 v{Fr[R][2*i+1]}, 0xffff0000, v{4+4*R+i}")
    ln_pass(e, Fr, T, P)
    e("buffer_store_dwordx4 v[44:47], v3, s[24:27], 0 offen")
    e("buffer_store_dwordx4 v[48:51], v3, s[24:27], 0 offen offset:1024")
    P2 = [list(range(52, 56)), list(range(56, 60))]
    ln_pass(e, Fr, T, P2)
    e(f"s_mov_b32 s17, {WS_Y2}")
    e("buffer_store_dwordx4 v[52:55], v3, s[24:27], s17 offen")
    e("buffer_store_dwordx4 v[56:59], v3, s[24:27], s17 offen offset:1024")
    stamp(e, 3); stamp(e, 4); stamp(e, 5); stamp_rt(e, 6); stamp_flush(e, 0, 7, wsbase=6)
    e("s_endpgm")
    e("L_k0_notln:")
    e(f"s_cmp_ge_u32 s2, {K0_LN + K0_T1}")
    e("s_cbranch_scc1 L_k0_nott1")
    srd(e, 20, 12, 0, 512 * F * 2)
    e(f"s_sub_u32 s17, s2, {K0_LN}")
    e("s_lshl_b32 s17, s17, 2")
    e("s_add_u32 s17, s17, s16")
    e("s_lshr_b32 s18, s17, 4")
    e("s_and_b32 s19, s17, 15")
    e("s_lshl_b32 s18, s18, 6")
    e("v_add_u32 v3, s18, v2")
    e("v_lshlrev_b32 v20, 1, v3")
    e(f"s_mul_i32 s28, s19, {32 * F * 2}")
    for i in range(32):
        e(f"buffer_load_ushort v{24 + i}, v20, s[20:23], s28 offen" + NT0)
        if i != 31:
            e(f"s_add_u32 s28, s28, {F * 2}")
    e("v_lshlrev_b32 v21, 10, v3")
    e("s_lshl_b32 s19, s19, 6")
    e(f"s_add_u32 s19, s19, {WS_WCAT + 1024 * 1024}")
    e(f"v_cmp_gt_u32 vcc, {F}, v3")
    e("s_and_saveexec_b64 s[30:31], vcc")
    e("s_cbranch_execz L_k0_done")
    e("s_waitcnt vmcnt(0)")
    stamp(e, 2)
    for i in range(16):
        e(f"v_lshl_or_b32 v{4 + i}, v{25 + 2 * i}, 16, v{24 + 2 * i}")
    for i in range(4):
        e(f"buffer_store_dwordx4 v[{4+4*i}:{7+4*i}], v21, s[24:27], s19 offen offset:{16*i}")
    stamp(e, 3); stamp(e, 4); stamp(e, 5); stamp_rt(e, 6); stamp_flush(e, 0, 7, wsbase=6)
    e("s_endpgm")
    e("L_k0_nott1:")
    e(f"s_cmp_ge_u32 s2, {K0_LN + K0_T1 + K0_T2}")
    e("s_cbranch_scc1 L_k0_cp")
    srd(e, 20, 14, 0, F * 512 * 2)
    e(f"s_sub_u32 s17, s2, {K0_LN + K0_T1}")
    e("s_lshl_b32 s17, s17, 2")
    e("s_add_u32 s17, s17, s16")
    e("s_and_b32 s18, s17, 7")
    e("s_lshr_b32 s19, s17, 3")
    e("s_lshl_b32 s18, s18, 6")
    e("v_add_u32 v3, s18, v2")
    e("v_lshlrev_b32 v20, 1, v3")
    e("s_lshl_b32 s28, s19, 15")
    for i in range(32):
        e(f"buffer_load_ushort v{24 + i}, v20, s[20:23], s28 offen" + NT0)
        if i != 31:
            e(f"s_add_u32 s28, s28, 1024")
    e(f"v_mul_u32_u24 v21, {HS * 2}, v3")
    e("s_lshl_b32 s19, s19, 6")
    e(f"s_add_u32 s19, s19, {WS_W2T}")
    e("s_waitcnt vmcnt(0)")
    stamp(e, 2)
    for i in range(16):
        e(f"v_lshl_or_b32 v{4 + i}, v{25 + 2 * i}, 16, v{24 + 2 * i}")
    for i in range(4):
        e(f"buffer_store_dwordx4 v[{4+4*i}:{7+4*i}], v21, s[24:27], s19 offen offset:{16*i}")
    stamp(e, 3); stamp(e, 4); stamp(e, 5); stamp_rt(e, 6); stamp_flush(e, 0, 7, wsbase=6)
    e("s_endpgm")
    e("L_k0_cp:")
    if PF0:
        e(f"s_cmp_lt_u32 s2, {K0_WGS - K0_PF}")
        e("s_cbranch_scc1 L_k0_cp2")
        e(f"s_load_dwordx4 s[40:43], s[0:1], {KA_WSRE}")
        e(f"s_sub_u32 s30, s2, {K0_WGS - K0_PF}")
        e("s_waitcnt lgkmcnt(0)")
        ws_touch(e, "s30", PF0, "k0")
        e("s_endpgm")
        e("L_k0_cp2:")
    if CODEPF:
        code_touch(e, "k0c", "fnet_k1_kernel", "L_k3_done")
    e(f"s_sub_u32 s17, s2, {K0_LN + K0_T1 + K0_T2}")
    e("s_lshl_b32 s17, s17, 2")
    e("s_add_u32 s17, s17, s16")
    e("s_cmp_ge_u32 s17, 64")
    e("s_cselect_b32 s20, s10, s8")
    e("s_cselect_b32 s21, s11, s9")
    e(f"s_mov_b32 s22, {512 * 1024}")
    e("s_mov_b32 s23, 0x20000")
    e("s_and_b32 s18, s17, 63")
    e("s_lshl_b32 s18, s18, 13")
    e("s_lshl_b32 s19, s17, 13")
    e(f"s_add_u32 s19, s19, {WS_WCAT}")
    e("v_lshlrev_b32 v3, 4, v2")
    for i in range(8):
        if i == 4:
            e("s_add_u32 s18, s18, 4096")
        e(f"buffer_load_dwordx4 v[{4+4*i}:{7+4*i}], v3, s[20:23], s18 offen offset:{1024*(i%4)}" + NT0)
    e("s_waitcnt vmcnt(0)")
    for i in range(8):
        if i == 4:
            e("s_add_u32 s19, s19, 4096")
        e(f"buffer_store_dwordx4 v[{4+4*i}:{7+4*i}], v3, s[24:27], s19 offen offset:{1024*(i%4)}")
    e("L_k0_done:")
    e("s_endpgm")
    return 64


class Gemm:
    def __init__(self, tag, TM, TN, WM, WN, nsteps, NS, strideP, strideQ, swap=False, vbase=16, dyn=False):
        self.tag = tag
        self.dyn = dyn
        self.TM, self.TN, self.WM, self.WN = TM, TN, WM, WN
        self.PR, self.QR = WM * TM * 16, WN * TN * 16
        self.nsteps, self.NS = nsteps, NS
        self.sP, self.sQ = strideP, strideQ
        self.swap = swap
        self.SS = (self.PR + self.QR) * 128
        assert (self.PR // 8) % 4 == 0 and (self.QR // 8) % 4 == 0
        self.DP, self.DQ = self.PR // 32, self.QR // 32
        self.D = self.DP + self.DQ
        v = vbase
        self.vDP, self.vDQ, self.vP0b, self.vP1b, self.vQ0b, self.vQ1b = range(v, v + 6)
        self.vPa0, self.vPa1, self.vQa0, self.vQa1 = range(v + 6, v + 10)
        v = (v + 10 + 3) // 4 * 4
        self.fP = [v, v + 4 * (TM + TN)]
        self.fQ = [v + 4 * TM, v + 4 * (TM + TN) + 4 * TM]
        v += 8 * (TM + TN)
        self.acc = v
        self.vend = v + 4 * TM * TN

    def accreg(self, tm, tn):
        return self.acc + 4 * (tm * self.TN + tn)

    def setup_prod(self, e):
        g = self
        e("v_and_b32 v1, 63, v0")
        e("v_lshrrev_b32 v2, 3, v1")
        e("v_lshrrev_b32 v3, 4, v1")
        e("s_and_b32 s22, s16, 1")
        e("s_lshl_b32 s22, s22, 2")
        e("v_add_u32 v3, s22, v3")
        e("v_and_b32 v4, 7, v1")
        e("v_xor_b32 v3, v3, v4")
        e("v_lshlrev_b32 v3, 4, v3")
        e("s_lshl_b32 s22, s16, 3")
        e("v_add_u32 v2, s22, v2")
        if g.dyn:
            e(f"v_mul_lo_u32 v4, v2, s56")
            e(f"v_add_u32 v{g.vDP}, v4, v3")
            e(f"v_mul_lo_u32 v4, v2, s57")
            e(f"v_add_u32 v{g.vDQ}, v4, v3")
            for jj in range(1, g.DP):
                e(f"s_mul_i32 s{57 + jj}, s56, {32 * jj}")
            for jj in range(1, g.DQ):
                e(f"s_mul_i32 s{61 + jj}, s57, {32 * jj}")
        else:
            e(f"s_mov_b32 s22, {g.sP}")
            e(f"v_mul_lo_u32 v4, v2, s22")
            e(f"v_add_u32 v{g.vDP}, v4, v3")
            e(f"s_mov_b32 s22, {g.sQ}")
            e(f"v_mul_lo_u32 v4, v2, s22")
            e(f"v_add_u32 v{g.vDQ}, v4, v3")
        e("s_lshl_b32 s19, s16, 10")
        if ROT:
            m = 1
            while m * 2 <= g.nsteps:
                m *= 2
            e("s_lshr_b32 s22, s2, 3")
            e(f"s_and_b32 s22, s22, {m - 1}")
            e(f"s_sub_u32 s54, {g.nsteps}, s22")
            e("s_lshl_b32 s22, s22, 7")
            e("s_add_u32 s17, s17, s22")
            e("s_add_u32 s18, s18, s22")

    def setup_cons(self, e):
        g = self
        e("v_and_b32 v1, 63, v0")
        e("v_and_b32 v2, 15, v1")
        e("v_lshrrev_b32 v3, 1, v2")
        e("v_lshrrev_b32 v4, 4, v1")
        e("v_xor_b32 v3, v3, v4")
        e("v_lshlrev_b32 v3, 4, v3")
        e("v_lshlrev_b32 v2, 7, v2")
        e("v_add_u32 v2, v2, v3")
        if g.WN == 2:
            e("s_lshr_b32 s22, s16, 1")
            e("s_and_b32 s23, s16, 1")
        elif g.WN == 1:
            e("s_mov_b32 s22, s16")
            e("s_mov_b32 s23, 0")
        elif g.WN == 4:
            e("s_mov_b32 s22, 0")
            e("s_mov_b32 s23, s16")
        e(f"s_mul_i32 s22, s22, {g.TM * 2048}")
        e(f"s_mul_i32 s23, s23, {g.TN * 2048}")
        e(f"s_add_u32 s23, s23, {g.PR * 128}")
        e(f"v_add_u32 v{g.vP0b}, s22, v2")
        e(f"v_xor_b32 v{g.vP1b}, 64, v{g.vP0b}")
        e(f"v_add_u32 v{g.vQ0b}, s23, v2")
        e(f"v_xor_b32 v{g.vQ1b}, 64, v{g.vQ0b}")
        e("s_mov_b32 s20, 0")

    def dma_ops(self):
        g = self
        ops = []
        for j in range(g.D):
            isP = j < g.DP
            jj = j if isP else j - g.DP
            stride = g.sP if isP else g.sQ
            sk = "s17" if isP else "s18"
            sr = "s[8:11]" if isP else "s[12:15]"
            vd = g.vDP if isP else g.vDQ
            grp = [f"s_add_u32 m0, s19, {j * 4096}"]
            if jj == 0:
                grp.append("s_nop 0")
                grp.append(f"buffer_load_dwordx4 v{vd}, {sr}, {sk} offen" + (NTQ if (g.dyn and not isP) else "") + " lds")
            else:
                if g.dyn:
                    grp.append(f"s_add_u32 s22, {sk}, s{(57 if isP else 61) + jj}")
                else:
                    grp.append(f"s_add_u32 s22, {sk}, {jj * 32 * stride}")
                grp.append(f"buffer_load_dwordx4 v{vd}, {sr}, s22 offen" + (NTQ if (g.dyn and not isP) else "") + " lds")
            ops.append(grp)
        adv = ["s_add_u32 s17, s17, 128", "s_add_u32 s18, s18, 128",
               f"s_add_u32 s19, s19, {g.SS}", f"s_sub_u32 s22, s19, {g.NS * g.SS}",
               f"s_cmp_ge_u32 s19, {g.NS * g.SS}", "s_cselect_b32 s19, s22, s19"]
        if ROT:
            adv += ["s_sub_u32 s54, s54, 1", "s_cmp_eq_u32 s54, 0",
                    f"s_cselect_b32 s22, {g.nsteps * 128}, 0",
                    "s_sub_u32 s17, s17, s22", "s_sub_u32 s18, s18, s22"]
        if g.dyn:
            adv += ["s_sub_u32 s54, s54, 1", "s_cmp_eq_u32 s54, 0",
                    "s_cselect_b32 s12, s42, s12", "s_cselect_b32 s13, s43, s13",
                    "s_cselect_b32 s22, 4096, 0", "s_sub_u32 s18, s18, s22"]
        ops.append(adv)
        return ops

    def frag_reads(self, st):
        g = self
        va, vq = (g.vPa0, g.vQa0) if st == 0 else (g.vPa1, g.vQa1)
        ops = []
        for i in range(max(g.TM, g.TN)):
            if i < g.TM:
                r = g.fP[st] + 4 * i
                ops.append([f"ds_read_b128 v[{r}:{r+3}], v{va} offset:{i * 2048}"])
            if i < g.TN:
                r = g.fQ[st] + 4 * i
                ops.append([f"ds_read_b128 v[{r}:{r+3}], v{vq} offset:{i * 2048}"])
        return ops

    def mfmas(self, st):
        g = self
        ops = []
        if EXP == "E2" and g.tag == "k2":
            return ["s_nop 0"]
        for tm in range(g.TM):
            for tn in range(g.TN):
                a = g.accreg(tm, tn)
                p = g.fP[st] + 4 * tm
                q = g.fQ[st] + 4 * tn
                if g.swap:
                    p, q = q, p
                ops.append(f"v_mfma_f32_16x16x32_bf16 v[{a}:{a+3}], v[{p}:{p+3}], v[{q}:{q+3}], v[{a}:{a+3}]")
        return ops

    @staticmethod
    def interleave(e, mf, fillers):
        n = len(mf)
        k = len(fillers)
        fi = 0
        for i, m in enumerate(mf):
            e(m)
            want = min(k, -(-(i + 1) * k // n)) if k > n else min(k, i + 1)
            while fi < want:
                for ins in fillers[fi]:
                    e(ins)
                fi += 1
        while fi < k:
            for ins in fillers[fi]:
                e(ins)
            fi += 1

    def step(self, e, last):
        g = self
        e(f"v_add_u32 v{g.vPa1}, s20, v{g.vP1b}")
        e(f"v_add_u32 v{g.vQa1}, s20, v{g.vQ1b}")
        e(f"s_add_u32 s20, s20, {g.SS}")
        e(f"s_cmp_eq_u32 s20, {g.NS * g.SS}")
        e("s_cselect_b32 s20, 0, s20")
        e("s_waitcnt lgkmcnt(0)")
        g.interleave(e, g.mfmas(0), g.frag_reads(1))
        if not last:
            e(f"v_add_u32 v{g.vPa0}, s20, v{g.vP0b}")
            e(f"v_add_u32 v{g.vQa0}, s20, v{g.vQ0b}")
            e(f"s_waitcnt lgkmcnt(0)")
            e("s_barrier")
        else:
            e("s_waitcnt lgkmcnt(0)")
        fill = []
        if not last:
            fill += g.frag_reads(0)
        g.interleave(e, g.mfmas(1), fill)

    def run(self, e, extra_loads=None, pre_cons=None, step_extras=None, post_prod=None):
        g = self
        e("s_cmp_eq_u32 s53, 0")
        e(f"s_cbranch_scc1 L_{g.tag}_cons")
        e("s_setprio 1")
        g.setup_prod(e)
        for s in range(g.NS - 1):
            for grp in g.dma_ops():
                for ins in grp:
                    e(ins)
        e(f"s_waitcnt vmcnt({(g.NS - 2) * g.D})")
        e("s_barrier")
        nmain = g.nsteps - g.NS + 1
        if g.dyn:
            e(f"s_sub_u32 s21, s55, {g.NS - 1}")
        else:
            e(f"s_mov_b32 s21, {nmain}")
        e(f"L_{g.tag}_ploop:")
        e(f"s_waitcnt vmcnt({(g.NS - 3) * g.D})")
        e("s_barrier")
        for grp in g.dma_ops():
            for ins in grp:
                e(ins)
        e("s_sub_u32 s21, s21, 1")
        e("s_cmp_lg_u32 s21, 0")
        e(f"s_cbranch_scc1 L_{g.tag}_ploop")
        for i in range(nmain, g.nsteps - 1):
            e(f"s_waitcnt vmcnt({(g.nsteps - 2 - i) * g.D})")
            e("s_barrier")
        if post_prod:
            post_prod()
        e("s_endpgm")
        e(f"L_{g.tag}_cons:")
        g.setup_cons(e)
        if pre_cons:
            pre_cons()
        if extra_loads:
            for grp in extra_loads:
                for ins in grp:
                    e(ins)
        for r in range(g.acc, g.vend):
            e(f"v_mov_b32 v{r}, 0")
        e(f"v_mov_b32 v{g.vPa0}, v{g.vP0b}")
        e(f"v_mov_b32 v{g.vQa0}, v{g.vQ0b}")
        e("s_barrier")
        stamp(e, 2)
        for grp in g.frag_reads(0):
            e(grp[0])
        npeel = 0
        if step_extras:
            npeel = len(step_extras)
            for grp in step_extras:
                for ins in grp:
                    e(ins)
                g.step(e, False)
        if g.dyn:
            e(f"s_sub_u32 s21, s55, {1 + npeel}")
        else:
            e(f"s_mov_b32 s21, {g.nsteps - 1 - npeel}")
        e(f"L_{g.tag}_loop:")
        g.step(e, False)
        e("s_sub_u32 s21, s21, 1")
        e("s_cmp_lg_u32 s21, 0")
        e(f"s_cbranch_scc1 L_{g.tag}_loop")
        stamp(e, 3)
        g.step(e, True)
        e("s_nop 15")
        stamp(e, 4)


def bf16r_pair(e, a, b, t):
    e(f"v_cvt_pk_bf16_f32 v{t}, v{a}, v{b}")
    e(f"v_lshlrev_b32 v{a}, 16, v{t}")
    e(f"v_and_b32 v{b}, 0xffff0000, v{t}")


def gen_k1(e, name):
    kernel_head(e, name)
    e("s_cmp_ge_u32 s2, 256")
    e("s_cbranch_scc1 L_k1_done")
    stamp_rt(e, 0)
    stamp(e, 1)
    e(f"s_load_dwordx2 s[4:5], s[0:1], {KA_WS}")
    e(f"s_load_dwordx2 s[6:7], s[0:1], {KA_B1}")
    e(f"s_load_dwordx4 s[40:43], s[0:1], {KA_WSRE}")
    e("v_lshrrev_b32 v1, 6, v0")
    e("s_nop 0")
    e("v_readfirstlane_b32 s16, v1")
    e("s_nop 3")
    e("s_lshr_b32 s53, s16, 2")
    e("s_and_b32 s16, s16, 3")
    e("s_and_b32 s28, s2, 7")
    e("s_lshr_b32 s29, s2, 3")
    e("s_lshl_b32 s28, s28, 1")
    e("s_lshr_b32 s30, s29, 4")
    e("s_add_u32 s28, s28, s30")
    e("s_and_b32 s29, s29, 15")
    e("s_waitcnt lgkmcnt(0)")
    srd(e, 12, 4, WS_WCAT, 2400 * 1024)
    srd(e, 24, 4, 0, 64 << 20)
    e("s_lshl_b32 s17, s28, 17")

    def pre_ws():
        if not TOUCH1:
            return
        e("s_cmp_ge_u32 s2, 128")
        e("s_cselect_b32 s44, s42, s40")
        e("s_cselect_b32 s45, s43, s41")
        e(f"s_mov_b32 s46, {8 << 20}")
        e("s_mov_b32 s47, 0x20000")
        e("s_and_b32 s22, s2, 127")
        e("s_lshl_b32 s22, s22, 16")
        e("s_lshl_b32 s23, s16, 14")
        e("s_add_u32 s22, s22, s23")
        e("v_and_b32 v1, 63, v0")
        e("v_lshlrev_b32 v8, 7, v1")
        e("buffer_load_dword v9, v8, s[44:47], s22 offen")
        e("s_add_u32 s22, s22, 8192")
        e("buffer_load_dword v9, v8, s[44:47], s22 offen")
    e("s_cmp_ge_u32 s29, 7")
    e("s_cbranch_scc1 L_k1_typeB")
    srd(e, 8, 4, WS_XN, 2 << 20)
    e("s_mul_i32 s30, s29, 160")
    e("s_min_u32 s30, s30, 864")
    e("s_lshl_b32 s18, s30, 10")
    gA = Gemm("k1a", 4, 5, 2, 2, 8, 4, 1024, 1024, swap=False)
    gA.run(e, pre_cons=pre_ws, post_prod=(lambda: ws_touch(e, "s2", PF1, "k1a")) if PF1 else None)
    e("v_and_b32 v1, 63, v0")
    e("v_and_b32 v2, 15, v1")
    e("v_lshrrev_b32 v3, 4, v1")
    e("v_lshlrev_b32 v2, 13, v2")
    e("v_lshlrev_b32 v3, 3, v3")
    e("v_add_u32 v2, v2, v3")
    e("s_lshr_b32 s22, s16, 1")
    e("s_and_b32 s23, s16, 1")
    e("s_lshl_b32 s31, s28, 8")
    e("s_lshl_b32 s22, s22, 7")
    e("s_add_u32 s31, s31, s22")
    e(f"s_add_u32 s31, s31, {WS_ABT}")
    e("s_mul_i32 s23, s23, 80")
    e("s_add_u32 s30, s30, s23")
    for tn in range(5):
        e(f"s_add_u32 s32, s30, {16 * tn}")
        e("s_and_b32 s33, s32, 511")
        e("s_lshl_b32 s33, s33, 13")
        e("s_lshr_b32 s32, s32, 9")
        e("s_cmp_eq_u32 s32, 0")
        e("s_cselect_b32 s34, 0, 0x80008000")
        e("s_lshl_b32 s32, s32, 12")
        e("s_add_u32 s32, s32, s33")
        e("s_add_u32 s32, s32, s31")
        for tm in range(4):
            a = gA.accreg(tm, tn)
            e(f"v_cvt_pk_bf16_f32 v{a}, v{a}, v{a+1}")
            e(f"v_cvt_pk_bf16_f32 v{a+1}, v{a+2}, v{a+3}")
            e(f"v_xor_b32 v{a}, s34, v{a}")
            e(f"v_xor_b32 v{a+1}, s34, v{a+1}")
            e(f"buffer_store_dwordx2 v[{a}:{a+1}], v2, s[24:27], s32 offen offset:{tm * 32}")
    stamp(e, 5); stamp_rt(e, 6); stamp_flush(e, 1, 7)
    e("s_endpgm")
    e("L_k1_typeB:")
    srd(e, 8, 4, WS_Y2, 2 << 20)
    srd(e, 36, 6, 0, F * 2)
    e("s_sub_u32 s30, s29, 7")
    e("s_mul_i32 s30, s30, 160")
    e(f"s_min_u32 s30, s30, {HS - 160}")
    e("s_add_u32 s18, s30, 1024")
    e("s_lshl_b32 s18, s18, 10")
    gB = Gemm("k1b", 4, 5, 2, 2, 8, 4, 1024, 1024, swap=True)
    vb = gB.vend
    vt = vb + 10
    e("s_and_b32 s23, s16, 1")
    e("s_mul_i32 s23, s23, 80")
    e("s_add_u32 s30, s30, s23")
    e("v_and_b32 v1, 63, v0")
    e("v_lshrrev_b32 v3, 4, v1")
    e("v_lshlrev_b32 v5, 3, v3")
    e("s_lshl_b32 s31, s30, 1")
    extra = [[f"buffer_load_dwordx2 v[{vb+2*tn}:{vb+2*tn+1}], v5, s[36:39], s31 offen offset:{32*tn}"] for tn in range(5)]
    gB.run(e, extra_loads=extra, pre_cons=pre_ws, post_prod=(lambda: ws_touch(e, "s2", PF1, "k1b")) if PF1 else None)
    e("s_waitcnt vmcnt(0)")
    e("v_and_b32 v1, 63, v0")
    e("v_and_b32 v2, 15, v1")
    e(f"v_mul_u32_u24 v2, {HS * 2}, v2")
    e("v_add_u32 v2, v2, v5")
    e("s_lshr_b32 s22, s16, 1")
    e("s_lshl_b32 s32, s28, 7")
    e("s_lshl_b32 s22, s22, 6")
    e("s_add_u32 s32, s32, s22")
    e(f"s_mul_i32 s32, s32, {HS * 2}")
    e("s_add_u32 s32, s32, s31")
    e(f"s_add_u32 s32, s32, {WS_H}")
    k1 = -2.0 * math.sqrt(2.0 / math.pi) * math.log2(math.e)
    k2 = k1 * 0.044715
    e(f"s_mov_b32 s34, {f32bits(k1):#x}")
    e(f"s_mov_b32 s35, {f32bits(k2):#x}")
    for tn in range(5):
        b = [vt + 0, vt + 1, vt + 2, vt + 3]
        e(f"v_lshlrev_b32 v{b[0]}, 16, v{vb+2*tn}")
        e(f"v_and_b32 v{b[1]}, 0xffff0000, v{vb+2*tn}")
        e(f"v_lshlrev_b32 v{b[2]}, 16, v{vb+2*tn+1}")
        e(f"v_and_b32 v{b[3]}, 0xffff0000, v{vb+2*tn+1}")
        for tm in range(4):
            a = gB.accreg(tm, tn)
            t = vt + 4
            q = [vt + 5, vt + 6, vt + 7, vt + 8]
            bf16r_pair(e, a, a + 1, t)
            bf16r_pair(e, a + 2, a + 3, t)
            for r in range(4):
                e(f"v_add_f32 v{a+r}, v{a+r}, v{b[r]}")
            bf16r_pair(e, a, a + 1, t)
            bf16r_pair(e, a + 2, a + 3, t)
            for r in range(4):
                e(f"v_mul_f32 v{q[r]}, v{a+r}, v{a+r}")
            for r in range(4):
                e(f"v_mov_b32 v{t}, s34")
                e(f"v_fma_f32 v{q[r]}, v{q[r]}, s35, v{t}")
            for r in range(4):
                e(f"v_mul_f32 v{q[r]}, v{q[r]}, v{a+r}")
            for r in range(4):
                e(f"v_exp_f32 v{q[r]}, v{q[r]}")
            e("s_nop 0")
            for r in range(4):
                e(f"v_add_f32 v{q[r]}, 1.0, v{q[r]}")
            for r in range(4):
                e(f"v_rcp_f32 v{q[r]}, v{q[r]}")
            e("s_nop 0")
            for r in range(4):
                e(f"v_mul_f32 v{q[r]}, v{q[r]}, v{a+r}")
            e(f"v_cvt_pk_bf16_f32 v{a}, v{q[0]}, v{q[1]}")
            e(f"v_cvt_pk_bf16_f32 v{a+1}, v{q[2]}, v{q[3]}")
            e(f"s_add_u32 s33, s32, {tm * 16 * HS * 2}")
            e(f"buffer_store_dwordx2 v[{a}:{a+1}], v2, s[24:27], s33 offen offset:{tn * 32}")
    stamp(e, 5); stamp_rt(e, 6); stamp_flush(e, 1, 7)
    e("L_k1_done:")
    e("s_endpgm")
    return max(gA.vend, vt + 9), max(gA.NS * gA.SS, gB.NS * gB.SS)


class GemmF(Gemm):
    QSRD = [44, 48, 56, 60, 64]

    def __init__(self, tag, qtr):
        super().__init__(tag, 4, 5, 2, 2, 8, 4, 1024, 1024, swap=qtr)
        self.qtr = qtr
        self.ones = self.vend
        self.accS = self.vend + 4
        self.accC = self.accS + 16
        self.vend = self.accC + 20
        self.vDQ5 = list(range(40, 45))
        self.var = None

    def setup_prod(self, e):
        g = self
        super().setup_prod(e)
        if g.qtr:
            e("s_lshl_b32 s22, s16, 6")
            e("v_add_u32 v5, s22, v1")
            e("s_movk_i32 s22, 3277")
            e(f"s_movk_i32 s23, {F * 2}")
            e("s_lshr_b32 s31, s30, 3")
            e("v_mov_b32 v10, 0x40000000")
            for j in range(5):
                e(f"v_add_u32 v6, {256 * j}, v5")
                e("v_mul_lo_u32 v7, v6, s22")
                e("v_lshrrev_b32 v7, 16, v7")
                e("v_mul_u32_u24 v8, 20, v7")
                e("v_sub_u32 v8, v6, v8")
                e("v_lshrrev_b32 v9, 2, v7")
                e("v_and_b32 v9, 2, v9")
                e("v_xor_b32 v8, v8, v9")
                e("v_mul_lo_u32 v7, v7, s23")
                e(f"v_lshl_add_u32 v{g.vDQ5[j]}, v8, 4, v7")
                e("v_add_u32 v8, s31, v8")
                e(f"v_cmp_gt_u32 vcc, {F // 8}, v8")
                e("s_nop 1")
                e(f"v_cndmask_b32 v{g.vDQ5[j]}, v10, v{g.vDQ5[j]}, vcc")

    def dma_ops(self):
        g = self
        ops = []
        for j in range(g.D):
            isP = j < g.DP
            jj = j if isP else j - g.DP
            grp = [f"s_add_u32 m0, s19, {j * 4096}"]
            if isP:
                if jj == 0:
                    grp += ["s_nop 0", f"buffer_load_dwordx4 v{g.vDP}, s[8:11], s17 offen lds"]
                else:
                    grp += [f"s_add_u32 s22, s17, {jj * 32 * 1024}", f"buffer_load_dwordx4 v{g.vDP}, s[8:11], s22 offen lds"]
            elif g.qtr:
                grp += ["s_nop 0", f"buffer_load_dwordx4 v{g.vDQ5[jj]}, s[12:15], s18 offen lds"]
            else:
                r = g.QSRD[jj]
                grp += ["s_nop 0", f"buffer_load_dwordx4 v{g.vDQ}, s[{r}:{r+3}], s18 offen lds"]
            ops.append(grp)
        adv = ["s_add_u32 s17, s17, 128", f"s_add_u32 s18, s18, {64 * F * 2 if g.qtr else 128}",
               f"s_add_u32 s19, s19, {g.SS}", f"s_sub_u32 s22, s19, {g.NS * g.SS}",
               f"s_cmp_ge_u32 s19, {g.NS * g.SS}", "s_cselect_b32 s19, s22, s19"]
        ops.append(adv)
        return ops

    def setup_cons(self, e):
        g = self
        super().setup_cons(e)
        if g.qtr:
            e("v_lshrrev_b32 v2, 4, v1")
            e("v_lshlrev_b32 v3, 3, v2")
            e("v_bfe_u32 v4, v1, 2, 2")
            e("v_add_u32 v3, v3, v4")
            e("v_mul_u32_u24 v3, 320, v3")
            e("v_and_b32 v4, 3, v1")
            e("v_lshl_add_u32 v3, v4, 3, v3")
            e("s_and_b32 s23, s16, 1")
            e("s_mul_i32 s22, s23, 160")
            e(f"s_add_u32 s22, s22, {g.PR * 128}")
            e("v_add_u32 v3, s22, v3")
            e("v_and_b32 v2, 1, v2")
            e("v_lshlrev_b32 v2, 5, v2")
            e("s_cmp_eq_u32 s23, 0")
            e("s_cselect_b32 s22, 1, -1")
            e("v_mul_lo_u32 v2, v2, s22")
            e(f"v_add_u32 v{g.vQ0b}, v3, v2")
            e(f"v_sub_u32 v{g.vQ1b}, v3, v2")
        for i in range(4):
            e(f"v_mov_b32 v{g.ones + i}, 0x3f803f80")

    def frag_reads(self, st):
        g = self
        if not g.qtr:
            return super().frag_reads(st)
        va = g.vPa0 if st == 0 else g.vPa1
        ops = []
        for i in range(5):
            if i < 4:
                r = g.fP[st] + 4 * i
                ops.append([f"ds_read_b128 v[{r}:{r+3}], v{va} offset:{i * 2048}"])
            r = g.fQ[st] + 4 * i
            vq = g.vQa0 if i % 2 == 0 else g.vQa1
            for h in range(2):
                ops.append([f"ds_read_b64_tr_b16 v[{r+2*h}:{r+2*h+1}], v{vq} offset:{i * 32 + h * 1280 + st * 10240}"])
        return ops

    def mfmas(self, st):
        g = self
        ops = super().mfmas(st)
        wm, wn = g.var
        o = g.ones
        ex = []
        for tm in range(4):
            a = g.accS + 4 * tm
            p = g.fP[st] + 4 * tm
            A = p if wn == 0 else o
            ex.append(f"v_mfma_f32_16x16x32_bf16 v[{a}:{a+3}], v[{A}:{A+3}], v[{p}:{p+3}], v[{a}:{a+3}]")
        if wm == st:
            for tn in range(5):
                a = g.accC + 4 * tn
                q = g.fQ[st] + 4 * tn
                A, B = (q, o) if g.qtr else (o, q)
                ex.append(f"v_mfma_f32_16x16x32_bf16 v[{a}:{a+3}], v[{A}:{A+3}], v[{B}:{B+3}], v[{a}:{a+3}]")
        return ops + ex

    def step(self, e, last):
        g = self
        if not g.qtr:
            return super().step(e, last)
        e(f"v_add_u32 v{g.vPa1}, s20, v{g.vP1b}")
        e(f"s_add_u32 s20, s20, {g.SS}")
        e(f"s_cmp_eq_u32 s20, {g.NS * g.SS}")
        e("s_cselect_b32 s20, 0, s20")
        e("s_waitcnt lgkmcnt(0)")
        g.interleave(e, g.mfmas(0), g.frag_reads(1))
        if not last:
            e(f"v_add_u32 v{g.vPa0}, s20, v{g.vP0b}")
            e(f"v_add_u32 v{g.vQa0}, s20, v{g.vQ0b}")
            e(f"v_add_u32 v{g.vQa1}, s20, v{g.vQ1b}")
            e(f"s_waitcnt lgkmcnt(0)")
            e("s_barrier")
        else:
            e("s_waitcnt lgkmcnt(0)")
        g.interleave(e, g.mfmas(1), [] if last else g.frag_reads(0))

    SC = 4 * 36864
    SC_SQ, SC_SUM, SC_CS, SC_AB = SC, SC + 512, SC + 1024, SC + 2560
    LDS = SC + 2560 + 2048

    def run(self, e, extra_loads, post_issue, post_finish):
        g = self
        t = g.tag
        e("s_cmp_eq_u32 s53, 0")
        e(f"s_cbranch_scc1 L_{t}_cons")
        e("s_setprio 1")
        g.setup_prod(e)
        for s_ in range(g.NS - 1):
            for grp in g.dma_ops():
                for ins in grp:
                    e(ins)
        e(f"s_waitcnt vmcnt({(g.NS - 2) * g.D})")
        e("s_barrier")
        nmain = g.nsteps - g.NS + 1
        e(f"s_mov_b32 s21, {nmain}")
        e(f"L_{t}_ploop:")
        e(f"s_waitcnt vmcnt({(g.NS - 3) * g.D})")
        e("s_barrier")
        for grp in g.dma_ops():
            for ins in grp:
                e(ins)
        e("s_sub_u32 s21, s21, 1")
        e("s_cmp_lg_u32 s21, 0")
        e(f"s_cbranch_scc1 L_{t}_ploop")
        for i in range(nmain, g.nsteps - 1):
            e(f"s_waitcnt vmcnt({(g.nsteps - 2 - i) * g.D})")
            e("s_barrier")
        e("s_setprio 0")
        e("s_barrier")
        post_issue()
        post_finish()
        e("s_endpgm")
        e(f"L_{t}_cons:")
        g.setup_cons(e)
        for grp in extra_loads:
            for ins in grp:
                e(ins)
        for r in list(range(g.acc, g.ones)) + list(range(g.accS, g.vend)):
            e(f"v_mov_b32 v{r}, 0")
        e(f"v_mov_b32 v{g.vPa0}, v{g.vP0b}")
        e(f"v_mov_b32 v{g.vQa0}, v{g.vQ0b}")
        if g.qtr:
            e(f"v_mov_b32 v{g.vQa1}, v{g.vQ1b}")
        e("v_and_b32 v1, 63, v0")
        e("v_and_b32 v2, 15, v1")
        e("v_lshrrev_b32 v3, 4, v1")
        e("s_lshr_b32 s34, s16, 1")
        e("s_and_b32 s35, s16, 1")
        e("s_barrier")
        stamp(e, 2)
        for grp in g.frag_reads(0):
            e(grp[0])
        e(f"s_mov_b32 s21, {g.nsteps - 1}")
        for w in range(1, 4):
            e(f"s_cmp_eq_u32 s16, {w}")
            e(f"s_cbranch_scc1 L_{t}_loop{w}")
        for w in range(4):
            g.var = (w >> 1, w & 1)
            wm, wn = g.var
            e(f"L_{t}_loop{w}:")
            g.step(e, False)
            e("s_sub_u32 s21, s21, 1")
            e("s_cmp_lg_u32 s21, 0")
            e(f"s_cbranch_scc1 L_{t}_loop{w}")
            stamp(e, 3)
            g.step(e, True)
            e("v_lshlrev_b32 v4, 2, v2")
            e(f"v_add_u32 v13, {g.SC}, v4")
            if wn == 0:
                e("v_and_b32 v5, 3, v1")
                e("v_cmp_eq_u32 s[86:87], 1, v5")
                e("v_cmp_eq_u32 s[88:89], 2, v5")
                e("v_cmp_eq_u32 s[90:91], 3, v5")
                e("v_lshrrev_b32 v5, 2, v2")
                e("v_cmp_eq_u32 vcc, v5, v3")
                e("s_nop 7")
                for tm in range(4):
                    a = g.accS + 4 * tm
                    for i in range(1, 4):
                        e(f"v_cndmask_b32 v{a}, v{a}, v{a+i}, s[{84+2*i}:{85+2*i}]")
            else:
                e("v_cmp_gt_u32 vcc, 16, v1")
                e("s_nop 7")
            e("s_and_saveexec_b64 s[92:93], vcc")
            for tm in range(4):
                e(f"ds_write_b32 v13, v{g.accS + 4 * tm} offset:{(g.SC_SQ if wn == 0 else g.SC_SUM) - g.SC + 256 * wm + 64 * tm}")
            e("s_mov_b64 exec, s[92:93]")
            if w != 3:
                e(f"s_branch L_{t}_join")
        e(f"L_{t}_join:")
        stamp(e, 4)
        e("s_mul_i32 s22, s16, 320")
        e(f"s_add_u32 s22, s22, {g.SC_CS}")
        if g.qtr:
            e("v_lshl_add_u32 v5, v3, 4, s22")
            e("v_cmp_eq_u32 vcc, 0, v2")
        else:
            e("v_add_u32 v5, s22, v4")
            e("v_cmp_gt_u32 vcc, 16, v1")
        e("s_and_saveexec_b64 s[92:93], vcc")
        for tn in range(5):
            a = g.accC + 4 * tn
            if g.qtr:
                e(f"ds_write_b128 v5, v[{a}:{a+3}] offset:{64 * tn}")
            else:
                e(f"ds_write_b32 v5, v{a} offset:{64 * tn}")
        e("s_mov_b64 exec, s[92:93]")
        e("s_waitcnt lgkmcnt(0)")
        e("s_barrier")
        f0 = g.fP[0]
        e("s_xor_b32 s23, s16, 2")
        e("s_mul_i32 s23, s23, 320")
        e("s_sub_u32 s23, s23, s22")
        e(f"s_add_u32 s23, s23, {g.SC_CS}")
        e("v_add_u32 v5, s23, v5")
        for tn in range(5):
            if g.qtr:
                e(f"ds_read_b128 v[{f0+4*tn}:{f0+4*tn+3}], v5 offset:{64 * tn}")
            else:
                e(f"ds_read_b32 v{f0+4*tn}, v5 offset:{64 * tn}")
        e("s_lshl_b32 s22, s34, 8")
        e(f"s_add_u32 s22, s22, {g.SC}")
        e("v_lshl_add_u32 v6, v1, 2, s22")
        e(f"ds_read_b32 v7, v6 offset:{g.SC_SUM - g.SC}")
        e(f"ds_read_b32 v8, v6 offset:{g.SC_SQ - g.SC}")
        e("s_waitcnt lgkmcnt(2)")
        for tn in range(5):
            a = g.accC + 4 * tn
            for i in range(4 if g.qtr else 1):
                e(f"v_add_f32 v{a+i}, v{a+i}, v{f0+4*tn+i}")
        e("s_waitcnt lgkmcnt(0)")
        inv = f"{f32bits(1.0 / 512):#x}"
        eps = f"{f32bits(1e-5):#x}"
        e(f"v_mul_f32 v7, {inv}, v7")
        e(f"v_mul_f32 v8, {inv}, v8")
        e("v_fma_f32 v8, -v7, v7, v8")
        e("v_max_f32 v8, 0, v8")
        e("v_mov_b32 v9, v7")
        bf16r_scalar(e, 9)
        e("v_mov_b32 v10, v8")
        bf16r_scalar(e, 10)
        e(f"v_add_f32 v10, {eps}, v10")
        bf16r_scalar(e, 10)
        e("v_sqrt_f32 v10, v10")
        e("s_nop 0")
        bf16r_scalar(e, 10)
        e("v_rcp_f32 v10, v10")
        e("s_nop 0")
        if g.qtr:
            e("v_sub_f32 v11, v7, v9")
            e("v_mul_f32 v11, v11, v10")
            bf16r_scalar(e, 11)
            e("v_mul_f32 v8, v8, v10")
            e("v_mul_f32 v8, v8, v10")
            bf16r_scalar(e, 8)
            e(f"v_add_f32 v8, {eps}, v8")
            bf16r_scalar(e, 8)
            e("v_sqrt_f32 v8, v8")
            e("s_nop 0")
            bf16r_scalar(e, 8)
            e("v_rcp_f32 v8, v8")
            e("s_nop 0")
            e("v_fma_f32 v9, v9, v10, v11")
            e("v_mul_f32 v9, v9, v8")
            e("v_mul_f32 v10, v10, v8")
        else:
            e("v_mul_f32 v9, v9, v10")
        e("s_lshl_b32 s22, s16, 9")
        e(f"s_add_u32 s22, s22, {g.SC_AB}")
        e("v_lshl_add_u32 v6, v1, 2, s22")
        e("ds_write_b32 v6, v10")
        e("ds_write_b32 v6, v9 offset:256")
        e("s_waitcnt lgkmcnt(0)")
        g.al, g.be = f0 + 20, f0 + 36
        if g.qtr:
            e("v_lshl_add_u32 v6, v2, 2, s22")
            for tm in range(4):
                e(f"ds_read_b32 v{g.al + tm}, v6 offset:{64 * tm}")
                e(f"ds_read_b32 v{g.be + tm}, v6 offset:{256 + 64 * tm}")
        else:
            e("v_lshl_add_u32 v6, v3, 4, s22")
            for tm in range(4):
                e(f"ds_read_b128 v[{g.al + 4*tm}:{g.al + 4*tm + 3}], v6 offset:{64 * tm}")
                e(f"ds_read_b128 v[{g.be + 4*tm}:{g.be + 4*tm + 3}], v6 offset:{256 + 64 * tm}")
        e("s_waitcnt lgkmcnt(0)")


def gen_k1n(e, name):
    kernel_head(e, name)
    e("s_cmp_ge_u32 s2, 256")
    e("s_cbranch_scc1 L_k1_done")
    stamp_rt(e, 0)
    stamp(e, 1)
    e(f"s_load_dwordx2 s[4:5], s[0:1], {KA_WS}")
    e(f"s_load_dwordx2 s[90:91], s[0:1], {KA_X}")
    e(f"s_load_dwordx4 s[40:43], s[0:1], {KA_WSRE}")
    e(f"s_load_dwordx4 s[84:87], s[0:1], {KA_WDRE}")
    e(f"s_load_dwordx4 s[92:95], s[0:1], {KA_W1}")
    e(f"s_load_dwordx2 s[6:7], s[0:1], {KA_W2}")
    e("v_lshrrev_b32 v1, 6, v0")
    e("s_nop 0")
    e("v_readfirstlane_b32 s16, v1")
    e("s_nop 3")
    e("s_lshr_b32 s53, s16, 2")
    e("s_and_b32 s16, s16, 3")
    e("s_and_b32 s28, s2, 7")
    e("s_lshr_b32 s29, s2, 3")
    e("s_lshl_b32 s28, s28, 1")
    e("s_lshr_b32 s30, s29, 4")
    e("s_add_u32 s28, s28, s30")
    e("s_and_b32 s29, s29, 15")
    e("s_waitcnt lgkmcnt(0)")
    srd(e, 8, 90, 0, 2 << 20)
    srd(e, 24, 4, 0, 64 << 20)
    e("s_lshl_b32 s17, s28, 17")

    def mk_post(tag):
        def issue():
            if PF1:
                ws_touch(e, "s2", PF1, tag)
            e("s_lshl_b32 s31, s16, 8")
            e("s_add_u32 s31, s31, s2")
            e("s_cmp_ge_u32 s31, 352")
            e(f"s_cbranch_scc1 L_{tag}_not2")
            srd(e, 20, 6, 0, F * 512 * 2)
            e("v_and_b32 v2, 63, v0")
            e("s_and_b32 s18, s31, 7")
            e("s_lshr_b32 s19, s31, 3")
            e("s_lshl_b32 s18, s18, 6")
            e("v_add_u32 v3, s18, v2")
            e("v_lshlrev_b32 v20, 1, v3")
            e("s_lshl_b32 s28, s19, 15")
            for i in range(32):
                e(f"buffer_load_ushort v{24 + i}, v20, s[20:23], s28 offen")
                if i != 31:
                    e(f"s_add_u32 s28, s28, 1024")
            e(f"v_mul_u32_u24 v21, {HS * 2}, v3")
            e("s_lshl_b32 s19, s19, 6")
            e(f"s_add_u32 s19, s19, {WS_W2T}")

        def finish():
            e("s_waitcnt vmcnt(0)")
            for i in range(16):
                e(f"v_lshl_or_b32 v{4 + i}, v{25 + 2 * i}, 16, v{24 + 2 * i}")
            for i in range(4):
                e(f"buffer_store_dwordx4 v[{4+4*i}:{7+4*i}], v21, s[24:27], s19 offen offset:{16*i}")
            e(f"L_{tag}_not2:")
        return issue, finish

    e("s_cmp_ge_u32 s29, 7")
    e("s_cbranch_scc1 L_k1_typeB")
    e("s_mul_i32 s30, s29, 160")
    e("s_min_u32 s30, s30, 864")
    e("s_mov_b32 s18, 0")
    for jj, r in enumerate(GemmF.QSRD):
        e(f"s_add_u32 s22, s30, {32 * jj}")
        e("s_cmp_ge_u32 s22, 512")
        e(f"s_cselect_b32 s{r}, s86, s84")
        e(f"s_cselect_b32 s{r+1}, s87, s85")
        e("s_and_b32 s22, s22, 511")
        e("s_lshl_b32 s22, s22, 10")
        e(f"s_add_u32 s{r}, s{r}, s22")
        e(f"s_addc_u32 s{r+1}, s{r+1}, 0")
        e(f"s_mov_b32 s{r+2}, {32 * 1024}")
        e(f"s_mov_b32 s{r+3}, 0x20000")
    gA = GemmF("k1a", False)
    gA.run(e, [], *mk_post("k1a"))
    f0 = gA.fP[0]
    e("s_mul_i32 s22, s16, 12288")
    e("v_mul_u32_u24 v4, 144, v2")
    e("v_lshl_add_u32 v4, v3, 3, v4")
    e("v_add_u32 v4, s22, v4")
    e("s_mul_i32 s23, s35, 80")
    e("s_add_u32 s30, s30, s23")
    tq = f0 + 52
    for tn in range(5):
        e(f"s_add_u32 s32, s30, {16 * tn}")
        e("s_cmp_ge_u32 s32, 512")
        e("s_cselect_b32 s33, 0x80008000, 0")
        c = gA.accC + 4 * tn
        for tm in range(4):
            a = gA.accreg(tm, tn)
            al, be = gA.al + 4 * tm, gA.be + 4 * tm
            for i in (0, 2):
                e(f"v_pk_mul_f32 v[{tq+i}:{tq+i+1}], v[{be+i}:{be+i+1}], v[{c}:{c+1}] op_sel_hi:[1,0]")
            for i in (0, 2):
                e(f"v_pk_fma_f32 v[{a+i}:{a+i+1}], v[{al+i}:{al+i+1}], v[{a+i}:{a+i+1}], v[{tq+i}:{tq+i+1}] neg_lo:[0,0,1] neg_hi:[0,0,1]")
            e(f"v_cvt_pk_bf16_f32 v{a}, v{a}, v{a+1}")
            e(f"v_cvt_pk_bf16_f32 v{a+1}, v{a+2}, v{a+3}")
            e(f"v_xor_b32 v{a}, s33, v{a}")
            e(f"v_xor_b32 v{a+1}, s33, v{a+1}")
            e(f"ds_write_b64 v4, v[{a}:{a+1}] offset:{tn * 16 * 144 + tm * 32}")
    e("v_lshrrev_b32 v5, 3, v1")
    e("v_and_b32 v6, 7, v1")
    e("v_mul_u32_u24 v4, 144, v5")
    e("v_lshl_add_u32 v4, v6, 4, v4")
    e("v_add_u32 v4, s22, v4")
    e("v_lshlrev_b32 v5, 13, v5")
    e("v_lshl_add_u32 v5, v6, 4, v5")
    e("s_lshl_b32 s31, s28, 8")
    e("s_lshl_b32 s22, s34, 7")
    e("s_add_u32 s31, s31, s22")
    e(f"s_add_u32 s31, s31, {WS_ABT}")
    e("s_waitcnt lgkmcnt(0)")
    for i in range(10):
        e(f"ds_read_b128 v[{gA.acc+4*i}:{gA.acc+4*i+3}], v4 offset:{i * 8 * 144}")
    for i in range(10):
        e(f"s_add_u32 s32, s30, {8 * i}")
        e("s_and_b32 s33, s32, 511")
        e("s_lshl_b32 s33, s33, 13")
        e("s_lshr_b32 s32, s32, 9")
        e("s_lshl_b32 s32, s32, 12")
        e("s_add_u32 s32, s32, s33")
        e("s_add_u32 s32, s32, s31")
        e(f"s_waitcnt lgkmcnt({9 - i})")
        e(f"buffer_store_dwordx4 v[{gA.acc+4*i}:{gA.acc+4*i+3}], v5, s[24:27], s32 offen")
    stamp(e, 5); stamp_rt(e, 6); stamp_flush(e, 1, 7)
    e("s_endpgm")
    e("L_k1_typeB:")
    srd(e, 12, 92, 0, 512 * F * 2)
    srd(e, 36, 94, 0, F * 2)
    e("s_sub_u32 s30, s29, 7")
    e("s_mul_i32 s30, s30, 160")
    e(f"s_min_u32 s30, s30, {HS - 160}")
    e("s_lshl_b32 s18, s30, 1")
    gB = GemmF("k1b", True)
    vb = gB.vend
    e("s_and_b32 s23, s16, 1")
    e("s_mul_i32 s23, s23, 80")
    e("s_add_u32 s33, s30, s23")
    e("v_and_b32 v1, 63, v0")
    e("v_lshrrev_b32 v3, 4, v1")
    e("v_lshlrev_b32 v12, 3, v3")
    e("s_lshl_b32 s33, s33, 1")
    extra = [[f"buffer_load_dwordx2 v[{vb+2*tn}:{vb+2*tn+1}], v12, s[36:39], s33 offen offset:{32*tn}"] for tn in range(5)]
    gB.run(e, extra, *mk_post("k1b"))
    e("s_waitcnt vmcnt(0)")
    f0 = gB.fP[0]
    e("s_mul_i32 s22, s16, 12288")
    e("v_mul_u32_u24 v4, 176, v2")
    e("v_add_u32 v4, v4, v12")
    e("v_add_u32 v4, s22, v4")
    k1 = -2.0 * math.sqrt(2.0 / math.pi) * math.log2(math.e)
    k2 = k1 * 0.044715
    kk = f0 + 52
    e(f"v_mov_b32 v{kk}, {f32bits(k1):#x}")
    e(f"v_mov_b32 v{kk+1}, {f32bits(k2):#x}")
    e(f"v_mov_b32 v{kk+2}, 1.0")
    b = f0 + 56
    q = f0 + 60
    for tn in range(5):
        e(f"v_lshlrev_b32 v{b}, 16, v{vb+2*tn}")
        e(f"v_and_b32 v{b+1}, 0xffff0000, v{vb+2*tn}")
        e(f"v_lshlrev_b32 v{b+2}, 16, v{vb+2*tn+1}")
        e(f"v_and_b32 v{b+3}, 0xffff0000, v{vb+2*tn+1}")
        c = gB.accC + 4 * tn
        for tm in range(4):
            a = gB.accreg(tm, tn)
            al, be = gB.al + tm, gB.be + tm
            def bc(r):
                return (f"v[{r}:{r+1}]", 0) if r % 2 == 0 else (f"v[{r-1}:{r}]", 1)
            bs, bsel = bc(be)
            as_, asel = bc(al)
            for i in (0, 2):
                e(f"v_pk_fma_f32 v[{q+i}:{q+i+1}], {bs}, v[{c+i}:{c+i+1}], v[{b+i}:{b+i+1}] op_sel:[{bsel},0,0] op_sel_hi:[{bsel},1,1] neg_lo:[1,0,0] neg_hi:[1,0,0]")
            for i in (0, 2):
                e(f"v_pk_fma_f32 v[{a+i}:{a+i+1}], {as_}, v[{a+i}:{a+i+1}], v[{q+i}:{q+i+1}] op_sel:[{asel},0,0] op_sel_hi:[{asel},1,1]")
            for i in (0, 2):
                e(f"v_pk_mul_f32 v[{q+i}:{q+i+1}], v[{a+i}:{a+i+1}], v[{a+i}:{a+i+1}]")
            for i in (0, 2):
                e(f"v_pk_fma_f32 v[{q+i}:{q+i+1}], v[{q+i}:{q+i+1}], v[{kk}:{kk+1}], v[{kk}:{kk+1}] op_sel:[0,1,0] op_sel_hi:[1,1,0]")
            for i in (0, 2):
                e(f"v_pk_mul_f32 v[{q+i}:{q+i+1}], v[{q+i}:{q+i+1}], v[{a+i}:{a+i+1}]")
            for r in range(4):
                e(f"v_exp_f32 v{q+r}, v{q+r}")
            e("s_nop 0")
            for i in (0, 2):
                e(f"v_pk_add_f32 v[{q+i}:{q+i+1}], v[{q+i}:{q+i+1}], v[{kk+2}:{kk+3}] op_sel_hi:[1,0]")
            for r in range(4):
                e(f"v_rcp_f32 v{q+r}, v{q+r}")
            e("s_nop 0")
            for i in (0, 2):
                e(f"v_pk_mul_f32 v[{q+i}:{q+i+1}], v[{q+i}:{q+i+1}], v[{a+i}:{a+i+1}]")
            e(f"v_cvt_pk_bf16_f32 v{a}, v{q}, v{q+1}")
            e(f"v_cvt_pk_bf16_f32 v{a+1}, v{q+2}, v{q+3}")
            e(f"ds_write_b64 v4, v[{a}:{a+1}] offset:{tm * 16 * 176 + tn * 32}")
    e("v_mul_u32_u24 v5, 205, v1")
    e("v_lshrrev_b32 v5, 11, v5")
    e("v_mul_u32_u24 v6, 10, v5")
    e("v_sub_u32 v6, v1, v6")
    e("v_mul_u32_u24 v4, 176, v5")
    e("v_lshl_add_u32 v4, v6, 4, v4")
    e("v_add_u32 v4, s22, v4")
    e(f"v_mul_u32_u24 v7, {HS * 2}, v5")
    e("v_lshl_add_u32 v7, v6, 4, v7")
    e("s_lshl_b32 s32, s28, 7")
    e("s_lshl_b32 s22, s34, 6")
    e("s_add_u32 s32, s32, s22")
    e(f"s_mul_i32 s32, s32, {HS * 2}")
    e("s_add_u32 s32, s32, s33")
    e(f"s_add_u32 s32, s32, {WS_H}")
    e("v_cmp_gt_u32 vcc, 60, v1")
    e("v_cmp_gt_u32 s[86:87], 40, v1")
    e("s_waitcnt lgkmcnt(0)")
    e("s_mov_b64 exec, vcc")
    for i in range(11):
        if i == 10:
            e("s_mov_b64 exec, s[86:87]")
        e(f"ds_read_b128 v[{gB.acc+4*i}:{gB.acc+4*i+3}], v4 offset:{i * 6 * 176}")
    e("s_mov_b64 exec, vcc")
    for i in range(11):
        if i == 10:
            e("s_mov_b64 exec, s[86:87]")
        e(f"s_waitcnt lgkmcnt({10 - i})")
        e(f"buffer_store_dwordx4 v[{gB.acc+4*i}:{gB.acc+4*i+3}], v7, s[24:27], s32 offen")
        if i != 10:
            e(f"s_add_u32 s32, s32, {6 * HS * 2}")
    e("s_mov_b64 exec, -1")
    stamp(e, 5); stamp_rt(e, 6); stamp_flush(e, 1, 7)
    e("L_k1_done:")
    e("s_endpgm")
    return vb + 10, GemmF.LDS


def gen_k2(e, name, NS=4):
    kernel_head(e, name)
    e("s_cmp_ge_u32 s2, 256")
    e("s_cbranch_scc1 L_k2_done")
    stamp_rt(e, 0)
    stamp(e, 1)
    e(f"s_load_dwordx2 s[4:5], s[0:1], {KA_WS}")
    e(f"s_load_dwordx4 s[40:43], s[0:1], {KA_WSRE}")
    e("v_lshrrev_b32 v1, 6, v0")
    e("s_nop 0")
    e("v_readfirstlane_b32 s16, v1")
    e("s_nop 3")
    e("s_lshr_b32 s53, s16, 2")
    e("s_and_b32 s16, s16, 3")
    e("s_and_b32 s28, s2, 7")
    e("s_lshr_b32 s31, s2, 3")
    e("s_and_b32 s30, s31, 3")
    e("s_lshr_b32 s31, s31, 2")
    e("s_waitcnt lgkmcnt(0)")
    srd(e, 24, 4, WS_PART, 8 << 20)
    e("s_cmp_ge_u32 s31, 6")
    e("s_cbranch_scc1 L_k2_g3")
    e("s_mul_i32 s28, s28, 6")
    e("s_add_u32 s28, s28, s31")
    e("s_and_b32 s29, s28, 15")
    e("s_lshr_b32 s28, s28, 4")
    srd(e, 8, 4, WS_ABT, 4 << 20)
    e("s_cmp_ge_u32 s28, 2")
    e("s_cselect_b32 s12, s42, s40")
    e("s_cselect_b32 s13, s43, s41")
    e(f"s_mov_b32 s14, {8 << 20}")
    e("s_mov_b32 s15, 0x20000")
    e("s_mul_i32 s22, s28, 21")
    e("s_min_u32 s23, s28, 1")
    e("s_add_u32 s22, s22, s23")
    e("s_sub_u32 s55, 22, s23")
    e("s_lshl_b32 s22, s22, 7")
    e("s_lshl_b32 s17, s30, 20")
    e("s_add_u32 s17, s17, s22")
    e("s_and_b32 s22, s22, 4095")
    e("s_lshl_b32 s18, s29, 19")
    e("s_add_u32 s18, s18, s22")
    e("s_cmp_eq_u32 s28, 1")
    e("s_cselect_b32 s54, 10, 1000")
    e("s_mov_b32 s56, 8192")
    e("s_mov_b32 s57, 4096")
    e("s_branch L_k2_go")
    e("L_k2_g3:")
    e("s_lshl_b32 s29, s28, 1")
    e("s_add_u32 s29, s29, s31")
    e("s_sub_u32 s29, s29, 6")
    e("s_mov_b32 s28, 3")
    srd(e, 8, 4, WS_W2T, 512 * HS * 2)
    srd(e, 12, 4, WS_H, 2048 * HS * 2)
    e(f"s_mul_i32 s17, s30, {128 * HS * 2}")
    e(f"s_mul_i32 s18, s29, {128 * HS * 2}")
    e("s_mov_b32 s55, 22")
    e("s_mov_b32 s54, 1000")
    e(f"s_mov_b32 s56, {HS * 2}")
    e(f"s_mov_b32 s57, {HS * 2}")
    e("L_k2_go:")
    g = Gemm("k2", 4, 4, 2, 2, 22, NS, 0, 0, dyn=True)
    g.run(e, pre_cons=(lambda: ws_touch(e, "s2", PF2, "k2")) if PF2 else None)
    e("v_and_b32 v1, 63, v0")
    e("v_lshlrev_b32 v2, 4, v1")
    e("s_lshr_b32 s22, s16, 1")
    e("s_and_b32 s23, s16, 1")
    e("s_lshl_b32 s31, s28, 5")
    e("s_lshl_b32 s32, s30, 3")
    e("s_add_u32 s31, s31, s32")
    e("s_lshl_b32 s22, s22, 2")
    e("s_add_u32 s31, s31, s22")
    e("s_lshl_b32 s31, s31, 6")
    e("s_lshl_b32 s32, s29, 2")
    e("s_add_u32 s31, s31, s32")
    e("s_lshl_b32 s23, s23, 1")
    e("s_add_u32 s31, s31, s23")
    e("s_lshl_b32 s31, s31, 10")
    for tm in range(4):
        e(f"s_add_u32 s32, s31, {tm * 64 * 1024}")
        for tp in range(2):
            a = g.accreg(tm, 2 * tp)
            for i in range(4):
                e(f"v_cvt_pk_bf16_f32 v{a+i}, v{a+2*i}, v{a+2*i+1}")
            e(f"buffer_store_dwordx4 v[{a}:{a+3}], v2, s[24:27], s32 offen offset:{tp * 1024}")
    stamp(e, 5); stamp_rt(e, 6); stamp_flush(e, 2, 7)
    e("L_k2_done:")
    e("s_endpgm")
    return g.vend, g.NS * g.SS


K3_WGS = 512


def gen_k3(e, name):
    kernel_head(e, name)
    e(f"s_cmp_ge_u32 s2, {K3_WGS}")
    e("s_cbranch_scc1 L_k3_done")
    stamp_rt(e, 0)
    stamp(e, 1)
    e(f"s_load_dwordx2 s[4:5], s[0:1], {KA_WS}")
    e(f"s_load_dwordx2 s[6:7], s[0:1], {KA_X}")
    e(f"s_load_dwordx4 s[40:43], s[0:1], {KA_B2}")
    e("v_lshrrev_b32 v1, 6, v0")
    e("v_and_b32 v2, 63, v0")
    e("s_nop 0")
    e("v_readfirstlane_b32 s16, v1")
    e("v_lshlrev_b32 v5, 4, v2")
    e("v_and_b32 v3, 15, v2")
    e("v_lshrrev_b32 v4, 4, v2")
    e("v_lshlrev_b32 v6, 3, v4")
    e("v_lshlrev_b32 v7, 10, v3")
    e("v_add_u32 v7, v7, v6")
    e("s_lshl_b32 s28, s2, 2")
    e("s_add_u32 s28, s28, s16")
    e("s_and_b32 s29, s28, 31")
    e("s_lshr_b32 s30, s28, 5")
    e("s_lshl_b32 s48, s29, 6")
    e("s_add_u32 s48, s48, s30")
    e("s_lshl_b32 s48, s48, 10")
    e("s_lshl_b32 s49, s29, 5")
    e("s_lshl_b32 s50, s30, 15")
    e("s_add_u32 s50, s50, s49")
    e("s_waitcnt lgkmcnt(0)")
    srd(e, 24, 4, WS_PART, 8 << 20)
    srd(e, 32, 6, 0, 2 << 20)
    srd(e, 36, 40, 0, 1024)
    srd(e, 44, 42, 0, 2 << 20)
    for sl in (3, 0, 1, 2):
        e(f"s_add_u32 s51, s48, {sl * 32 * 64 * 1024}")
        e(f"buffer_load_dwordx4 v[{8+4*sl}:{11+4*sl}], v5, s[24:27], s51 offen")
        if sl == 3:
            e("buffer_load_dwordx2 v[24:25], v6, s[36:39], s49 offen")
    e("s_add_u32 s51, s50, 16384")
    e("buffer_load_dwordx2 v[26:27], v7, s[32:35], s50 offen")
    e("buffer_load_dwordx2 v[28:29], v7, s[32:35], s51 offen")
    nl2e = -math.log2(math.e)
    e(f"s_mov_b32 s52, {f32bits(nl2e):#x}")
    b = [30, 31, 32, 33]
    t = 34
    z = list(range(36, 44))
    q = list(range(44, 52))
    p0 = list(range(52, 60))
    p1 = list(range(60, 68))
    e("s_waitcnt vmcnt(5)")
    stamp(e, 2)
    e(f"v_lshlrev_b32 v{b[0]}, 16, v24")
    e(f"v_and_b32 v{b[1]}, 0xffff0000, v24")
    e(f"v_lshlrev_b32 v{b[2]}, 16, v25")
    e(f"v_and_b32 v{b[3]}, 0xffff0000, v25")
    for i in range(4):
        e(f"v_lshlrev_b32 v{z[2*i]}, 16, v{20+i}")
        e(f"v_and_b32 v{z[2*i+1]}, 0xffff0000, v{20+i}")
    for i in range(8):
        e(f"v_add_f32 v{z[i]}, v{z[i]}, v{b[i%4]}")
    for i in range(0, 8, 2):
        bf16r_pair(e, z[i], z[i + 1], t)
    for i in range(8):
        e(f"v_mul_f32 v{q[i]}, s52, v{z[i]}")
    for i in range(8):
        e(f"v_exp_f32 v{q[i]}, v{q[i]}")
    e("s_nop 0")
    for i in range(8):
        e(f"v_add_f32 v{q[i]}, 1.0, v{q[i]}")
    for i in range(8):
        e(f"v_rcp_f32 v{q[i]}, v{q[i]}")
    e("s_nop 0")
    for i in range(8):
        e(f"v_mul_f32 v{z[i]}, v{q[i]}, v{z[i]}")
    for i in range(0, 8, 2):
        bf16r_pair(e, z[i], z[i + 1], t)
    e("s_waitcnt vmcnt(2)")
    for i in range(4):
        e(f"v_lshlrev_b32 v{p0[2*i]}, 16, v{8+i}")
        e(f"v_and_b32 v{p0[2*i+1]}, 0xffff0000, v{8+i}")
        e(f"v_lshlrev_b32 v{p1[2*i]}, 16, v{12+i}")
        e(f"v_and_b32 v{p1[2*i+1]}, 0xffff0000, v{12+i}")
        e(f"v_lshlrev_b32 v{q[2*i]}, 16, v{16+i}")
        e(f"v_and_b32 v{q[2*i+1]}, 0xffff0000, v{16+i}")
    for i in range(8):
        e(f"v_add_f32 v{p0[i]}, v{p0[i]}, v{p1[i]}")
    for i in range(8):
        e(f"v_add_f32 v{p0[i]}, v{p0[i]}, v{q[i]}")
    for i in range(0, 8, 2):
        bf16r_pair(e, p0[i], p0[i + 1], t)
    for i in range(8):
        e(f"v_mul_f32 v{z[i]}, v{z[i]}, v{p0[i]}")
    for i in range(0, 8, 2):
        bf16r_pair(e, z[i], z[i + 1], t)
    e("s_waitcnt vmcnt(0)")
    for i in range(4):
        e(f"v_lshlrev_b32 v{q[2*i]}, 16, v{26+i}")
        e(f"v_and_b32 v{q[2*i+1]}, 0xffff0000, v{26+i}")
    for i in range(8):
        e(f"v_add_f32 v{z[i]}, v{z[i]}, v{q[i]}")
    for i in range(4):
        e(f"v_cvt_pk_bf16_f32 v{8+i}, v{z[2*i]}, v{z[2*i+1]}")
    e("buffer_store_dwordx2 v[8:9], v7, s[44:47], s50 offen")
    e("buffer_store_dwordx2 v[10:11], v7, s[44:47], s51 offen")
    stamp(e, 3); stamp(e, 4); stamp(e, 5); stamp_rt(e, 6); stamp_flush(e, 3, 7)
    e("L_k3_done:")
    e("s_endpgm")
    return 68, 0


def main(out):
    e = E()
    n1, n2, n3 = "fnet_k1_kernel", "fnet_k2_kernel", "fnet_k3_kernel"
    v1, l1 = gen_k1n(e, n1)
    v2, l2 = gen_k2(e, n2)
    v3, l3 = gen_k3(e, n3)
    hdr = open("cdna_kernels/" + NAME + ".s.ref").read().split("; Override launch geometry")[0]
    s = hdr
    s += f"; @launch kernel={n1} grid=(256,1,1) block=(512,1,1) lds={l1}\n"
    s += f"; @launch kernel={n2} grid=(256,1,1) block=(512,1,1) lds={l2}\n"
    s += f"; @launch kernel={n3} grid=({K3_WGS},1,1) block=(256,1,1) lds={l3}\n"
    s += '.amdgcn_target "amdgcn-amd-amdhsa--gfx950"\n.text\n'
    s += e.text()
    s += '.section .rodata,"a"\n'
    for n, v in ((n1, v1), (n2, v2), (n3, v3)):
        s += ".p2align 6\n" + kdesc(n, v)
    open(out, "w").write(s)
    print("vgprs", v1, v2, v3, "lds", l1, l2, l3)


if __name__ == "__main__":
    if len(sys.argv) > 2 and sys.argv[2] == "instr":
        INSTR = True
    if len(sys.argv) > 2 and sys.argv[2] == "hstamp":
        INSTR = 2
    main(sys.argv[1] if len(sys.argv) > 1 else "cdna_kernels/" + NAME + ".s")
```

```python
import sys, math, os, struct

NAME = "recurrent_scan__spectral_fnet__mixer_channel_mlp__prompt"

WS_H = 0
WS_W2F = 8 << 20
WS_AB = 12 << 20
WS_R = 14 << 20
WS_DBG = 100 << 20
F = 1376
NKS = 43

KA_X, KA_WSRE, KA_WSIM, KA_WDRE, KA_WDIM, KA_BX, KA_W1, KA_B1, KA_W2, KA_B2, KA_OUT, KA_DBG, KA_WS = [8 * i for i in range(13)]

INSTR = False


def env(name, default):
    return int(os.environ.get(name, str(default)))


def stamp(e, k):
    if INSTR:
        e(f"s_memtime s[{70 + 2 * k}:{71 + 2 * k}]")


def stamp_rt(e, k):
    if INSTR:
        e(f"s_memrealtime s[{70 + 2 * k}:{71 + 2 * k}]")


def stamp_flush(e, kidx, wsbase=4):
    if not INSTR:
        return
    e("s_waitcnt lgkmcnt(0)")
    e("s_getreg_b32 s84, hwreg(HW_REG_XCC_ID)")
    e(f"s_add_u32 s96, s{wsbase}, {WS_DBG + kidx * (1 << 18)}")
    e(f"s_addc_u32 s97, s{wsbase + 1}, 0")
    e(f"s_mov_b32 s98, {1 << 18}")
    e("s_mov_b32 s99, 0x20000")
    e("s_lshl_b32 s100, s2, 2")
    e("s_add_u32 s100, s100, s16")
    e("s_lshl_b32 s100, s100, 6")
    e("v_mov_b32 v1, 0")
    for k in range(8):
        e(f"v_mov_b32 v2, s{70 + 2 * k}")
        e(f"buffer_store_dword v2, v1, s[96:99], s100 offen offset:{4 * k}")


class E:
    def __init__(self):
        self.L = []

    def __call__(self, s):
        for line in s.split("\n"):
            line = line.strip()
            if line:
                self.L.append(("    " if not line.endswith(":") else "") + line)

    def text(self):
        return "\n".join(self.L) + "\n"


def f32bits(x):
    return struct.unpack("<I", struct.pack("<f", x))[0]


def srd(e, d, base, off, nbytes):
    if off:
        e(f"s_add_u32 s{d}, s{base}, {off}")
        e(f"s_addc_u32 s{d+1}, s{base+1}, 0")
    else:
        e(f"s_mov_b32 s{d}, s{base}")
        e(f"s_mov_b32 s{d+1}, s{base+1}")
    e(f"s_mov_b32 s{d+2}, {nbytes}")
    e(f"s_mov_b32 s{d+3}, 0x20000")


def kernel_head(e, name):
    e(f".globl {name}")
    e(".p2align 8")
    e(f".type {name},@function")
    e(f"{name}:")


def kdesc(name, vgpr, sgpr=102):
    v = (vgpr + 3) // 4 * 4
    return f""".amdhsa_kernel {name}
  .amdhsa_next_free_vgpr {v}
  .amdhsa_next_free_sgpr {sgpr}
  .amdhsa_accum_offset {v}
  .amdhsa_group_segment_fixed_size 0
  .amdhsa_kernarg_size 104
  .amdhsa_user_sgpr_count 2
  .amdhsa_user_sgpr_kernarg_segment_ptr 1
  .amdhsa_system_sgpr_workgroup_id_x 1
.end_amdhsa_kernel
"""


def bf16r_scalar(e, r):
    e(f"v_cvt_pk_bf16_f32 v{r}, v{r}, v{r}")
    e(f"v_lshlrev_b32 v{r}, 16, v{r}")


def bf16r_pair(e, a, b, t):
    e(f"v_cvt_pk_bf16_f32 v{t}, v{a}, v{b}")
    e(f"v_lshlrev_b32 v{a}, 16, v{t}")
    e(f"v_and_b32 v{b}, 0xffff0000, v{t}")


def interleave(e, mf, fillers):
    n = len(mf)
    k = len(fillers)
    fi = 0
    for i, m in enumerate(mf):
        e(m)
        want = min(k, -(-(i + 1) * k // n)) if k > n else min(k, i + 1)
        while fi < want:
            for ins in fillers[fi]:
                e(ins)
            fi += 1
    while fi < k:
        for ins in fillers[fi]:
            e(ins)
        fi += 1


class G1:
    NS, NSTEPS = 4, 8
    SS = 32768
    D = 8
    SC = NS * SS
    SC_SQ, SC_SUM, SC_CS, SC_AB = SC, SC + 512, SC + 1024, SC + 2048
    LDS = SC + 2048 + 2048

    def __init__(self, tag, qtr):
        self.tag, self.qtr = tag, qtr
        self.vP0b, self.vP1b, self.vPa0, self.vPa1 = 16, 17, 18, 19
        self.vQ0b, self.vQ1b, self.vQa0, self.vQa1 = 20, 21, 22, 23
        self.vQb = [20, 21, 22, 23]
        self.vQa = [24, 25, 26, 27]
        self.fP = [28, 60]
        self.fQ = [44, 76]
        self.acc = 92
        self.ones = 156
        self.accS = 160
        self.accC = 176
        self.vend = 192
        self.vDP = [16, 17, 18, 19]
        self.vDQ = 20
        self.var = None

    def accreg(self, tm, tn):
        return self.acc + 4 * (tm * 4 + tn)

    def setup_prod(self, e, rows):
        g = self
        e("v_and_b32 v1, 63, v0")
        e("v_lshrrev_b32 v2, 3, v1")
        e("v_lshrrev_b32 v3, 4, v1")
        e("s_and_b32 s22, s16, 1")
        e("s_lshl_b32 s22, s22, 2")
        e("v_add_u32 v3, s22, v3")
        e("v_and_b32 v4, 7, v1")
        e("v_xor_b32 v3, v3, v4")
        e("v_lshlrev_b32 v3, 4, v3")
        e("s_lshl_b32 s22, s16, 3")
        e("v_add_u32 v2, s22, v2")
        for jj in range(4):
            rows(e, jj)
            e(f"v_lshl_add_u32 v{g.vDP[jj]}, v5, 10, v3")
        if g.qtr:
            e("v_lshrrev_b32 v5, 4, v1")
            e("s_lshr_b32 s22, s16, 1")
            e("s_lshl_b32 s22, s22, 2")
            e("v_or_b32 v6, s22, v5")
            e("v_lshlrev_b32 v6, 1, v6")
            e("v_and_b32 v7, 15, v1")
            e("v_xor_b32 v6, v6, v7")
            e("s_lshl_b32 s22, s16, 2")
            e("v_add_u32 v5, s22, v5")
            e(f"v_mul_u32_u24 v5, {F * 2}, v5")
            e(f"v_lshl_add_u32 v{g.vDQ}, v6, 4, v5")
            e("s_lshr_b32 s22, s30, 3")
            e("v_add_u32 v6, s22, v6")
            e(f"v_cmp_gt_u32 vcc, {F // 8}, v6")
            e("v_mov_b32 v7, 0x40000000")
            e("s_nop 0")
            e(f"v_cndmask_b32 v{g.vDQ}, v7, v{g.vDQ}, vcc")
        else:
            e(f"v_lshl_add_u32 v{g.vDQ}, v2, 10, v3")
        e("s_lshl_b32 s19, s16, 10")
        e("s_mov_b32 s17, 0")

    def dma_ops(self):
        g = self
        ops = []
        for j in range(8):
            grp = [f"s_add_u32 m0, s19, {j * 4096}"]
            if j < 4:
                grp += ["s_nop 0", f"buffer_load_dwordx4 v{g.vDP[j]}, s[8:11], s17 offen lds"]
            else:
                jj = j - 4
                st = jj * (16 * F * 2 if g.qtr else 32 * 1024)
                if jj == 0:
                    grp += ["s_nop 0", f"buffer_load_dwordx4 v{g.vDQ}, s[12:15], s18 offen lds"]
                else:
                    grp += [f"s_add_u32 s22, s18, {st}", f"buffer_load_dwordx4 v{g.vDQ}, s[12:15], s22 offen lds"]
            ops.append(grp)
        ops.append(["s_add_u32 s17, s17, 128", f"s_add_u32 s18, s18, {64 * F * 2 if g.qtr else 128}",
                    f"s_add_u32 s19, s19, {g.SS}", f"s_sub_u32 s22, s19, {g.NS * g.SS}",
                    f"s_cmp_ge_u32 s19, {g.NS * g.SS}", "s_cselect_b32 s19, s22, s19"])
        return ops

    def setup_cons(self, e):
        g = self
        e("v_and_b32 v1, 63, v0")
        e("v_and_b32 v2, 15, v1")
        e("v_lshrrev_b32 v3, 1, v2")
        e("v_lshrrev_b32 v4, 4, v1")
        e("v_xor_b32 v3, v3, v4")
        e("v_lshlrev_b32 v3, 4, v3")
        e("v_lshlrev_b32 v2, 7, v2")
        e("v_add_u32 v2, v2, v3")
        e("s_lshr_b32 s34, s16, 1")
        e("s_and_b32 s35, s16, 1")
        e("s_lshl_b32 s22, s34, 13")
        e(f"v_add_u32 v{g.vP0b}, s22, v2")
        e(f"v_xor_b32 v{g.vP1b}, 64, v{g.vP0b}")
        if not g.qtr:
            e("s_lshl_b32 s23, s35, 13")
            e("s_add_u32 s23, s23, 16384")
            e(f"v_add_u32 v{g.vQ0b}, s23, v2")
            e(f"v_xor_b32 v{g.vQ1b}, 64, v{g.vQ0b}")
        else:
            e("v_bfe_u32 v5, v1, 2, 2")
            e("v_lshl_add_u32 v6, v4, 3, v5")
            e("v_lshlrev_b32 v6, 8, v6")
            e("v_and_b32 v7, 3, v1")
            e("v_lshl_add_u32 v6, v7, 3, v6")
            e("v_add_u32 v6, 16384, v6")
            e("v_and_b32 v7, 1, v4")
            e("v_lshl_or_b32 v5, v7, 2, v5")
            e("s_lshl_b32 s23, s35, 2")
            for tn in range(4):
                e(f"s_add_u32 s22, s23, {tn}")
                e("v_xor_b32 v7, s22, v5")
                e(f"v_lshl_add_u32 v{g.vQb[tn]}, v7, 5, v6")
        e("s_mov_b32 s20, 0")
        for i in range(4):
            e(f"v_mov_b32 v{g.ones + i}, 0x3f803f80")

    def frag_reads(self, st):
        g = self
        va = g.vPa0 if st == 0 else g.vPa1
        ops = []
        for i in range(4):
            r = g.fP[st] + 4 * i
            ops.append([f"ds_read_b128 v[{r}:{r+3}], v{va} offset:{i * 2048}"])
            r = g.fQ[st] + 4 * i
            if g.qtr:
                for h in range(2):
                    ops.append([f"ds_read_b64_tr_b16 v[{r+2*h}:{r+2*h+1}], v{g.vQa[i]} offset:{h * 1024 + st * 8192}"])
            else:
                vq = g.vQa0 if st == 0 else g.vQa1
                ops.append([f"ds_read_b128 v[{r}:{r+3}], v{vq} offset:{i * 2048}"])
        return ops

    def mfmas(self, st):
        g = self
        wm, wn = g.var
        ops = []
        for tm in range(4):
            for tn in (1, 2, 3, 0):
                a = g.accreg(tm, tn)
                p = g.fP[st] + 4 * tm
                q = g.fQ[st] + 4 * tn
                if g.qtr:
                    p, q = q, p
                ops.append(f"v_mfma_f32_16x16x32_bf16 v[{a}:{a+3}], v[{p}:{p+3}], v[{q}:{q+3}], v[{a}:{a+3}]")
        o = g.ones
        for tm in range(4):
            a = g.accS + 4 * tm
            p = g.fP[st] + 4 * tm
            A = p if wn == 0 else o
            ops.append(f"v_mfma_f32_16x16x32_bf16 v[{a}:{a+3}], v[{A}:{A+3}], v[{p}:{p+3}], v[{a}:{a+3}]")
        if wm == st:
            for tn in range(4):
                a = g.accC + 4 * tn
                q = g.fQ[st] + 4 * tn
                A, B = (q, o) if g.qtr else (o, q)
                ops.append(f"v_mfma_f32_16x16x32_bf16 v[{a}:{a+3}], v[{A}:{A+3}], v[{B}:{B+3}], v[{a}:{a+3}]")
        return ops

    def patch(self, e, st):
        g = self
        if g.qtr or g.var[1] != 0:
            return
        for i in range(4):
            r = g.fQ[st] + i
            e(f"v_cndmask_b32 v{r}, v{r}, v15, s[68:69]")

    def step(self, e, last):
        g = self
        e(f"v_add_u32 v{g.vPa1}, s20, v{g.vP1b}")
        if not g.qtr:
            e(f"v_add_u32 v{g.vQa1}, s20, v{g.vQ1b}")
        e(f"s_add_u32 s20, s20, {g.SS}")
        e(f"s_cmp_eq_u32 s20, {g.NS * g.SS}")
        e("s_cselect_b32 s20, 0, s20")
        e("s_waitcnt lgkmcnt(0)")
        g.patch(e, 0)
        interleave(e, g.mfmas(0), g.frag_reads(1))
        if not last:
            e(f"v_add_u32 v{g.vPa0}, s20, v{g.vP0b}")
            if g.qtr:
                for tn in range(4):
                    e(f"v_add_u32 v{g.vQa[tn]}, s20, v{g.vQb[tn]}")
            else:
                e(f"v_add_u32 v{g.vQa0}, s20, v{g.vQ0b}")
            e("s_waitcnt lgkmcnt(0)")
            e("s_barrier")
        else:
            e("s_waitcnt lgkmcnt(0)")
        g.patch(e, 1)
        interleave(e, g.mfmas(1), [] if last else g.frag_reads(0))

    def run(self, e, rows, extra_loads):
        g = self
        t = g.tag
        e("s_cmp_eq_u32 s53, 0")
        e(f"s_cbranch_scc1 L_{t}_cons")
        e("s_setprio 1")
        g.setup_prod(e, rows)
        for s_ in range(g.NS - 1):
            for grp in g.dma_ops():
                for ins in grp:
                    e(ins)
        e(f"s_waitcnt vmcnt({(g.NS - 2) * g.D})")
        e("s_barrier")
        nmain = g.NSTEPS - g.NS + 1
        e(f"s_mov_b32 s21, {nmain}")
        e(f"L_{t}_ploop:")
        e(f"s_waitcnt vmcnt({(g.NS - 3) * g.D})")
        e("s_barrier")
        for grp in g.dma_ops():
            for ins in grp:
                e(ins)
        e("s_sub_u32 s21, s21, 1")
        e("s_cmp_lg_u32 s21, 0")
        e(f"s_cbranch_scc1 L_{t}_ploop")
        for i in range(nmain, g.NSTEPS - 1):
            e(f"s_waitcnt vmcnt({(g.NSTEPS - 2 - i) * g.D})")
            e("s_barrier")
        e("s_endpgm")
        e(f"L_{t}_cons:")
        g.setup_cons(e)
        for grp in extra_loads:
            for ins in grp:
                e(ins)
        for r in list(range(g.acc, g.ones)) + list(range(g.accS, g.vend)):
            e(f"v_mov_b32 v{r}, 0")
        e(f"v_mov_b32 v{g.vPa0}, v{g.vP0b}")
        if g.qtr:
            for tn in range(4):
                e(f"v_mov_b32 v{g.vQa[tn]}, v{g.vQb[tn]}")
        else:
            e(f"v_mov_b32 v{g.vQa0}, v{g.vQ0b}")
        e("v_and_b32 v1, 63, v0")
        e("v_and_b32 v2, 15, v1")
        e("v_lshrrev_b32 v3, 4, v1")
        e("s_barrier")
        stamp(e, 2)
        for grp in g.frag_reads(0):
            e(grp[0])
        e(f"s_mov_b32 s21, {g.NSTEPS - 1}")
        for w in range(1, 4):
            e(f"s_cmp_eq_u32 s16, {w}")
            e(f"s_cbranch_scc1 L_{t}_loop{w}")
        for w in range(4):
            g.var = (w >> 1, w & 1)
            wm, wn = g.var
            e(f"L_{t}_loop{w}:")
            g.step(e, False)
            e("s_sub_u32 s21, s21, 1")
            e("s_cmp_lg_u32 s21, 0")
            e(f"s_cbranch_scc1 L_{t}_loop{w}")
            stamp(e, 3)
            g.step(e, True)
            e("v_lshlrev_b32 v4, 2, v2")
            e(f"v_add_u32 v13, {g.SC}, v4")
            if wn == 0:
                e("v_and_b32 v5, 3, v1")
                e("v_cmp_eq_u32 s[86:87], 1, v5")
                e("v_cmp_eq_u32 s[88:89], 2, v5")
                e("v_cmp_eq_u32 s[90:91], 3, v5")
                e("v_lshrrev_b32 v5, 2, v2")
                e("v_cmp_eq_u32 vcc, v5, v3")
                e("s_nop 7")
                for tm in range(4):
                    a = g.accS + 4 * tm
                    for i in range(1, 4):
                        e(f"v_cndmask_b32 v{a}, v{a}, v{a+i}, s[{84+2*i}:{85+2*i}]")
            else:
                e("v_cmp_gt_u32 vcc, 16, v1")
                e("s_nop 7")
            e("s_and_saveexec_b64 s[92:93], vcc")
            for tm in range(4):
                e(f"ds_write_b32 v13, v{g.accS + 4 * tm} offset:{(g.SC_SQ if wn == 0 else g.SC_SUM) - g.SC + 256 * wm + 64 * tm}")
            e("s_mov_b64 exec, s[92:93]")
            if w != 3:
                e(f"s_branch L_{t}_join")
        e(f"L_{t}_join:")
        stamp(e, 4)
        e("s_lshl_b32 s22, s16, 8")
        e(f"s_add_u32 s22, s22, {g.SC_CS}")
        if g.qtr:
            e("v_lshl_add_u32 v5, v3, 4, s22")
            e("v_cmp_eq_u32 vcc, 0, v2")
        else:
            e("v_add_u32 v5, s22, v4")
            e("v_cmp_gt_u32 vcc, 16, v1")
        e("s_and_saveexec_b64 s[92:93], vcc")
        for tn in range(4):
            a = g.accC + 4 * tn
            if g.qtr:
                e(f"ds_write_b128 v5, v[{a}:{a+3}] offset:{64 * tn}")
            else:
                e(f"ds_write_b32 v5, v{a} offset:{64 * tn}")
        e("s_mov_b64 exec, s[92:93]")
        e("s_waitcnt lgkmcnt(0)")
        e("s_barrier")
        f0 = g.fP[0]
        e("v_xor_b32 v5, 512, v5")
        for tn in range(4):
            if g.qtr:
                e(f"ds_read_b128 v[{f0+4*tn}:{f0+4*tn+3}], v5 offset:{64 * tn}")
            else:
                e(f"ds_read_b32 v{f0+4*tn}, v5 offset:{64 * tn}")
        e("s_lshl_b32 s22, s34, 8")
        e(f"s_add_u32 s22, s22, {g.SC}")
        e("v_lshl_add_u32 v6, v1, 2, s22")
        e(f"ds_read_b32 v7, v6 offset:{g.SC_SUM - g.SC}")
        e(f"ds_read_b32 v8, v6 offset:{g.SC_SQ - g.SC}")
        e("s_waitcnt lgkmcnt(2)")
        for tn in range(4):
            a = g.accC + 4 * tn
            for i in range(4 if g.qtr else 1):
                e(f"v_add_f32 v{a+i}, v{a+i}, v{f0+4*tn+i}")
        e("s_waitcnt lgkmcnt(0)")
        inv = f"{f32bits(1.0 / 512):#x}"
        eps = f"{f32bits(1e-5):#x}"
        e(f"v_mul_f32 v7, {inv}, v7")
        e(f"v_mul_f32 v8, {inv}, v8")
        e("v_fma_f32 v8, -v7, v7, v8")
        e("v_max_f32 v8, 0, v8")
        e("v_mov_b32 v9, v7")
        bf16r_scalar(e, 9)
        e("v_mov_b32 v10, v8")
        bf16r_scalar(e, 10)
        e(f"v_add_f32 v10, {eps}, v10")
        bf16r_scalar(e, 10)
        e("v_sqrt_f32 v10, v10")
        e("s_nop 0")
        bf16r_scalar(e, 10)
        e("v_rcp_f32 v10, v10")
        e("s_nop 0")
        if g.qtr:
            e("v_sub_f32 v11, v7, v9")
            e("v_mul_f32 v11, v11, v10")
            bf16r_scalar(e, 11)
            e("v_mul_f32 v8, v8, v10")
            e("v_mul_f32 v8, v8, v10")
            bf16r_scalar(e, 8)
            e(f"v_add_f32 v8, {eps}, v8")
            bf16r_scalar(e, 8)
            e("v_sqrt_f32 v8, v8")
            e("s_nop 0")
            bf16r_scalar(e, 8)
            e("v_rcp_f32 v8, v8")
            e("s_nop 0")
            e("v_fma_f32 v9, v9, v10, v11")
            e("v_mul_f32 v9, v9, v8")
            e("v_mul_f32 v10, v10, v8")
        else:
            e("v_mul_f32 v9, v9, v10")
        e("s_lshl_b32 s22, s16, 9")
        e(f"s_add_u32 s22, s22, {g.SC_AB}")
        e("v_lshl_add_u32 v6, v1, 2, s22")
        e("ds_write_b32 v6, v10")
        e("ds_write_b32 v6, v9 offset:256")
        e("s_waitcnt lgkmcnt(0)")
        g.al, g.be = f0 + 16, f0 + 32
        if g.qtr:
            e("v_lshl_add_u32 v6, v2, 2, s22")
            for tm in range(4):
                e(f"ds_read_b32 v{g.al + tm}, v6 offset:{64 * tm}")
                e(f"ds_read_b32 v{g.be + tm}, v6 offset:{256 + 64 * tm}")
        else:
            e("v_lshl_add_u32 v6, v3, 4, s22")
            for tm in range(4):
                e(f"ds_read_b128 v[{g.al + 4*tm}:{g.al + 4*tm + 3}], v6 offset:{64 * tm}")
                e(f"ds_read_b128 v[{g.be + 4*tm}:{g.be + 4*tm + 3}], v6 offset:{256 + 64 * tm}")
        e("s_waitcnt lgkmcnt(0)")


def gen_k1(e, name):
    kernel_head(e, name)
    e("s_cmp_ge_u32 s2, 256")
    e("s_cbranch_scc1 L_k1_done")
    stamp_rt(e, 0)
    stamp(e, 1)
    e(f"s_load_dwordx2 s[4:5], s[0:1], {KA_WS}")
    e(f"s_load_dwordx2 s[62:63], s[0:1], {KA_X}")
    e(f"s_load_dwordx4 s[40:43], s[0:1], {KA_WSRE}")
    e(f"s_load_dwordx4 s[44:47], s[0:1], {KA_WDRE}")
    e(f"s_load_dwordx4 s[48:51], s[0:1], {KA_W1}")
    e(f"s_load_dwordx2 s[6:7], s[0:1], {KA_W2}")
    e("v_lshrrev_b32 v1, 6, v0")
    e("s_nop 0")
    e("v_readfirstlane_b32 s54, v1")
    e("s_nop 3")
    e("s_lshr_b32 s53, s54, 2")
    e("s_and_b32 s16, s54, 3")
    e("s_and_b32 s28, s2, 7")
    e("s_lshr_b32 s29, s2, 3")
    e("s_waitcnt lgkmcnt(0)")
    srd(e, 8, 62, 0, 2 << 20)
    srd(e, 24, 4, 0, 64 << 20)
    e("s_cmp_lt_u32 s29, 22")
    e("s_cbranch_scc1 L_k1_typeB")
    e("s_cmp_ge_u32 s29, 30")
    e("s_cbranch_scc1 L_k1_spare")
    e("s_sub_u32 s29, s29, 22")
    e("s_lshl_b32 s28, s28, 1")
    e("s_lshr_b32 s30, s29, 2")
    e("s_add_u32 s28, s28, s30")
    e("s_and_b32 s29, s29, 3")
    e("s_cmp_ge_u32 s29, 2")
    e("s_cselect_b32 s12, s46, s44")
    e("s_cselect_b32 s13, s47, s45")
    e(f"s_mov_b32 s14, {512 * 1024}")
    e("s_mov_b32 s15, 0x20000")
    e("s_and_b32 s18, s29, 1")
    e("s_lshl_b32 s18, s18, 17")

    def rowsA(e, jj):
        wm = jj >> 1
        e("v_bfe_u32 v5, v2, 2, 2")
        e("v_and_b32 v6, 3, v2")
        e("v_lshl_add_u32 v5, v5, 3, v6")
        e("s_lshl_b32 s22, s28, 5")
        e(f"s_add_u32 s22, s22, {4 * wm}")
        e("v_add_u32 v5, s22, v5")
        e("s_lshr_b32 s22, s16, 1")
        if jj & 1 == 0:
            e("s_cmp_eq_u32 s22, 0")
            e("s_cselect_b32 s23, 1, -1")
            e("s_cselect_b32 s31, 0, 2048")
            e("s_cselect_b32 s32, 0, 512")
        else:
            e("s_cmp_eq_u32 s22, 0")
            e("s_cselect_b32 s23, -1, 1")
            e("s_mov_b32 s31, 1024")
            e("s_cselect_b32 s32, 0, 512")
            e("s_add_u32 s32, s32, 1024")
        e("v_cmp_eq_u32 vcc, 0, v5")
        e("v_mov_b32 v6, s31")
        e("v_mad_i32_i24 v5, v5, s23, v6")
        e("v_mov_b32 v6, s32")
        e("v_cndmask_b32 v5, v5, v6, vcc")

    gA = G1("k1a", False)
    e("v_and_b32 v1, 15, v0")
    e("v_cmp_eq_u32 s[68:69], 0, v1")
    e("s_cmp_eq_u32 s29, 2")
    e("s_cselect_b32 s68, s68, 0")
    e("s_cselect_b32 s69, s69, 0")
    e("v_mov_b32 v15, 0xbf803f80")
    gA.run(e, rowsA, [])
    f0 = gA.fP[0]
    sg = gA.vend
    e("s_cmp_ge_u32 s29, 2")
    e(f"s_cselect_b32 s22, {f32bits(-1.0):#x}, 1.0")
    e(f"v_mov_b32 v{sg+1}, s22")
    e("s_cmp_eq_u32 s35, 0")
    e("s_cselect_b32 s68, s68, 0")
    e("s_cselect_b32 s69, s69, 0")
    e(f"v_cndmask_b32 v{sg}, v{sg+1}, 1.0, s[68:69]")
    tq = f0 + 48
    for tn in range(4):
        c = gA.accC + 4 * tn
        for tm in range(4):
            a = gA.accreg(tm, tn)
            al, be = gA.al + 4 * tm, gA.be + 4 * tm
            t = tq + 4 * (tm & 1)
            for i in (0, 2):
                e(f"v_pk_mul_f32 v[{t+i}:{t+i+1}], v[{be+i}:{be+i+1}], v[{c}:{c+1}] op_sel_hi:[1,0]")
            for i in (0, 2):
                e(f"v_pk_fma_f32 v[{a+i}:{a+i+1}], v[{al+i}:{al+i+1}], v[{a+i}:{a+i+1}], v[{t+i}:{t+i+1}] neg_lo:[0,0,1] neg_hi:[0,0,1]")
    e("s_or_b32 s22, s28, s34")
    e("s_cmp_lg_u32 s22, 0")
    e("s_cbranch_scc1 L_k1a_nosp")
    e("s_lshl_b32 s22, s29, 9")
    e("s_lshl_b32 s23, s35, 8")
    e("s_add_u32 s22, s22, s23")
    e(f"s_add_u32 s22, s22, {WS_R}")
    e("s_mov_b64 exec, 0xffff")
    for tn in range(4):
        g1, g3 = gA.accreg(1, tn), gA.accreg(3, tn)
        e(f"v_fma_f32 v{tq+tn}, v{sg + (0 if tn == 0 else 1)}, v{g3}, v{g1}")
        e(f"v_mov_b32 v{g1}, 0")
        e(f"v_mov_b32 v{g3}, 0")
        e(f"buffer_store_dword v{tq+tn}, v4, s[24:27], s22 offen offset:{64 * tn}")
    e("s_mov_b64 exec, -1")
    e("L_k1a_nosp:")
    e("v_lshlrev_b32 v5, 4, v1")
    e("s_lshl_b32 s22, s34, 3")
    e("v_add_u32 v5, s22, v5")
    e("s_and_b32 s22, s29, 1")
    e("s_lshl_b32 s22, s22, 2")
    e("s_lshl_b32 s23, s35, 1")
    e("s_add_u32 s22, s22, s23")
    e("s_lshl_b32 s22, s22, 16")
    e("s_lshl_b32 s23, s28, 12")
    e("s_add_u32 s22, s22, s23")
    e("s_lshr_b32 s23, s29, 1")
    e("s_lshl_b32 s23, s23, 11")
    e("s_add_u32 s22, s22, s23")
    e(f"s_add_u32 s22, s22, {WS_AB}")
    e(f"s_add_u32 s23, s22, {1 << 19}")
    e(f"s_add_u32 s31, s22, {1 << 16}")
    e(f"s_add_u32 s32, s23, {1 << 16}")
    for tn in range(4):
        g0, g1, g2, g3 = [gA.accreg(tm, tn) for tm in range(4)]
        sel = 0 if tn == 0 else 1
        os_ = f"op_sel:[{sel},0,0] op_sel_hi:[{sel},1,1]"
        for i in (0, 2):
            e(f"v_pk_fma_f32 v[{g0+i}:{g0+i+1}], v[{sg}:{sg+1}], v[{g1+i}:{g1+i+1}], v[{g0+i}:{g0+i+1}] {os_}")
            e(f"v_pk_fma_f32 v[{g2+i}:{g2+i+1}], v[{sg}:{sg+1}], v[{g3+i}:{g3+i+1}], v[{g2+i}:{g2+i+1}] {os_}")
        for i in (0, 2):
            e(f"v_pk_fma_f32 v[{g1+i}:{g1+i+1}], v[{sg}:{sg+1}], v[{g2+i}:{g2+i+1}], v[{g0+i}:{g0+i+1}] {os_}")
            e(f"v_pk_fma_f32 v[{g3+i}:{g3+i+1}], v[{sg}:{sg+1}], v[{g2+i}:{g2+i+1}], v[{g0+i}:{g0+i+1}] {os_} neg_lo:[1,0,0] neg_hi:[1,0,0]")
        for gg in (g1, g3):
            e(f"v_cvt_pk_bf16_f32 v{gg}, v{gg}, v{gg+1}")
            e(f"v_cvt_pk_bf16_f32 v{gg+1}, v{gg+2}, v{gg+3}")
        e(f"buffer_store_dwordx2 v[{g1}:{g1+1}], v5, s[24:27], s{22 if tn < 2 else 31} offen offset:{(tn & 1) * 1024}")
        e(f"buffer_store_dwordx2 v[{g3}:{g3+1}], v5, s[24:27], s{23 if tn < 2 else 32} offen offset:{(tn & 1) * 1024}")
    stamp(e, 5); stamp_rt(e, 6); stamp_flush(e, 1)
    e("s_endpgm")

    e("L_k1_typeB:")
    srd(e, 12, 48, 0, 512 * F * 2)
    srd(e, 36, 50, 0, F * 2)
    e("s_cmp_ge_u32 s29, 11")
    e("s_cselect_b32 s22, 11, 0")
    e("s_cselect_b32 s23, 2, 0")
    e("s_sub_u32 s30, s29, s22")
    e("s_lshl_b32 s30, s30, 7")
    e("s_lshl_b32 s18, s30, 1")
    e("s_and_b32 s29, s28, 1")
    e("s_lshr_b32 s28, s28, 1")
    e("s_lshl_b32 s28, s28, 2")
    e("s_add_u32 s28, s28, s23")

    def rowsB(e, jj):
        wm, half = jj >> 1, jj & 1
        e(f"s_add_u32 s22, s28, {wm}")
        e("s_lshl_b32 s22, s22, 6")
        e("s_add_u32 s22, s22, s29")
        e("v_lshl_add_u32 v5, v2, 1, s22")
        if half:
            e("v_cmp_eq_u32 vcc, 0, v5")
            e("v_sub_u32 v5, 2048, v5")
            e("v_mov_b32 v6, 1024")
            e("v_cndmask_b32 v5, v5, v6, vcc")

    gB = G1("k1b", True)
    vb = gB.vend
    e("s_and_b32 s23, s16, 1")
    e("s_lshl_b32 s23, s23, 6")
    e("s_add_u32 s33, s30, s23")
    e("v_and_b32 v1, 63, v0")
    e("v_lshrrev_b32 v3, 4, v1")
    e("v_lshlrev_b32 v12, 3, v3")
    e("s_lshl_b32 s33, s33, 1")
    extra = [[f"buffer_load_dwordx2 v[{vb+2*tn}:{vb+2*tn+1}], v12, s[36:39], s33 offen offset:{32*tn}"] for tn in range(4)]
    gB.run(e, rowsB, extra)
    e("s_waitcnt vmcnt(0)")
    f0 = gB.fP[0]
    k1 = -2.0 * math.sqrt(2.0 / math.pi) * math.log2(math.e)
    k2 = k1 * 0.044715
    kk = f0 + 40
    e(f"v_mov_b32 v{kk}, {f32bits(k1):#x}")
    e(f"v_mov_b32 v{kk+1}, {f32bits(k2):#x}")
    e(f"v_mov_b32 v{kk+2}, 1.0")
    e("v_lshlrev_b32 v5, 4, v1")
    e("s_lshl_b32 s22, s29, 4")
    e("s_add_u32 s22, s22, s28")
    e("s_add_u32 s22, s22, s34")
    e(f"s_mul_i32 s22, s22, {NKS}")
    e("s_lshr_b32 s23, s33, 6")
    e("s_add_u32 s22, s22, s23")
    e("s_lshl_b32 s22, s22, 12")
    if WS_H:
        e(f"s_add_u32 s22, s22, {WS_H}")
    b = f0 + 44
    q = f0 + 52

    def bc(r):
        return (f"v[{r}:{r+1}]", 0) if r % 2 == 0 else (f"v[{r-1}:{r}]", 1)

    for u in range(2):
        if u == 1:
            e(f"s_cmp_ge_u32 s23, {NKS - 1}")
            e("s_cbranch_scc1 L_k1b_skip")
            e("s_add_u32 s22, s22, 4096")
        for h in range(2):
            tn = 2 * u + h
            e(f"v_lshlrev_b32 v{b+4*h}, 16, v{vb+2*tn}")
            e(f"v_and_b32 v{b+4*h+1}, 0xffff0000, v{vb+2*tn}")
            e(f"v_lshlrev_b32 v{b+4*h+2}, 16, v{vb+2*tn+1}")
            e(f"v_and_b32 v{b+4*h+3}, 0xffff0000, v{vb+2*tn+1}")
        for tm in range(4):
            a = gB.accreg(tm, 2 * u)
            c = gB.accC + 8 * u
            bs, bsel = bc(gB.be + tm)
            as_, asel = bc(gB.al + tm)
            P = (0, 2, 4, 6)
            for i in P:
                e(f"v_pk_fma_f32 v[{q+i}:{q+i+1}], {bs}, v[{c+i}:{c+i+1}], v[{b+i}:{b+i+1}] op_sel:[{bsel},0,0] op_sel_hi:[{bsel},1,1] neg_lo:[1,0,0] neg_hi:[1,0,0]")
            for i in P:
                e(f"v_pk_fma_f32 v[{a+i}:{a+i+1}], {as_}, v[{a+i}:{a+i+1}], v[{q+i}:{q+i+1}] op_sel:[{asel},0,0] op_sel_hi:[{asel},1,1]")
            for i in P:
                e(f"v_pk_mul_f32 v[{q+i}:{q+i+1}], v[{a+i}:{a+i+1}], v[{a+i}:{a+i+1}]")
            for i in P:
                e(f"v_pk_fma_f32 v[{q+i}:{q+i+1}], v[{q+i}:{q+i+1}], v[{kk}:{kk+1}], v[{kk}:{kk+1}] op_sel:[0,1,0] op_sel_hi:[1,1,0]")
            for i in P:
                e(f"v_pk_mul_f32 v[{q+i}:{q+i+1}], v[{q+i}:{q+i+1}], v[{a+i}:{a+i+1}]")
            for r in range(8):
                e(f"v_exp_f32 v{q+r}, v{q+r}")
            for i in P:
                e(f"v_pk_add_f32 v[{q+i}:{q+i+1}], v[{q+i}:{q+i+1}], v[{kk+2}:{kk+3}] op_sel_hi:[1,0]")
            for r in range(8):
                e(f"v_rcp_f32 v{q+r}, v{q+r}")
            for i in P:
                e(f"v_pk_mul_f32 v[{q+i}:{q+i+1}], v[{q+i}:{q+i+1}], v[{a+i}:{a+i+1}]")
            for i in range(4):
                e(f"v_cvt_pk_bf16_f32 v{a+i}, v{q+2*i}, v{q+2*i+1}")
            e(f"buffer_store_dwordx4 v[{a}:{a+3}], v5, s[24:27], s22 offen offset:{tm * 1024}")
    e("L_k1b_skip:")
    stamp(e, 5); stamp_rt(e, 6); stamp_flush(e, 1)
    e("s_endpgm")

    e("L_k1_spare:")
    e("s_sub_u32 s29, s29, 30")
    e("v_and_b32 v1, 63, v0")
    e("s_cmp_eq_u32 s29, 0")
    e("s_cselect_b32 s12, s40, s42")
    e("s_cselect_b32 s13, s41, s43")
    e(f"s_mov_b32 s14, {8 << 20}")
    e("s_mov_b32 s15, 0x20000")
    srd(e, 56, 6, 0, F * 512 * 2)
    e("v_lshrrev_b32 v2, 3, v1")
    e("s_lshr_b32 s22, s28, 1")
    e("s_lshl_b32 s22, s22, 7")
    e("s_lshl_b32 s23, s54, 4")
    e("s_add_u32 s22, s22, s23")
    e("v_add_u32 v3, s22, v2")
    e("s_and_b32 s22, s28, 1")
    e("v_lshl_add_u32 v3, v3, 1, s22")
    e("v_lshlrev_b32 v3, 12, v3")
    e("v_and_b32 v4, 7, v1")
    e("v_lshl_add_u32 v3, v4, 7, v3")
    e("s_mov_b32 s22, 65536")
    e("s_lshl_b32 s30, s29, 3")
    e("s_add_u32 s30, s30, s28")
    e("v_lshlrev_b32 v5, 10, v2")
    e("v_lshl_add_u32 v5, v4, 4, v5")
    e("s_lshl_b32 s31, s30, 15")
    e("s_lshl_b32 s23, s54, 7")
    e("s_add_u32 s31, s31, s23")
    e("s_mul_i32 s19, s54, 12288")
    for it in range(3):
        for m in range(4):
            e(f"s_add_u32 m0, s19, {it * 4096 + m * 1024}")
            e(f"s_add_u32 s23, s31, {it * 16 * 32768 + m * 8192}")
            e("buffer_load_dwordx4 v5, s[56:59], s23 offen lds")
    e("buffer_load_dword v8, v3, s[12:15], 0 offen")
    e("buffer_load_dword v8, v3, s[12:15], s22 offen")
    e("v_lshrrev_b32 v6, 2, v1")
    e("v_lshlrev_b32 v6, 7, v6")
    e("v_and_b32 v7, 3, v1")
    e("v_lshl_add_u32 v6, v7, 3, v6")
    e("v_add_u32 v6, s19, v6")
    e("v_and_b32 v7, 15, v1")
    e("v_and_b32 v9, 48, v1")
    e("s_lshl_b32 s23, s54, 6")
    e(f"s_movk_i32 s33, {NKS}")
    for ctl in range(4):
        d = 10 + ctl
        e(f"s_add_u32 s32, s23, {16 * ctl}")
        e("v_add_u32 v16, s32, v7")
        e("v_sub_u32 v17, 512, v16")
        e("v_and_b32 v17, 255, v17")
        e("v_cmp_gt_u32 vcc, 256, v16")
        e("v_mov_b32 v18, 2048")
        e("s_nop 0")
        e("v_cndmask_b32 v16, v17, v16, vcc")
        e("v_cndmask_b32 v18, v18, 0, vcc")
        e("v_lshrrev_b32 v17, 5, v16")
        e("v_mul_lo_u32 v17, v17, s33")
        e("v_lshl_add_u32 v18, v17, 12, v18")
        e("v_bfe_u32 v17, v16, 4, 1")
        e("v_lshl_add_u32 v18, v17, 10, v18")
        e("v_and_b32 v17, 15, v16")
        e("v_add_u32 v17, v17, v9")
        e(f"v_lshl_add_u32 v{d}, v17, 4, v18")
    e("s_lshl_b32 s31, s30, 12")
    e(f"s_add_u32 s31, s31, {WS_W2F}")
    for it in range(3):
        if it == 2:
            e(f"s_cmp_ge_u32 s30, {NKS - 32}")
            e("s_cbranch_scc1 L_k1_done")
        if it == 0:
            e("s_waitcnt vmcnt(2)")
        for ctl in range(4):
            for h in range(2):
                r = 20 + 16 * it + 4 * ctl + 2 * h
                e(f"ds_read_b64_tr_b16 v[{r}:{r+1}], v6 offset:{it * 4096 + h * 2048 + ctl * 32}")
        for ctl in range(4):
            r = 20 + 16 * it + 4 * ctl
            e(f"s_waitcnt lgkmcnt({6 - 2 * ctl})")
            e(f"buffer_store_dwordx4 v[{r}:{r+3}], v{10+ctl}, s[24:27], s31 offen")
        e("s_add_u32 s31, s31, 65536")
    e("L_k1_done:")
    e("s_endpgm")
    return vb + 8, G1.LDS


class VM:
    def __init__(self, e):
        self.e = e
        self.n = 0

    def load(self, ins):
        self.e(ins)
        self.n += 1
        return self.n

    def wait(self, idx):
        self.e(f"s_waitcnt vmcnt({self.n - idx})")


DEPTH = env('DEPTH', 3)
BUF = 16
ACC = BUF + 32 * DEPTH
XR = ACC + 64
AR = XR + 16
B2R = AR + 16
K2_V = B2R + 4
LZ, LY = 0, 49152
K2_LDS = 65536


def k2_tail_loads(e, vm):
    ops = []
    for i in range(16):
        ops.append(f"buffer_load_ushort v{XR+i}, v{AR+i}, s[24:27], 0 offen")
    for ct in range(2):
        ops.append(f"buffer_load_ushort v{B2R+ct}, v{B2R+2+ct}, s[32:35], 0 offen")
    return ops


def gen_k2(e, name):
    kernel_head(e, name)
    e("s_cmp_ge_u32 s2, 256")
    e("s_cbranch_scc1 L_k2_done")
    stamp_rt(e, 0)
    stamp(e, 1)
    e(f"s_load_dwordx2 s[4:5], s[0:1], {KA_WS}")
    e(f"s_load_dwordx2 s[6:7], s[0:1], {KA_X}")
    e(f"s_load_dwordx4 s[40:43], s[0:1], {KA_WSRE}")
    e(f"s_load_dwordx4 s[44:47], s[0:1], {KA_B2}")
    e("v_lshrrev_b32 v1, 6, v0")
    e("s_nop 0")
    e("v_readfirstlane_b32 s16, v1")
    e("v_and_b32 v1, 63, v0")
    e("v_lshlrev_b32 v2, 4, v1")
    e("s_and_b32 s28, s2, 7")
    e("s_lshr_b32 s31, s2, 3")
    e("s_and_b32 s30, s31, 7")
    e("s_lshr_b32 s22, s31, 3")
    e("s_lshr_b32 s29, s28, 1")
    e("s_lshl_b32 s29, s29, 2")
    e("s_add_u32 s29, s29, s22")
    e("s_and_b32 s28, s28, 1")
    e("s_waitcnt lgkmcnt(0)")
    srd(e, 8, 4, 0, 64 << 20)
    e("s_cmp_eq_u32 s16, 4")
    e("s_cbranch_scc1 L_k2_helper")
    srd(e, 24, 6, 0, 2 << 20)
    srd(e, 36, 46, 0, 2 << 20)
    srd(e, 32, 44, 0, 1024)
    e("s_cmp_eq_u32 s16, 3")
    e("s_cbranch_scc1 L_k2_pq")
    e("s_lshl_b32 s22, s28, 4")
    e("s_add_u32 s22, s22, s29")
    e(f"s_mul_i32 s48, s22, {NKS * 4096}")
    if WS_H:
        e(f"s_add_u32 s48, s48, {WS_H}")
    e(f"s_mul_i32 s49, s30, {NKS * 4096}")
    e(f"s_add_u32 s49, s49, {WS_W2F}")
    e("s_mul_i32 s22, s16, 14")
    e("s_min_u32 s23, s16, 1")
    e("s_add_u32 s22, s22, s23")
    e("s_lshl_b32 s22, s22, 12")
    e("s_add_u32 s48, s48, s22")
    e("s_add_u32 s49, s49, s22")

    def final_addrs():
        e("v_and_b32 v3, 15, v1")
        e("v_lshrrev_b32 v4, 4, v1")
        e("s_lshl_b32 s22, s29, 6")
        e("s_add_u32 s22, s22, s28")
        e("v_lshl_add_u32 v5, v4, 3, s22")
        e("s_lshr_b32 s22, s16, 1")
        e("s_cmp_eq_u32 s22, 0")
        e("s_cselect_b32 s50, 1, -1")
        e(f"s_cselect_b32 s51, 0, {2048 * 1024}")
        e("s_lshl_b32 s50, s50, 10")
        e("s_lshl_b32 s22, s30, 5")
        e("v_add_u32 v6, s22, v3")
        e("s_and_b32 s22, s16, 1")
        e("s_cmp_eq_u32 s22, 0")
        e("s_cselect_b32 s52, 2, -2")
        e("s_cselect_b32 s53, 0, 1024")
        e("v_mov_b32 v7, s53")
        e(f"v_mad_i32_i24 v{B2R+2}, v6, s52, v7")
        e("v_add_u32 v6, 16, v6")
        e(f"v_mad_i32_i24 v{B2R+3}, v6, s52, v7")
        e(f"v_cmp_eq_u32 vcc, 1024, v{B2R+2}")
        e("v_mov_b32 v7, 512")
        e("v_mov_b32 v8, s51")
        e(f"v_cndmask_b32 v{B2R+2}, v{B2R+2}, v7, vcc")
        for rt in range(2):
            for r in range(4):
                e(f"v_add_u32 v6, {32 * rt + 2 * r}, v5")
                e("v_mad_i32_i24 v6, v6, s50, v8")
                if rt == 0 and r == 0:
                    e(f"v_cmp_eq_u32 vcc, {2048 * 1024}, v6")
                    e(f"v_mov_b32 v7, {1024 * 1024}")
                    e("s_nop 0")
                    e("v_cndmask_b32 v6, v6, v7, vcc")
                for ct in range(2):
                    e(f"v_add_u32 v{AR + (rt * 2 + ct) * 4 + r}, v6, v{B2R+2+ct}")

    def zpath(tag, nu):
        vm = VM(e)
        done = {}

        def issueA(u, ta):
            s = BUF + 32 * (u % DEPTH) + 4 * ta
            if ta == 0:
                e(f"s_add_u32 s22, s48, {u * 4096}")
            vm.load(f"buffer_load_dwordx4 v[{s}:{s+3}], v2, s[8:11], s22 offen offset:{ta * 1024}")

        def issueB(u):
            e(f"s_add_u32 s23, s49, {u * 4096}")
            for tb in range(4):
                s = BUF + 32 * (u % DEPTH) + 16 + 4 * tb
                done[u] = vm.load(f"buffer_load_dwordx4 v[{s}:{s+3}], v2, s[8:11], s23 offen offset:{tb * 1024}")

        for u in range(DEPTH):
            for ta in range(4):
                issueA(u, ta)
            issueB(u)
        for r in range(ACC, ACC + 64):
            e(f"v_mov_b32 v{r}, 0")
        final_addrs()
        stamp(e, 2)
        tail = k2_tail_loads(e, vm)
        for u in range(nu):
            vm.wait(done[u])
            s = BUF + 32 * (u % DEPTH)
            for ta in range(4):
                for tb in range(4):
                    a = ACC + 4 * (ta * 4 + tb)
                    e(f"v_mfma_f32_16x16x32_bf16 v[{a}:{a+3}], v[{s+4*ta}:{s+4*ta+3}], v[{s+16+4*tb}:{s+16+4*tb+3}], v[{a}:{a+3}]")
                if u + DEPTH < nu:
                    issueA(u + DEPTH, ta)
                elif u + DEPTH == nu:
                    for ins in tail[ta * 5:(ta + 1) * 5]:
                        vm.load(ins)
            if u + DEPTH < nu:
                issueB(u + DEPTH)
        stamp(e, 3)
        e("s_lshl_b32 s22, s16, 14")
        e("v_add_u32 v3, s22, v2")
        e("s_nop 7")
        for th in range(2):
            for eh in range(2):
                for rt in range(2):
                    for ct in range(2):
                        a = ACC + 4 * ((2 * th + rt) * 4 + 2 * eh + ct)
                        e(f"ds_write_b128 v3, v[{a}:{a+3}] offset:{LZ + (th * 2 + eh) * 4096 + (rt * 2 + ct) * 1024}")
        e("s_branch L_k2_final")

    e("s_cmp_eq_u32 s16, 0")
    e("s_cbranch_scc0 L_k2_z14")
    zpath("z15", 15)
    e("L_k2_z14:")
    zpath("z14", 14)

    e("L_k2_pq:")
    srd(e, 12, 40, 0, 8 << 20)
    srd(e, 56, 42, 0, 8 << 20)
    e("v_and_b32 v3, 15, v1")
    e("v_lshrrev_b32 v4, 4, v1")
    e("s_lshl_b32 s22, s29, 6")
    e("s_add_u32 s22, s22, s28")
    e("v_lshl_add_u32 v9, v3, 1, s22")
    e("v_lshlrev_b32 v9, 12, v9")
    e("v_lshl_add_u32 v9, v4, 4, v9")
    e(f"v_add_u32 v10, {32 * 4096}, v9")
    e("s_lshl_b32 s22, s28, 3")
    e("s_add_u32 s22, s22, s30")
    e("s_lshl_b32 s49, s22, 16")
    e(f"s_add_u32 s49, s49, {WS_AB}")
    vm = VM(e)
    done = {}
    P, Q, X1, X2, X3 = ACC, ACC + 16, ACC + 32, ACC + 40, ACC + 48
    ALT = ACC + 52
    RV = ACC + 56

    def issueS(u, k):
        s = BUF + 32 * (u % DEPTH) + 4 * k
        sr = "s[12:15]" if k < 2 else "s[56:59]"
        vm.load(f"buffer_load_dwordx4 v[{s}:{s+3}], v{9 + (k & 1)}, {sr}, 0 offen offset:{u * 64}")

    def issueAB(u):
        e(f"s_add_u32 s23, s49, {u * 4096}")
        for k in range(4):
            s = BUF + 32 * (u % DEPTH) + 16 + 4 * k
            done[u] = vm.load(f"buffer_load_dwordx4 v[{s}:{s+3}], v2, s[8:11], s23 offen offset:{k * 1024}")

    nu = 16
    for u in range(DEPTH):
        for k in range(4):
            issueS(u, k)
        issueAB(u)
    for r in range(ACC, ACC + 52):
        e(f"v_mov_b32 v{r}, 0")
    for i in range(4):
        e(f"v_mov_b32 v{ALT+i}, 0xbf803f80")
    final_addrs()
    e("s_lshl_b32 s22, s28, 10")
    e("s_lshl_b32 s23, s30, 7")
    e("s_add_u32 s22, s22, s23")
    e(f"s_add_u32 s54, s22, {WS_R}")
    e(f"s_mov_b32 s55, {WS_R + 1024}")
    e("v_lshlrev_b32 v11, 2, v3")
    e("v_mov_b32 v12, 0")
    stamp(e, 2)
    tail = k2_tail_loads(e, vm) + [f"buffer_load_dword v{RV}, v11, s[8:11], s54 offen",
                                   f"buffer_load_dword v{RV+1}, v11, s[8:11], s54 offen offset:64",
                                   f"buffer_load_dword v{RV+2}, v12, s[8:11], s55 offen"]

    def mf(a, A, B):
        e(f"v_mfma_f32_16x16x32_bf16 v[{a}:{a+3}], v[{A}:{A+3}], v[{B}:{B+3}], v[{a}:{a+3}]")

    for u in range(nu):
        vm.wait(done[u])
        s = BUF + 32 * (u % DEPTH)
        C = [s, s + 4]; S = [s + 8, s + 12]; AT = [s + 16, s + 20]; BT = [s + 24, s + 28]
        for k in range(4):
            rt = k & 1
            if k < 2:
                for ct in range(2):
                    mf(P + 4 * (rt * 2 + ct), C[rt], AT[ct])
                mf(X1 + 4 * rt, C[rt], BT[0])
            else:
                for ct in range(2):
                    mf(Q + 4 * (rt * 2 + ct), S[rt], BT[ct])
                if rt == 0:
                    mf(X2, ALT, AT[0]); mf(X2 + 4, ALT, AT[1])
                else:
                    mf(X3, ALT, BT[0])
            if u + DEPTH < nu:
                issueS(u + DEPTH, k)
            elif u + DEPTH == nu:
                for ins in tail[k * 6:(k + 1) * 6]:
                    vm.load(ins)
        if u + DEPTH < nu:
            issueAB(u + DEPTH)
    stamp(e, 3)
    e("s_waitcnt vmcnt(0)")
    Y1, Y2, Y3, Y4 = BUF, BUF + 16, BUF + 32, BUF + 48
    e("s_cmp_eq_u32 s28, 0")
    e(f"s_cselect_b32 s22, 1.0, {f32bits(-1.0):#x}")
    e("s_cselect_b32 s23, 1.0, 0")
    R2 = RV + 4
    for ct in range(2):
        e(f"v_mul_f32 v{R2+ct}, s22, v{RV+ct}")
    e(f"v_mul_f32 v{R2+2}, s23, v{RV}")
    e(f"v_mul_f32 v{R2+3}, s23, v{RV+2}")
    e("s_nop 4")
    for tile in range(4):
        ct = tile & 1
        for r in range(4):
            i = 4 * tile + r
            op = "v_add_f32" if r % 2 == 0 else "v_sub_f32"
            e(f"v_sub_f32 v{Y1+i}, v{P+i}, v{Q+i}")
            e(f"v_add_f32 v{Y2+i}, v{P+i}, v{Q+i}")
            e(f"{op} v{Y1+i}, v{Y1+i}, v{RV+ct}")
            e(f"{op} v{Y2+i}, v{Y2+i}, v{R2+ct}")
            e(f"v_mov_b32 v{Y4+i}, v{Y1+i}")
            e(f"v_mov_b32 v{Y3+i}, v{Y2+i}")
    e("s_cmp_lg_u32 s30, 0")
    e("s_cbranch_scc1 L_k2_n0")
    e("s_mov_b32 s22, 0x00010001")
    e("s_mov_b32 s23, 0x00010001")
    e("s_mov_b64 exec, s[22:23]")
    for rt in range(2):
        for r in range(4):
            i = 8 * rt + r
            op = "v_add_f32" if r % 2 == 0 else "v_sub_f32"
            e(f"{op} v{Y1+i}, v{P+i}, v{R2+2}")
            e(f"v_mov_b32 v{Y3+i}, v{Y1+i}")
            e(f"{op} v{Y2+i}, v{X1+4*rt+r}, v{R2+3}")
            e(f"v_mov_b32 v{Y4+i}, v{Y2+i}")
    e("s_mov_b64 exec, -1")
    e("L_k2_n0:")
    e("s_or_b32 s22, s28, s29")
    e("s_cmp_lg_u32 s22, 0")
    e("s_cbranch_scc1 L_k2_c0")
    e("s_mov_b64 exec, 0xffff")
    for ct in range(2):
        e(f"v_add_f32 v{Y3+4*ct}, v{X2+4*ct}, v{RV+ct}")
        e(f"v_mov_b32 v{Y4+4*ct}, v{Y3+4*ct}")
    e("s_cmp_lg_u32 s30, 0")
    e("s_cselect_b32 s22, 0, 1")
    e("s_mov_b32 s23, 0")
    e("s_mov_b64 exec, s[22:23]")
    e(f"v_add_f32 v{Y4}, v{X3}, v{RV+2}")
    e("s_mov_b64 exec, -1")
    e("L_k2_c0:")
    for qd, Yq in enumerate((Y1, Y2, Y3, Y4)):
        for tile in range(4):
            e(f"ds_write_b128 v2, v[{Yq+4*tile}:{Yq+4*tile+3}] offset:{LY + qd * 4096 + tile * 1024}")
    e("L_k2_final:")
    e("s_lshl_b32 s22, s16, 12")
    e("v_add_u32 v3, s22, v2")
    e("s_waitcnt lgkmcnt(0)")
    e("s_barrier")
    stamp(e, 4)
    if INSTR:
        e("s_waitcnt lgkmcnt(0)")
    Z = [BUF, BUF + 16, BUF + 32]
    Y = BUF + 48
    for w in range(3):
        for tile in range(4):
            e(f"ds_read_b128 v[{Z[w]+4*tile}:{Z[w]+4*tile+3}], v3 offset:{LZ + w * 16384 + tile * 1024}")
    for tile in range(4):
        e(f"ds_read_b128 v[{Y+4*tile}:{Y+4*tile+3}], v3 offset:{LY + tile * 1024}")
    nl2e = -math.log2(math.e)
    e(f"s_mov_b32 s52, {f32bits(nl2e):#x}")
    e("s_waitcnt vmcnt(0)")
    for ct in range(2):
        e(f"v_lshlrev_b32 v{B2R+ct}, 16, v{B2R+ct}")
    for i in range(16):
        e(f"v_lshlrev_b32 v{XR+i}, 16, v{XR+i}")
    z = Z[0]
    q = Z[1]
    t = 4
    e("s_waitcnt lgkmcnt(8)")
    for i in range(0, 16, 2):
        e(f"v_pk_add_f32 v[{z+i}:{z+i+1}], v[{z+i}:{z+i+1}], v[{Z[1]+i}:{Z[1]+i+1}]")
    e("s_waitcnt lgkmcnt(4)")
    for i in range(0, 16, 2):
        e(f"v_pk_add_f32 v[{z+i}:{z+i+1}], v[{z+i}:{z+i+1}], v[{Z[2]+i}:{Z[2]+i+1}]")
    for i in range(0, 16, 2):
        bf16r_pair(e, z + i, z + i + 1, t)
    for i in range(16):
        e(f"v_add_f32 v{z+i}, v{z+i}, v{B2R + ((i >> 2) & 1)}")
    for i in range(0, 16, 2):
        bf16r_pair(e, z + i, z + i + 1, t)
    for i in range(16):
        e(f"v_mul_f32 v{q+i}, s52, v{z+i}")
    for i in range(16):
        e(f"v_exp_f32 v{q+i}, v{q+i}")
    for i in range(16):
        e(f"v_add_f32 v{q+i}, 1.0, v{q+i}")
    for i in range(16):
        e(f"v_rcp_f32 v{q+i}, v{q+i}")
    for i in range(16):
        e(f"v_mul_f32 v{z+i}, v{q+i}, v{z+i}")
    for i in range(0, 16, 2):
        bf16r_pair(e, z + i, z + i + 1, t)
    e("s_waitcnt lgkmcnt(0)")
    for i in range(0, 16, 2):
        bf16r_pair(e, Y + i, Y + i + 1, t)
    for i in range(16):
        e(f"v_mul_f32 v{z+i}, v{z+i}, v{Y+i}")
    for i in range(0, 16, 2):
        bf16r_pair(e, z + i, z + i + 1, t)
    for i in range(16):
        e(f"v_add_f32 v{z+i}, v{z+i}, v{XR+i}")
    for i in range(0, 16, 2):
        e(f"v_cvt_pk_bf16_f32 v{q+i}, v{z+i}, v{z+i+1}")
        e(f"buffer_store_short v{q+i}, v{AR+i}, s[36:39], 0 offen")
        e(f"buffer_store_short_d16_hi v{q+i}, v{AR+i+1}, s[36:39], 0 offen")
    stamp(e, 5); stamp_rt(e, 6); stamp_flush(e, 2)
    e("s_endpgm")
    e("L_k2_helper:")
    e("s_lshl_b32 s22, s31, 9")
    e("v_add_u32 v3, s22, v1")
    e("s_lshl_b32 s23, s28, 19")
    e(f"s_add_u32 s23, s23, {WS_AB - 11008 * 128}")
    e(f"v_mov_b32 v6, {WS_W2F}")
    e("v_mov_b32 v7, s23")
    e("v_mov_b32 v8, 0x7f000000")
    e(f"s_movk_i32 s52, {11008 + 4096}")
    for it in range(8):
        e(f"v_add_u32 v4, {64 * it}, v3")
        e("v_cmp_gt_u32 vcc, 11008, v4")
        e("v_cmp_gt_u32 s[50:51], s52, v4")
        e("s_nop 0")
        e("v_cndmask_b32 v5, v7, v6, vcc")
        e("v_cndmask_b32 v5, v8, v5, s[50:51]")
        e("v_lshl_add_u32 v5, v4, 7, v5")
        e(f"buffer_load_dword v{10+it}, v5, s[8:11], 0 offen")
    e("L_k2_done:")
    e("s_endpgm")
    return K2_V, K2_LDS


def main(out):
    e = E()
    n1, n2 = "fnet_k1_kernel", "fnet_k2_kernel"
    v1, l1 = gen_k1(e, n1)
    v2, l2 = gen_k2(e, n2)
    hdr = open("cdna_kernels/" + NAME + ".s.ref").read().split("; Override launch geometry")[0]
    s = hdr
    s += f"; @launch kernel={n1} grid=(256,1,1) block=(512,1,1) lds={l1}\n"
    s += f"; @launch kernel={n2} grid=(256,1,1) block=(320,1,1) lds={l2}\n"
    s += '.amdgcn_target "amdgcn-amd-amdhsa--gfx950"\n.text\n'
    s += e.text()
    s += '.section .rodata,"a"\n'
    for n, v in ((n1, v1), (n2, v2)):
        s += ".p2align 6\n" + kdesc(n, v)
    open(out, "w").write(s)
    print("vgprs", v1, v2, "lds", l1, l2)


if __name__ == "__main__":
    if len(sys.argv) > 2 and sys.argv[2] == "instr":
        INSTR = True
    main(sys.argv[1] if len(sys.argv) > 1 else "cdna_kernels/" + NAME + ".s")
```

```python
import sys, math, os, struct

NAME = "recurrent_scan__spectral_fnet__mixer_channel_mlp__prompt"

WS_H = 0
WS_W2F = 8 << 20
WS_AB = 12 << 20
WS_R = 14 << 20
WS_CS = 16 << 20
WS_DBG = 100 << 20
F = 1376
NKS = 43

KA_X, KA_WSRE, KA_WSIM, KA_WDRE, KA_WDIM, KA_BX, KA_W1, KA_B1, KA_W2, KA_B2, KA_OUT, KA_DBG, KA_WS = [8 * i for i in range(13)]

INSTR = False


def env(name, default):
    return int(os.environ.get(name, str(default)))


def stamp(e, k):
    if INSTR:
        e(f"s_memtime s[{70 + 2 * k}:{71 + 2 * k}]")


def stamp_rt(e, k):
    if INSTR:
        e(f"s_memrealtime s[{70 + 2 * k}:{71 + 2 * k}]")


def stamp_flush(e, kidx, wsbase=4):
    if not INSTR:
        return
    e("s_waitcnt lgkmcnt(0)")
    e("s_getreg_b32 s84, hwreg(HW_REG_XCC_ID)")
    e(f"s_add_u32 s96, s{wsbase}, {WS_DBG + kidx * (1 << 18)}")
    e(f"s_addc_u32 s97, s{wsbase + 1}, 0")
    e(f"s_mov_b32 s98, {1 << 18}")
    e("s_mov_b32 s99, 0x20000")
    e("s_lshl_b32 s100, s2, 2")
    e("s_add_u32 s100, s100, s16")
    e("s_lshl_b32 s100, s100, 6")
    e("v_mov_b32 v1, 0")
    for k in range(8):
        e(f"v_mov_b32 v2, s{70 + 2 * k}")
        e(f"buffer_store_dword v2, v1, s[96:99], s100 offen offset:{4 * k}")


class E:
    def __init__(self):
        self.L = []

    def __call__(self, s):
        for line in s.split("\n"):
            line = line.strip()
            if line:
                self.L.append(("    " if not line.endswith(":") else "") + line)

    def text(self):
        return "\n".join(self.L) + "\n"


def f32bits(x):
    return struct.unpack("<I", struct.pack("<f", x))[0]


def srd(e, d, base, off, nbytes):
    if off:
        e(f"s_add_u32 s{d}, s{base}, {off}")
        e(f"s_addc_u32 s{d+1}, s{base+1}, 0")
    else:
        e(f"s_mov_b32 s{d}, s{base}")
        e(f"s_mov_b32 s{d+1}, s{base+1}")
    e(f"s_mov_b32 s{d+2}, {nbytes}")
    e(f"s_mov_b32 s{d+3}, 0x20000")


def kernel_head(e, name):
    e(f".globl {name}")
    e(".p2align 8")
    e(f".type {name},@function")
    e(f"{name}:")


def kdesc(name, vgpr, sgpr=102):
    v = (vgpr + 3) // 4 * 4
    return f""".amdhsa_kernel {name}
  .amdhsa_next_free_vgpr {v}
  .amdhsa_next_free_sgpr {sgpr}
  .amdhsa_accum_offset {v}
  .amdhsa_group_segment_fixed_size 0
  .amdhsa_kernarg_size 104
  .amdhsa_user_sgpr_count 2
  .amdhsa_user_sgpr_kernarg_segment_ptr 1
  .amdhsa_system_sgpr_workgroup_id_x 1
.end_amdhsa_kernel
"""


def bf16r_scalar(e, r):
    e(f"v_cvt_pk_bf16_f32 v{r}, v{r}, v{r}")
    e(f"v_lshlrev_b32 v{r}, 16, v{r}")


def bf16r_pair(e, a, b, t):
    e(f"v_cvt_pk_bf16_f32 v{t}, v{a}, v{b}")
    e(f"v_lshlrev_b32 v{a}, 16, v{t}")
    e(f"v_and_b32 v{b}, 0xffff0000, v{t}")


def interleave(e, mf, fillers):
    n = len(mf)
    k = len(fillers)
    fi = 0
    for i, m in enumerate(mf):
        e(m)
        want = min(k, -(-(i + 1) * k // n)) if k > n else min(k, i + 1)
        while fi < want:
            for ins in fillers[fi]:
                e(ins)
            fi += 1
    while fi < k:
        for ins in fillers[fi]:
            e(ins)
        fi += 1


TOUCH = env('TOUCH', 0)
WBL2 = env('WBL2', 0)
CSLATE = env('CSLATE', 1)
CSR = 200


class G1:
    NS, NSTEPS = 4, 8
    SS = 32768
    D = 8
    SC = NS * SS
    SC_SQ, SC_SUM, SC_CS, SC_AB = SC, SC + 512, SC + 1024, SC + 2048
    LDS = SC + 2048 + 2048

    def __init__(self, tag, qtr):
        self.tag, self.qtr = tag, qtr
        self.vP0b, self.vP1b, self.vPa0, self.vPa1 = 16, 17, 18, 19
        self.vQ0b, self.vQ1b, self.vQa0, self.vQa1 = 20, 21, 22, 23
        self.vQb = [20, 21, 22, 23]
        self.vQa = [24, 25, 26, 27]
        self.fP = [28, 60]
        self.fQ = [44, 76]
        self.acc = 92
        self.ones = 156
        self.accS = 160
        self.accC = 176
        self.vend = 192
        self.vDP = [16, 17, 18, 19]
        self.vDQ = 20
        self.var = None

    def accreg(self, tm, tn):
        return self.acc + 4 * (tm * 4 + tn)

    def setup_prod(self, e, rows):
        g = self
        e("v_and_b32 v1, 63, v0")
        e("v_lshrrev_b32 v2, 3, v1")
        e("v_lshrrev_b32 v3, 4, v1")
        e("s_and_b32 s22, s16, 1")
        e("s_lshl_b32 s22, s22, 2")
        e("v_add_u32 v3, s22, v3")
        e("v_and_b32 v4, 7, v1")
        e("v_xor_b32 v3, v3, v4")
        e("v_lshlrev_b32 v3, 4, v3")
        e("s_lshl_b32 s22, s16, 3")
        e("v_add_u32 v2, s22, v2")
        for jj in range(4):
            rows(e, jj)
            e(f"v_lshl_add_u32 v{g.vDP[jj]}, v5, 10, v3")
        if g.qtr:
            e("v_lshrrev_b32 v5, 4, v1")
            e("s_lshr_b32 s22, s16, 1")
            e("s_lshl_b32 s22, s22, 2")
            e("v_or_b32 v6, s22, v5")
            e("v_lshlrev_b32 v6, 1, v6")
            e("v_and_b32 v7, 15, v1")
            e("v_xor_b32 v6, v6, v7")
            e("s_lshl_b32 s22, s16, 2")
            e("v_add_u32 v5, s22, v5")
            e(f"v_mul_u32_u24 v5, {F * 2}, v5")
            e(f"v_lshl_add_u32 v{g.vDQ}, v6, 4, v5")
            e("s_lshr_b32 s22, s30, 3")
            e("v_add_u32 v6, s22, v6")
            e(f"v_cmp_gt_u32 vcc, {F // 8}, v6")
            e("v_mov_b32 v7, 0x40000000")
            e("s_nop 0")
            e(f"v_cndmask_b32 v{g.vDQ}, v7, v{g.vDQ}, vcc")
        else:
            e(f"v_lshl_add_u32 v{g.vDQ}, v2, 10, v3")
        e("s_lshl_b32 s19, s16, 10")
        e("s_mov_b32 s17, 0")

    def dma_ops(self):
        g = self
        ops = []
        for j in range(8):
            grp = [f"s_add_u32 m0, s19, {j * 4096}"]
            if j < 4:
                grp += ["s_nop 0", f"buffer_load_dwordx4 v{g.vDP[j]}, s[8:11], s17 offen lds"]
            else:
                jj = j - 4
                st = jj * (16 * F * 2 if g.qtr else 32 * 1024)
                if jj == 0:
                    grp += ["s_nop 0", f"buffer_load_dwordx4 v{g.vDQ}, s[12:15], s18 offen lds"]
                else:
                    grp += [f"s_add_u32 s22, s18, {st}", f"buffer_load_dwordx4 v{g.vDQ}, s[12:15], s22 offen lds"]
            ops.append(grp)
        ops.append(["s_add_u32 s17, s17, 128", f"s_add_u32 s18, s18, {64 * F * 2 if g.qtr else 128}",
                    f"s_add_u32 s19, s19, {g.SS}", f"s_sub_u32 s22, s19, {g.NS * g.SS}",
                    f"s_cmp_ge_u32 s19, {g.NS * g.SS}", "s_cselect_b32 s19, s22, s19"])
        return ops

    def setup_cons(self, e):
        g = self
        e("v_and_b32 v1, 63, v0")
        e("v_and_b32 v2, 15, v1")
        e("v_lshrrev_b32 v3, 1, v2")
        e("v_lshrrev_b32 v4, 4, v1")
        e("v_xor_b32 v3, v3, v4")
        e("v_lshlrev_b32 v3, 4, v3")
        e("v_lshlrev_b32 v2, 7, v2")
        e("v_add_u32 v2, v2, v3")
        e("s_lshr_b32 s34, s16, 1")
        e("s_and_b32 s35, s16, 1")
        e("s_lshl_b32 s22, s34, 13")
        e(f"v_add_u32 v{g.vP0b}, s22, v2")
        e(f"v_xor_b32 v{g.vP1b}, 64, v{g.vP0b}")
        if not g.qtr:
            e("s_lshl_b32 s23, s35, 13")
            e("s_add_u32 s23, s23, 16384")
            e(f"v_add_u32 v{g.vQ0b}, s23, v2")
            e(f"v_xor_b32 v{g.vQ1b}, 64, v{g.vQ0b}")
        else:
            e("v_bfe_u32 v5, v1, 2, 2")
            e("v_lshl_add_u32 v6, v4, 3, v5")
            e("v_lshlrev_b32 v6, 8, v6")
            e("v_and_b32 v7, 3, v1")
            e("v_lshl_add_u32 v6, v7, 3, v6")
            e("v_add_u32 v6, 16384, v6")
            e("v_and_b32 v7, 1, v4")
            e("v_lshl_or_b32 v5, v7, 2, v5")
            e("s_lshl_b32 s23, s35, 2")
            for tn in range(4):
                e(f"s_add_u32 s22, s23, {tn}")
                e("v_xor_b32 v7, s22, v5")
                e(f"v_lshl_add_u32 v{g.vQb[tn]}, v7, 5, v6")
        e("s_mov_b32 s20, 0")
        for i in range(4):
            e(f"v_mov_b32 v{g.ones + i}, 0x3f803f80")

    def frag_reads(self, st):
        g = self
        va = g.vPa0 if st == 0 else g.vPa1
        ops = []
        for i in range(4):
            r = g.fP[st] + 4 * i
            ops.append([f"ds_read_b128 v[{r}:{r+3}], v{va} offset:{i * 2048}"])
            r = g.fQ[st] + 4 * i
            if g.qtr:
                for h in range(2):
                    ops.append([f"ds_read_b64_tr_b16 v[{r+2*h}:{r+2*h+1}], v{g.vQa[i]} offset:{h * 1024 + st * 8192}"])
            else:
                vq = g.vQa0 if st == 0 else g.vQa1
                ops.append([f"ds_read_b128 v[{r}:{r+3}], v{vq} offset:{i * 2048}"])
        return ops

    def mfmas(self, st):
        g = self
        wm, wn = g.var
        ops = []
        for tm in range(4):
            for tn in (1, 2, 3, 0):
                a = g.accreg(tm, tn)
                p = g.fP[st] + 4 * tm
                q = g.fQ[st] + 4 * tn
                if g.qtr:
                    p, q = q, p
                ops.append(f"v_mfma_f32_16x16x32_bf16 v[{a}:{a+3}], v[{p}:{p+3}], v[{q}:{q+3}], v[{a}:{a+3}]")
        o = g.ones
        for tm in range(4):
            a = g.accS + 4 * tm
            p = g.fP[st] + 4 * tm
            A = p if wn == 0 else o
            ops.append(f"v_mfma_f32_16x16x32_bf16 v[{a}:{a+3}], v[{A}:{A+3}], v[{p}:{p+3}], v[{a}:{a+3}]")
        if wm == st:
            for tn in range(4):
                a = g.accC + 4 * tn
                q = g.fQ[st] + 4 * tn
                A, B = (q, o) if g.qtr else (o, q)
                ops.append(f"v_mfma_f32_16x16x32_bf16 v[{a}:{a+3}], v[{A}:{A+3}], v[{B}:{B+3}], v[{a}:{a+3}]")
        return ops

    def patch(self, e, st):
        g = self
        if g.qtr or g.var[1] != 0:
            return
        for i in range(4):
            r = g.fQ[st] + i
            e(f"v_cndmask_b32 v{r}, v{r}, v15, s[68:69]")

    def step(self, e, last):
        g = self
        e(f"v_add_u32 v{g.vPa1}, s20, v{g.vP1b}")
        if not g.qtr:
            e(f"v_add_u32 v{g.vQa1}, s20, v{g.vQ1b}")
        e(f"s_add_u32 s20, s20, {g.SS}")
        e(f"s_cmp_eq_u32 s20, {g.NS * g.SS}")
        e("s_cselect_b32 s20, 0, s20")
        e("s_waitcnt lgkmcnt(0)")
        g.patch(e, 0)
        interleave(e, g.mfmas(0), g.frag_reads(1))
        if not last:
            e(f"v_add_u32 v{g.vPa0}, s20, v{g.vP0b}")
            if g.qtr:
                for tn in range(4):
                    e(f"v_add_u32 v{g.vQa[tn]}, s20, v{g.vQb[tn]}")
            else:
                e(f"v_add_u32 v{g.vQa0}, s20, v{g.vQ0b}")
            e("s_waitcnt lgkmcnt(0)")
            e("s_barrier")
        else:
            e("s_waitcnt lgkmcnt(0)")
        g.patch(e, 1)
        interleave(e, g.mfmas(1), [] if last else g.frag_reads(0))

    def run(self, e, rows, extra_loads, pre_cons=None, post_loop=None):
        g = self
        t = g.tag
        e("s_cmp_eq_u32 s53, 0")
        e(f"s_cbranch_scc1 L_{t}_cons")
        e("s_setprio 1")
        g.setup_prod(e, rows)
        for s_ in range(g.NS - 1):
            for grp in g.dma_ops():
                for ins in grp:
                    e(ins)
        e(f"s_waitcnt vmcnt({(g.NS - 2) * g.D})")
        e("s_barrier")
        nmain = g.NSTEPS - g.NS + 1
        e(f"s_mov_b32 s21, {nmain}")
        e(f"L_{t}_ploop:")
        e(f"s_waitcnt vmcnt({(g.NS - 3) * g.D})")
        e("s_barrier")
        for grp in g.dma_ops():
            for ins in grp:
                e(ins)
        e("s_sub_u32 s21, s21, 1")
        e("s_cmp_lg_u32 s21, 0")
        e(f"s_cbranch_scc1 L_{t}_ploop")
        for i in range(nmain, g.NSTEPS - 1):
            e(f"s_waitcnt vmcnt({(g.NSTEPS - 2 - i) * g.D})")
            e("s_barrier")
        e("s_endpgm")
        e(f"L_{t}_cons:")
        if pre_cons:
            pre_cons()
        g.setup_cons(e)
        for grp in extra_loads:
            for ins in grp:
                e(ins)
        for r in list(range(g.acc, g.ones)) + list(range(g.accS, g.vend)):
            e(f"v_mov_b32 v{r}, 0")
        e(f"v_mov_b32 v{g.vPa0}, v{g.vP0b}")
        if g.qtr:
            for tn in range(4):
                e(f"v_mov_b32 v{g.vQa[tn]}, v{g.vQb[tn]}")
        else:
            e(f"v_mov_b32 v{g.vQa0}, v{g.vQ0b}")
        e("v_and_b32 v1, 63, v0")
        e("v_and_b32 v2, 15, v1")
        e("v_lshrrev_b32 v3, 4, v1")
        e("s_barrier")
        stamp(e, 2)
        if TOUCH & 8:
            e("buffer_load_dword v14, v209, s[12:15], s59 offen")
        if CSLATE:
            cs_loads(e)
        for grp in g.frag_reads(0):
            e(grp[0])
        e(f"s_mov_b32 s21, {g.NSTEPS - 1}")
        for w in range(1, 4):
            e(f"s_cmp_eq_u32 s16, {w}")
            e(f"s_cbranch_scc1 L_{t}_loop{w}")
        for w in range(4):
            g.var = (w >> 1, w & 1)
            wm, wn = g.var
            e(f"L_{t}_loop{w}:")
            g.step(e, False)
            e("s_sub_u32 s21, s21, 1")
            e("s_cmp_lg_u32 s21, 0")
            e(f"s_cbranch_scc1 L_{t}_loop{w}")
            stamp(e, 3)
            g.step(e, True)
            e("v_lshlrev_b32 v4, 2, v2")
            e(f"v_add_u32 v13, {g.SC}, v4")
            if wn == 0:
                e("v_and_b32 v5, 3, v1")
                e("v_cmp_eq_u32 s[86:87], 1, v5")
                e("v_cmp_eq_u32 s[88:89], 2, v5")
                e("v_cmp_eq_u32 s[90:91], 3, v5")
                e("v_lshrrev_b32 v5, 2, v2")
                e("v_cmp_eq_u32 vcc, v5, v3")
                e("s_nop 7")
                for tm in range(4):
                    a = g.accS + 4 * tm
                    for i in range(1, 4):
                        e(f"v_cndmask_b32 v{a}, v{a}, v{a+i}, s[{84+2*i}:{85+2*i}]")
            else:
                e("v_cmp_gt_u32 vcc, 16, v1")
                e("s_nop 7")
            e("s_and_saveexec_b64 s[92:93], vcc")
            for tm in range(4):
                e(f"ds_write_b32 v13, v{g.accS + 4 * tm} offset:{(g.SC_SQ if wn == 0 else g.SC_SUM) - g.SC + 256 * wm + 64 * tm}")
            e("s_mov_b64 exec, s[92:93]")
            if w != 3:
                e(f"s_branch L_{t}_join")
        e(f"L_{t}_join:")
        stamp(e, 4)
        if post_loop:
            post_loop()
        e("s_lshl_b32 s22, s16, 8")
        e(f"s_add_u32 s22, s22, {g.SC_CS}")
        if g.qtr:
            e("v_lshl_add_u32 v5, v3, 4, s22")
            e("v_cmp_eq_u32 vcc, 0, v2")
        else:
            e("v_add_u32 v5, s22, v4")
            e("v_cmp_gt_u32 vcc, 16, v1")
        e("s_and_saveexec_b64 s[92:93], vcc")
        for tn in range(4):
            a = g.accC + 4 * tn
            if g.qtr:
                e(f"ds_write_b128 v5, v[{a}:{a+3}] offset:{64 * tn}")
            else:
                e(f"ds_write_b32 v5, v{a} offset:{64 * tn}")
        e("s_mov_b64 exec, s[92:93]")
        e("s_waitcnt lgkmcnt(0)")
        e("s_barrier")
        f0 = g.fP[0]
        e("v_xor_b32 v5, 512, v5")
        for tn in range(4):
            if g.qtr:
                e(f"ds_read_b128 v[{f0+4*tn}:{f0+4*tn+3}], v5 offset:{64 * tn}")
            else:
                e(f"ds_read_b32 v{f0+4*tn}, v5 offset:{64 * tn}")
        e("s_lshl_b32 s22, s34, 8")
        e(f"s_add_u32 s22, s22, {g.SC}")
        e("v_lshl_add_u32 v6, v1, 2, s22")
        e(f"ds_read_b32 v7, v6 offset:{g.SC_SUM - g.SC}")
        e(f"ds_read_b32 v8, v6 offset:{g.SC_SQ - g.SC}")
        e("s_waitcnt lgkmcnt(2)")
        for tn in range(4):
            a = g.accC + 4 * tn
            for i in range(4 if g.qtr else 1):
                e(f"v_add_f32 v{a+i}, v{a+i}, v{f0+4*tn+i}")
        e("s_waitcnt lgkmcnt(0)")
        inv = f"{f32bits(1.0 / 512):#x}"
        eps = f"{f32bits(1e-5):#x}"
        e(f"v_mul_f32 v7, {inv}, v7")
        e(f"v_mul_f32 v8, {inv}, v8")
        e("v_fma_f32 v8, -v7, v7, v8")
        e("v_max_f32 v8, 0, v8")
        e("v_mov_b32 v9, v7")
        bf16r_scalar(e, 9)
        e("v_mov_b32 v10, v8")
        bf16r_scalar(e, 10)
        e(f"v_add_f32 v10, {eps}, v10")
        bf16r_scalar(e, 10)
        e("v_sqrt_f32 v10, v10")
        e("s_nop 0")
        bf16r_scalar(e, 10)
        e("v_rcp_f32 v10, v10")
        e("s_nop 0")
        if g.qtr:
            e("v_sub_f32 v11, v7, v9")
            e("v_mul_f32 v11, v11, v10")
            bf16r_scalar(e, 11)
            e("v_mul_f32 v8, v8, v10")
            e("v_mul_f32 v8, v8, v10")
            bf16r_scalar(e, 8)
            e(f"v_add_f32 v8, {eps}, v8")
            bf16r_scalar(e, 8)
            e("v_sqrt_f32 v8, v8")
            e("s_nop 0")
            bf16r_scalar(e, 8)
            e("v_rcp_f32 v8, v8")
            e("s_nop 0")
            e("v_fma_f32 v9, v9, v10, v11")
            e("v_mul_f32 v9, v9, v8")
            e("v_mul_f32 v10, v10, v8")
        else:
            e("v_mul_f32 v9, v9, v10")
        e("s_lshl_b32 s22, s16, 9")
        e(f"s_add_u32 s22, s22, {g.SC_AB}")
        e("v_lshl_add_u32 v6, v1, 2, s22")
        e("ds_write_b32 v6, v10")
        e("ds_write_b32 v6, v9 offset:256")
        e("s_waitcnt lgkmcnt(0)")
        g.al, g.be = f0 + 16, f0 + 32
        if g.qtr:
            e("v_lshl_add_u32 v6, v2, 2, s22")
            for tm in range(4):
                e(f"ds_read_b32 v{g.al + tm}, v6 offset:{64 * tm}")
                e(f"ds_read_b32 v{g.be + tm}, v6 offset:{256 + 64 * tm}")
        else:
            e("v_lshl_add_u32 v6, v3, 4, s22")
            for tm in range(4):
                e(f"ds_read_b128 v[{g.al + 4*tm}:{g.al + 4*tm + 3}], v6 offset:{64 * tm}")
                e(f"ds_read_b128 v[{g.be + 4*tm}:{g.be + 4*tm + 3}], v6 offset:{256 + 64 * tm}")
        e("s_waitcnt lgkmcnt(0)")


def cs_issue(e, late=False):
    e("s_lshr_b32 s22, s2, 3")
    e("s_lshl_b32 s22, s22, 2")
    e("s_add_u32 s22, s22, s16")
    e("s_bitcmp1_b32 s22, 4")
    e("s_cselect_b32 s64, s42, s40")
    e("s_cselect_b32 s65, s43, s41")
    e(f"s_mov_b32 s66, {8 << 20}")
    e("s_mov_b32 s67, 0x20000")
    e("s_bfe_u32 s23, s2, 0x20001")
    e("s_lshl_b32 s23, s23, 2")
    e("s_lshr_b32 s31, s22, 5")
    e("s_add_u32 s23, s23, s31")
    e("s_and_b32 s31, s2, 1")
    e("s_lshl_b32 s32, s31, 4")
    e("s_add_u32 s32, s32, s23")
    e("s_lshl_b32 s61, s32, 16")
    e("s_bfe_u32 s32, s22, 0x20003")
    e("s_lshl_b32 s32, s32, 10")
    e("s_add_u32 s61, s61, s32")
    e("s_and_b32 s32, s22, 7")
    e("s_lshl_b32 s60, s32, 13")
    e("s_add_u32 s61, s61, s60")
    e(f"s_add_u32 s61, s61, {WS_CS}")
    e("s_lshl_b32 s60, s32, 7")
    e("s_lshl_b32 s23, s23, 1")
    e("s_bfe_u32 s32, s22, 0x10003")
    e("s_add_u32 s23, s23, s32")
    e("s_lshl_b32 s23, s23, 5")
    e("s_add_u32 s23, s23, s31")
    e("v_and_b32 v3, 15, v0")
    e("v_lshl_add_u32 v3, v3, 1, s23")
    e("v_lshlrev_b32 v3, 12, v3")
    e("v_bfe_u32 v4, v0, 4, 2")
    e(f"v_lshl_add_u32 v{CSR+8}, v4, 4, v3")
    if not late:
        cs_loads(e)


def cs_loads(e):
    e(f"buffer_load_dwordx4 v[{CSR}:{CSR+3}], v{CSR+8}, s[64:67], s60 offen")
    e(f"buffer_load_dwordx4 v[{CSR+4}:{CSR+7}], v{CSR+8}, s[64:67], s60 offen offset:64")


def cs_store(e):
    e("v_and_b32 v5, 63, v0")
    e("v_lshlrev_b32 v5, 4, v5")
    e("s_add_u32 s60, s61, 4096")
    e("s_waitcnt vmcnt(0)")
    e(f"buffer_store_dwordx4 v[{CSR}:{CSR+3}], v5, s[24:27], s61 offen")
    e(f"buffer_store_dwordx4 v[{CSR+4}:{CSR+7}], v5, s[24:27], s60 offen")


def gen_k1(e, name):
    kernel_head(e, name)
    e("s_cmp_ge_u32 s2, 256")
    e("s_cbranch_scc1 L_k1_done")
    stamp_rt(e, 0)
    stamp(e, 1)
    e(f"s_load_dwordx2 s[4:5], s[0:1], {KA_WS}")
    e(f"s_load_dwordx2 s[62:63], s[0:1], {KA_X}")
    e(f"s_load_dwordx4 s[40:43], s[0:1], {KA_WSRE}")
    e(f"s_load_dwordx4 s[44:47], s[0:1], {KA_WDRE}")
    e(f"s_load_dwordx4 s[48:51], s[0:1], {KA_W1}")
    e(f"s_load_dwordx2 s[6:7], s[0:1], {KA_W2}")
    e("v_lshrrev_b32 v1, 6, v0")
    e("s_nop 0")
    e("v_readfirstlane_b32 s54, v1")
    e("s_nop 3")
    e("s_lshr_b32 s53, s54, 2")
    e("s_and_b32 s16, s54, 3")
    e("s_and_b32 s28, s2, 7")
    e("s_lshr_b32 s29, s2, 3")
    e("s_waitcnt lgkmcnt(0)")
    srd(e, 8, 62, 0, 2 << 20)
    srd(e, 24, 4, 0, 64 << 20)
    e("s_cmp_lt_u32 s29, 22")
    e("s_cbranch_scc1 L_k1_typeB")
    e("s_cmp_ge_u32 s29, 30")
    e("s_cbranch_scc1 L_k1_spare")
    e("s_sub_u32 s29, s29, 22")
    e("s_lshl_b32 s28, s28, 1")
    e("s_lshr_b32 s30, s29, 2")
    e("s_add_u32 s28, s28, s30")
    e("s_and_b32 s29, s29, 3")
    e("s_cmp_ge_u32 s29, 2")
    e("s_cselect_b32 s12, s46, s44")
    e("s_cselect_b32 s13, s47, s45")
    e(f"s_mov_b32 s14, {512 * 1024}")
    e("s_mov_b32 s15, 0x20000")
    e("s_and_b32 s18, s29, 1")
    e("s_lshl_b32 s18, s18, 17")

    def rowsA(e, jj):
        wm = jj >> 1
        e("v_bfe_u32 v5, v2, 2, 2")
        e("v_and_b32 v6, 3, v2")
        e("v_lshl_add_u32 v5, v5, 3, v6")
        e("s_lshl_b32 s22, s28, 5")
        e(f"s_add_u32 s22, s22, {4 * wm}")
        e("v_add_u32 v5, s22, v5")
        e("s_lshr_b32 s22, s16, 1")
        if jj & 1 == 0:
            e("s_cmp_eq_u32 s22, 0")
            e("s_cselect_b32 s23, 1, -1")
            e("s_cselect_b32 s31, 0, 2048")
            e("s_cselect_b32 s32, 0, 512")
        else:
            e("s_cmp_eq_u32 s22, 0")
            e("s_cselect_b32 s23, -1, 1")
            e("s_mov_b32 s31, 1024")
            e("s_cselect_b32 s32, 0, 512")
            e("s_add_u32 s32, s32, 1024")
        e("v_cmp_eq_u32 vcc, 0, v5")
        e("v_mov_b32 v6, s31")
        e("v_mad_i32_i24 v5, v5, s23, v6")
        e("v_mov_b32 v6, s32")
        e("v_cndmask_b32 v5, v5, v6, vcc")

    gA = G1("k1a", False)
    e("v_and_b32 v1, 15, v0")
    e("v_cmp_eq_u32 s[68:69], 0, v1")
    e("s_cmp_eq_u32 s29, 2")
    e("s_cselect_b32 s68, s68, 0")
    e("s_cselect_b32 s69, s69, 0")
    e("v_mov_b32 v15, 0xbf803f80")
    def preA():
        if TOUCH:
            e("v_and_b32 v1, 63, v0")
            e("v_lshrrev_b32 v2, 2, v1")
            e("s_and_b32 s22, s28, 1")
            e("s_lshl_b32 s22, s22, 6")
            e("s_lshl_b32 s23, s16, 4")
            e("s_add_u32 s22, s22, s23")
            e("v_add_u32 v2, s22, v2")
            e("v_lshlrev_b32 v2, 10, v2")
            e("v_and_b32 v3, 3, v1")
            e("v_lshl_add_u32 v2, v3, 7, v2")
            if TOUCH & 1:
                e("buffer_load_dword v14, v2, s[12:15], s18 offen")
            e("v_mov_b32 v209, v2")
            e("s_add_u32 s59, s18, 512")
            e("v_lshrrev_b32 v3, 3, v1")
            e("s_lshl_b32 s22, s16, 3")
            e("v_add_u32 v3, s22, v3")
            e("v_bfe_u32 v5, v3, 2, 2")
            e("v_and_b32 v6, 3, v3")
            e("v_lshl_add_u32 v5, v5, 3, v6")
            e("s_lshl_b32 s22, s28, 5")
            e("s_lshr_b32 s23, s29, 1")
            e("s_lshl_b32 s23, s23, 2")
            e("s_add_u32 s22, s22, s23")
            e("v_add_u32 v5, s22, v5")
            e("s_and_b32 s22, s29, 1")
            e("s_lshl_b32 s22, s22, 1")
            e("s_lshr_b32 s23, s16, 1")
            e("s_add_u32 s22, s22, s23")
            e("s_lshl_b32 s32, s22, 9")
            e("s_add_u32 s23, s22, 1")
            e("s_bitcmp1_b32 s23, 1")
            e("s_cselect_b32 s23, -1, 1")
            e("s_cmp_eq_u32 s22, 1")
            e("s_cselect_b32 s31, 2048, 0")
            e("s_cmp_ge_u32 s22, 2")
            e("s_cselect_b32 s31, 1024, s31")
            e("v_cmp_eq_u32 vcc, 0, v5")
            e("v_mov_b32 v6, s31")
            e("v_mad_i32_i24 v5, v5, s23, v6")
            e("v_mov_b32 v6, s32")
            e("v_cndmask_b32 v5, v5, v6, vcc")
            e("v_lshlrev_b32 v5, 10, v5")
            e("v_and_b32 v6, 7, v1")
            e("v_lshl_add_u32 v5, v6, 7, v5")
            if TOUCH & 2:
                e("buffer_load_dword v14, v5, s[8:11], 0 offen")
            if TOUCH & 4:
                e("buffer_load_dword v14, v2, s[12:15], s18 offen offset:512")
        cs_issue(e, CSLATE)

    gA.run(e, rowsA, [], preA, lambda: cs_store(e))
    f0 = gA.fP[0]
    sg = gA.vend
    e("s_cmp_ge_u32 s29, 2")
    e(f"s_cselect_b32 s22, {f32bits(-1.0):#x}, 1.0")
    e(f"v_mov_b32 v{sg+1}, s22")
    e("s_cmp_eq_u32 s35, 0")
    e("s_cselect_b32 s68, s68, 0")
    e("s_cselect_b32 s69, s69, 0")
    e(f"v_cndmask_b32 v{sg}, v{sg+1}, 1.0, s[68:69]")
    tq = f0 + 48
    for tn in range(4):
        c = gA.accC + 4 * tn
        for tm in range(4):
            a = gA.accreg(tm, tn)
            al, be = gA.al + 4 * tm, gA.be + 4 * tm
            t = tq + 4 * (tm & 1)
            for i in (0, 2):
                e(f"v_pk_mul_f32 v[{t+i}:{t+i+1}], v[{be+i}:{be+i+1}], v[{c}:{c+1}] op_sel_hi:[1,0]")
            for i in (0, 2):
                e(f"v_pk_fma_f32 v[{a+i}:{a+i+1}], v[{al+i}:{al+i+1}], v[{a+i}:{a+i+1}], v[{t+i}:{t+i+1}] neg_lo:[0,0,1] neg_hi:[0,0,1]")
    e("s_or_b32 s22, s28, s34")
    e("s_cmp_lg_u32 s22, 0")
    e("s_cbranch_scc1 L_k1a_nosp")
    e("s_lshl_b32 s22, s29, 9")
    e("s_lshl_b32 s23, s35, 8")
    e("s_add_u32 s22, s22, s23")
    e(f"s_add_u32 s22, s22, {WS_R}")
    e("s_mov_b64 exec, 0xffff")
    for tn in range(4):
        g1, g3 = gA.accreg(1, tn), gA.accreg(3, tn)
        e(f"v_fma_f32 v{tq+tn}, v{sg + (0 if tn == 0 else 1)}, v{g3}, v{g1}")
        e(f"v_mov_b32 v{g1}, 0")
        e(f"v_mov_b32 v{g3}, 0")
        e(f"buffer_store_dword v{tq+tn}, v4, s[24:27], s22 offen offset:{64 * tn}")
    e("s_mov_b64 exec, -1")
    e("L_k1a_nosp:")
    e("v_lshlrev_b32 v5, 4, v1")
    e("s_lshl_b32 s22, s34, 3")
    e("v_add_u32 v5, s22, v5")
    e("s_and_b32 s22, s29, 1")
    e("s_lshl_b32 s22, s22, 2")
    e("s_lshl_b32 s23, s35, 1")
    e("s_add_u32 s22, s22, s23")
    e("s_lshl_b32 s22, s22, 16")
    e("s_lshl_b32 s23, s28, 12")
    e("s_add_u32 s22, s22, s23")
    e("s_lshr_b32 s23, s29, 1")
    e("s_lshl_b32 s23, s23, 11")
    e("s_add_u32 s22, s22, s23")
    e(f"s_add_u32 s22, s22, {WS_AB}")
    e(f"s_add_u32 s23, s22, {1 << 19}")
    e(f"s_add_u32 s31, s22, {1 << 16}")
    e(f"s_add_u32 s32, s23, {1 << 16}")
    for tn in range(4):
        g0, g1, g2, g3 = [gA.accreg(tm, tn) for tm in range(4)]
        sel = 0 if tn == 0 else 1
        os_ = f"op_sel:[{sel},0,0] op_sel_hi:[{sel},1,1]"
        for i in (0, 2):
            e(f"v_pk_fma_f32 v[{g0+i}:{g0+i+1}], v[{sg}:{sg+1}], v[{g1+i}:{g1+i+1}], v[{g0+i}:{g0+i+1}] {os_}")
            e(f"v_pk_fma_f32 v[{g2+i}:{g2+i+1}], v[{sg}:{sg+1}], v[{g3+i}:{g3+i+1}], v[{g2+i}:{g2+i+1}] {os_}")
        for i in (0, 2):
            e(f"v_pk_fma_f32 v[{g1+i}:{g1+i+1}], v[{sg}:{sg+1}], v[{g2+i}:{g2+i+1}], v[{g0+i}:{g0+i+1}] {os_}")
            e(f"v_pk_fma_f32 v[{g3+i}:{g3+i+1}], v[{sg}:{sg+1}], v[{g2+i}:{g2+i+1}], v[{g0+i}:{g0+i+1}] {os_} neg_lo:[1,0,0] neg_hi:[1,0,0]")
        for gg in (g1, g3):
            e(f"v_cvt_pk_bf16_f32 v{gg}, v{gg}, v{gg+1}")
            e(f"v_cvt_pk_bf16_f32 v{gg+1}, v{gg+2}, v{gg+3}")
        e(f"buffer_store_dwordx2 v[{g1}:{g1+1}], v5, s[24:27], s{22 if tn < 2 else 31} offen offset:{(tn & 1) * 1024}")
        e(f"buffer_store_dwordx2 v[{g3}:{g3+1}], v5, s[24:27], s{23 if tn < 2 else 32} offen offset:{(tn & 1) * 1024}")
    if WBL2 & 1:
        e("s_waitcnt vmcnt(0)")
        e("buffer_wbl2 sc1")
    stamp(e, 5); stamp_rt(e, 6); stamp_flush(e, 1)
    e("s_endpgm")

    e("L_k1_typeB:")
    srd(e, 12, 48, 0, 512 * F * 2)
    srd(e, 36, 50, 0, F * 2)
    e("s_cmp_ge_u32 s29, 11")
    e("s_cselect_b32 s22, 11, 0")
    e("s_cselect_b32 s23, 2, 0")
    e("s_sub_u32 s30, s29, s22")
    e("s_lshl_b32 s30, s30, 7")
    e("s_lshl_b32 s18, s30, 1")
    e("s_and_b32 s29, s28, 1")
    e("s_lshr_b32 s28, s28, 1")
    e("s_lshl_b32 s28, s28, 2")
    e("s_add_u32 s28, s28, s23")

    def rowsB(e, jj):
        wm, half = jj >> 1, jj & 1
        e(f"s_add_u32 s22, s28, {wm}")
        e("s_lshl_b32 s22, s22, 6")
        e("s_add_u32 s22, s22, s29")
        e("v_lshl_add_u32 v5, v2, 1, s22")
        if half:
            e("v_cmp_eq_u32 vcc, 0, v5")
            e("v_sub_u32 v5, 2048, v5")
            e("v_mov_b32 v6, 1024")
            e("v_cndmask_b32 v5, v5, v6, vcc")

    gB = G1("k1b", True)
    vb = gB.vend
    e("s_and_b32 s23, s16, 1")
    e("s_lshl_b32 s23, s23, 6")
    e("s_add_u32 s33, s30, s23")
    e("v_and_b32 v1, 63, v0")
    e("v_lshrrev_b32 v3, 4, v1")
    e("v_lshlrev_b32 v12, 3, v3")
    e("s_lshl_b32 s33, s33, 1")
    extra = [[f"buffer_load_dwordx2 v[{vb+2*tn}:{vb+2*tn+1}], v12, s[36:39], s33 offen offset:{32*tn}"] for tn in range(4)]
    def preB():
        if TOUCH:
            e("s_lshr_b32 s22, s2, 3")
            e("s_lshl_b32 s22, s22, 2")
            e("s_add_u32 s22, s22, s16")
            e("s_lshl_b32 s22, s22, 13")
            e("v_lshlrev_b32 v2, 7, v1")
            if TOUCH & 1:
                e("buffer_load_dword v14, v2, s[12:15], s22 offen")
            e("v_mov_b32 v209, v2")
            e(f"s_add_u32 s59, s22, {5632 * 128}")
            e("s_lshr_b32 s23, s30, 7")
            e("s_cmp_ge_u32 s23, 4")
            e("s_cbranch_scc1 L_k1b_nox")
            e("v_lshrrev_b32 v4, 3, v1")
            e("s_lshl_b32 s31, s16, 3")
            e("v_add_u32 v4, s31, v4")
            e("s_lshr_b32 s31, s23, 1")
            e("s_add_u32 s31, s31, s28")
            e("s_lshl_b32 s31, s31, 6")
            e("s_add_u32 s31, s31, s29")
            e("v_lshl_add_u32 v5, v4, 1, s31")
            e("s_bitcmp1_b32 s23, 0")
            e("s_cselect_b32 s31, -1, 1")
            e("s_cselect_b32 s32, 2048, 0")
            e("v_mov_b32 v6, s32")
            e("v_mad_i32_i24 v5, v5, s31, v6")
            e("v_cmp_eq_u32 vcc, 2048, v5")
            e("v_mov_b32 v6, 1024")
            e("v_and_b32 v7, 7, v1")
            e("v_cndmask_b32 v5, v5, v6, vcc")
            e("v_lshlrev_b32 v5, 10, v5")
            e("v_lshl_add_u32 v5, v7, 7, v5")
            if TOUCH & 2:
                e("buffer_load_dword v14, v5, s[8:11], 0 offen")
            e("L_k1b_nox:")
            e(f"s_add_u32 s22, s22, {5632 * 128}")
            if TOUCH & 4:
                e("buffer_load_dword v14, v2, s[12:15], s22 offen")
        cs_issue(e, CSLATE)

    gB.run(e, rowsB, extra, preB, lambda: cs_store(e))
    f0 = gB.fP[0]
    k1 = -2.0 * math.sqrt(2.0 / math.pi) * math.log2(math.e)
    k2 = k1 * 0.044715
    kk = f0 + 40
    e(f"v_mov_b32 v{kk}, {f32bits(k1):#x}")
    e(f"v_mov_b32 v{kk+1}, {f32bits(k2):#x}")
    e(f"v_mov_b32 v{kk+2}, 1.0")
    e("v_lshlrev_b32 v5, 4, v1")
    e("s_lshl_b32 s22, s29, 4")
    e("s_add_u32 s22, s22, s28")
    e("s_add_u32 s22, s22, s34")
    e(f"s_mul_i32 s22, s22, {NKS}")
    e("s_lshr_b32 s23, s33, 6")
    e("s_add_u32 s22, s22, s23")
    e("s_lshl_b32 s22, s22, 12")
    if WS_H:
        e(f"s_add_u32 s22, s22, {WS_H}")
    b = f0 + 44
    q = f0 + 52

    def bc(r):
        return (f"v[{r}:{r+1}]", 0) if r % 2 == 0 else (f"v[{r-1}:{r}]", 1)

    for u in range(2):
        if u == 1:
            e(f"s_cmp_ge_u32 s23, {NKS - 1}")
            e("s_cbranch_scc1 L_k1b_skip")
            e("s_add_u32 s22, s22, 4096")
        for h in range(2):
            tn = 2 * u + h
            e(f"v_lshlrev_b32 v{b+4*h}, 16, v{vb+2*tn}")
            e(f"v_and_b32 v{b+4*h+1}, 0xffff0000, v{vb+2*tn}")
            e(f"v_lshlrev_b32 v{b+4*h+2}, 16, v{vb+2*tn+1}")
            e(f"v_and_b32 v{b+4*h+3}, 0xffff0000, v{vb+2*tn+1}")
        for tm in range(4):
            a = gB.accreg(tm, 2 * u)
            c = gB.accC + 8 * u
            bs, bsel = bc(gB.be + tm)
            as_, asel = bc(gB.al + tm)
            P = (0, 2, 4, 6)
            for i in P:
                e(f"v_pk_fma_f32 v[{q+i}:{q+i+1}], {bs}, v[{c+i}:{c+i+1}], v[{b+i}:{b+i+1}] op_sel:[{bsel},0,0] op_sel_hi:[{bsel},1,1] neg_lo:[1,0,0] neg_hi:[1,0,0]")
            for i in P:
                e(f"v_pk_fma_f32 v[{a+i}:{a+i+1}], {as_}, v[{a+i}:{a+i+1}], v[{q+i}:{q+i+1}] op_sel:[{asel},0,0] op_sel_hi:[{asel},1,1]")
            for i in P:
                e(f"v_pk_mul_f32 v[{q+i}:{q+i+1}], v[{a+i}:{a+i+1}], v[{a+i}:{a+i+1}]")
            for i in P:
                e(f"v_pk_fma_f32 v[{q+i}:{q+i+1}], v[{q+i}:{q+i+1}], v[{kk}:{kk+1}], v[{kk}:{kk+1}] op_sel:[0,1,0] op_sel_hi:[1,1,0]")
            for i in P:
                e(f"v_pk_mul_f32 v[{q+i}:{q+i+1}], v[{q+i}:{q+i+1}], v[{a+i}:{a+i+1}]")
            for r in range(8):
                e(f"v_exp_f32 v{q+r}, v{q+r}")
            for i in P:
                e(f"v_pk_add_f32 v[{q+i}:{q+i+1}], v[{q+i}:{q+i+1}], v[{kk+2}:{kk+3}] op_sel_hi:[1,0]")
            for r in range(8):
                e(f"v_rcp_f32 v{q+r}, v{q+r}")
            for i in P:
                e(f"v_pk_mul_f32 v[{q+i}:{q+i+1}], v[{q+i}:{q+i+1}], v[{a+i}:{a+i+1}]")
            for i in range(4):
                e(f"v_cvt_pk_bf16_f32 v{a+i}, v{q+2*i}, v{q+2*i+1}")
            e(f"buffer_store_dwordx4 v[{a}:{a+3}], v5, s[24:27], s22 offen offset:{tm * 1024}")
    e("L_k1b_skip:")
    if WBL2 & 2:
        e("s_waitcnt vmcnt(0)")
        e("buffer_wbl2 sc1")
    stamp(e, 5); stamp_rt(e, 6); stamp_flush(e, 1)
    e("s_endpgm")

    e("L_k1_spare:")
    e("s_sub_u32 s29, s29, 30")
    e("v_and_b32 v1, 63, v0")
    e("s_cmp_eq_u32 s29, 0")
    e("s_cselect_b32 s12, s40, s42")
    e("s_cselect_b32 s13, s41, s43")
    e(f"s_mov_b32 s14, {8 << 20}")
    e("s_mov_b32 s15, 0x20000")
    srd(e, 56, 6, 0, F * 512 * 2)
    e("v_lshrrev_b32 v2, 3, v1")
    e("v_and_b32 v4, 7, v1")
    e("s_lshl_b32 s30, s29, 3")
    e("s_add_u32 s30, s30, s28")
    e("v_lshlrev_b32 v5, 10, v2")
    e("v_lshl_add_u32 v5, v4, 4, v5")
    e("s_lshl_b32 s31, s30, 15")
    e("s_lshl_b32 s23, s54, 7")
    e("s_add_u32 s31, s31, s23")
    e("s_mul_i32 s19, s54, 12288")
    for it in range(3):
        for m in range(4):
            e(f"s_add_u32 m0, s19, {it * 4096 + m * 1024}")
            e(f"s_add_u32 s23, s31, {it * 16 * 32768 + m * 8192}")
            e("buffer_load_dwordx4 v5, s[56:59], s23 offen lds")
    cs_issue(e)
    e("v_lshrrev_b32 v6, 2, v1")
    e("v_lshlrev_b32 v6, 7, v6")
    e("v_and_b32 v7, 3, v1")
    e("v_lshl_add_u32 v6, v7, 3, v6")
    e("v_add_u32 v6, s19, v6")
    e("v_and_b32 v7, 15, v1")
    e("v_and_b32 v9, 48, v1")
    e("s_lshl_b32 s23, s54, 6")
    e(f"s_movk_i32 s33, {NKS}")
    for ctl in range(4):
        d = 10 + ctl
        e(f"s_add_u32 s32, s23, {16 * ctl}")
        e("v_add_u32 v16, s32, v7")
        e("v_sub_u32 v17, 512, v16")
        e("v_and_b32 v17, 255, v17")
        e("v_cmp_gt_u32 vcc, 256, v16")
        e("v_mov_b32 v18, 2048")
        e("s_nop 0")
        e("v_cndmask_b32 v16, v17, v16, vcc")
        e("v_cndmask_b32 v18, v18, 0, vcc")
        e("v_lshrrev_b32 v17, 5, v16")
        e("v_mul_lo_u32 v17, v17, s33")
        e("v_lshl_add_u32 v18, v17, 12, v18")
        e("v_bfe_u32 v17, v16, 4, 1")
        e("v_lshl_add_u32 v18, v17, 10, v18")
        e("v_and_b32 v17, 15, v16")
        e("v_add_u32 v17, v17, v9")
        e(f"v_lshl_add_u32 v{d}, v17, 4, v18")
    e("s_lshl_b32 s31, s30, 12")
    e(f"s_add_u32 s31, s31, {WS_W2F}")
    stamp(e, 2)
    e("s_waitcnt vmcnt(2)")
    stamp(e, 3)
    if INSTR:
        e("s_waitcnt lgkmcnt(0)")
    for it in range(3):
        for ctl in range(4):
            for h in range(2):
                r = 20 + 16 * it + 4 * ctl + 2 * h
                e(f"ds_read_b64_tr_b16 v[{r}:{r+1}], v6 offset:{it * 4096 + h * 2048 + ctl * 32}")
    cs_store(e)
    e("s_waitcnt lgkmcnt(0)")
    stamp(e, 4)
    for it in range(3):
        if it == 2:
            e(f"s_cmp_ge_u32 s30, {NKS - 32}")
            e("s_cbranch_scc1 L_k1_sdone")
        for ctl in range(4):
            r = 20 + 16 * it + 4 * ctl
            e(f"buffer_store_dwordx4 v[{r}:{r+3}], v{10+ctl}, s[24:27], s31 offen")
        e("s_add_u32 s31, s31, 65536")
    e("L_k1_sdone:")
    if WBL2 & 1:
        e("s_waitcnt vmcnt(0)")
        e("buffer_wbl2 sc1")
    if INSTR:
        e("s_waitcnt vmcnt(0)")
    stamp(e, 5); stamp_rt(e, 6); stamp_flush(e, 1)
    e("L_k1_done:")
    e("s_endpgm")
    return CSR + 10, G1.LDS


class VM:
    def __init__(self, e):
        self.e = e
        self.n = 0

    def load(self, ins):
        self.e(ins)
        self.n += 1
        return self.n

    def wait(self, idx):
        self.e(f"s_waitcnt vmcnt({self.n - idx})")


DEPTH = env('DEPTH', 3)
BUF = 16
ACC = BUF + 32 * DEPTH
XR = ACC + 64
AR = XR + 8
B2R = AR + 8
RV = B2R + 4
K2_V = RV + 4
LZ, LP, LX = 0, 49152, 57344
K2_LDS = LX + 5120


def k2_tail_loads():
    ops = []
    for i in range(8):
        ops.append(f"buffer_load_ushort v{XR+i}, v{AR+i}, s[24:27], 0 offen")
    for ct in range(2):
        ops.append(f"buffer_load_ushort v{B2R+ct}, v{B2R+2+ct}, s[32:35], 0 offen")
    ops += [f"buffer_load_dword v{RV}, v11, s[8:11], s54 offen",
            f"buffer_load_dword v{RV+1}, v11, s[8:11], s54 offen offset:64",
            f"buffer_load_dword v{RV+2}, v12, s[8:11], s55 offen"]
    return ops


def gen_k2(e, name):
    kernel_head(e, name)
    e("s_cmp_ge_u32 s2, 256")
    e("s_cbranch_scc1 L_k2_done")
    stamp_rt(e, 0)
    stamp(e, 1)
    e(f"s_load_dwordx2 s[4:5], s[0:1], {KA_WS}")
    e(f"s_load_dwordx2 s[6:7], s[0:1], {KA_X}")
    e(f"s_load_dwordx4 s[44:47], s[0:1], {KA_B2}")
    e("v_lshrrev_b32 v1, 6, v0")
    e("s_nop 0")
    e("v_readfirstlane_b32 s17, v1")
    e("v_and_b32 v1, 63, v0")
    e("v_lshlrev_b32 v2, 4, v1")
    e("s_and_b32 s28, s2, 7")
    e("s_lshr_b32 s31, s2, 3")
    e("s_and_b32 s30, s31, 7")
    e("s_lshr_b32 s22, s31, 3")
    e("s_lshr_b32 s29, s28, 1")
    e("s_lshl_b32 s29, s29, 2")
    e("s_add_u32 s29, s29, s22")
    e("s_and_b32 s28, s28, 1")
    e("s_and_b32 s16, s17, 3")
    e("s_lshr_b32 s18, s17, 2")
    e("s_lshl_b32 s19, s28, 4")
    e("s_add_u32 s19, s19, s29")
    e("s_waitcnt lgkmcnt(0)")
    srd(e, 8, 4, 0, 64 << 20)

    def late_setup():
        srd(e, 24, 6, 0, 2 << 20)
        srd(e, 36, 46, 0, 2 << 20)
        srd(e, 32, 44, 0, 1024)
        e("v_and_b32 v3, 15, v1")
        e("v_lshrrev_b32 v4, 4, v1")
        e("s_lshl_b32 s22, s29, 6")
        e("s_add_u32 s22, s22, s28")
        e("s_lshl_b32 s23, s18, 5")
        e("s_add_u32 s22, s22, s23")
        e("v_lshl_add_u32 v5, v4, 3, s22")
        e("s_lshr_b32 s22, s16, 1")
        e("s_cmp_eq_u32 s22, 0")
        e("s_cselect_b32 s50, 1, -1")
        e(f"s_cselect_b32 s51, 0, {2048 * 1024}")
        e("s_lshl_b32 s50, s50, 10")
        e("s_lshl_b32 s22, s30, 5")
        e("v_add_u32 v6, s22, v3")
        e("s_and_b32 s22, s16, 1")
        e("s_cmp_eq_u32 s22, 0")
        e("s_cselect_b32 s52, 2, -2")
        e("s_cselect_b32 s53, 0, 1024")
        e("v_mov_b32 v7, s53")
        e(f"v_mad_i32_i24 v{B2R+2}, v6, s52, v7")
        e("v_add_u32 v6, 16, v6")
        e(f"v_mad_i32_i24 v{B2R+3}, v6, s52, v7")
        e(f"v_cmp_eq_u32 vcc, 1024, v{B2R+2}")
        e("v_mov_b32 v7, 512")
        e("v_mov_b32 v8, s51")
        e(f"v_cndmask_b32 v{B2R+2}, v{B2R+2}, v7, vcc")
        for r in range(4):
            e(f"v_add_u32 v6, {2 * r}, v5")
            e("v_mad_i32_i24 v6, v6, s50, v8")
            if r == 0:
                e(f"v_cmp_eq_u32 vcc, {2048 * 1024}, v6")
                e(f"v_mov_b32 v7, {1024 * 1024}")
                e("s_nop 0")
                e("v_cndmask_b32 v6, v6, v7, vcc")
            for ct in range(2):
                e(f"v_add_u32 v{AR + ct * 4 + r}, v6, v{B2R+2+ct}")
        e("s_lshl_b32 s22, s28, 10")
        e("s_lshl_b32 s23, s30, 7")
        e("s_add_u32 s22, s22, s23")
        e(f"s_add_u32 s54, s22, {WS_R}")
        e(f"s_mov_b32 s55, {WS_R + 1024}")
        e("v_lshlrev_b32 v11, 2, v3")
        e("v_mov_b32 v12, 0")

    e("s_cmp_ge_u32 s17, 4")
    e("s_cbranch_scc1 L_k2_fin")
    e("s_cmp_eq_u32 s17, 3")
    e("s_cbranch_scc1 L_k2_pq")
    e(f"s_mul_i32 s48, s19, {NKS * 4096}")
    if WS_H:
        e(f"s_add_u32 s48, s48, {WS_H}")
    e(f"s_mul_i32 s49, s30, {NKS * 4096}")
    e(f"s_add_u32 s49, s49, {WS_W2F}")
    e("s_mul_i32 s22, s16, 14")
    e("s_min_u32 s23, s16, 1")
    e("s_add_u32 s22, s22, s23")
    e("s_lshl_b32 s22, s22, 12")
    e("s_add_u32 s48, s48, s22")
    e("s_add_u32 s49, s49, s22")

    def mf(a, A, B):
        e(f"v_mfma_f32_16x16x32_bf16 v[{a}:{a+3}], v[{A}:{A+3}], v[{B}:{B+3}], v[{a}:{a+3}]")

    def stream(nu, nacc, rowmf, pre=None):
        vm = VM(e)
        done = {}

        def issueA(u, ta):
            s = BUF + 32 * (u % DEPTH) + 4 * ta
            if ta == 0:
                e(f"s_add_u32 s56, s48, {u * 4096}")
            vm.load(f"buffer_load_dwordx4 v[{s}:{s+3}], v2, s[8:11], s56 offen offset:{ta * 1024}")

        def issueB(u):
            e(f"s_add_u32 s57, s49, {u * 4096}")
            for tb in range(4):
                s = BUF + 32 * (u % DEPTH) + 16 + 4 * tb
                done[u] = vm.load(f"buffer_load_dwordx4 v[{s}:{s+3}], v2, s[8:11], s57 offen offset:{tb * 1024}")

        for u in range(DEPTH):
            for ta in range(4):
                issueA(u, ta)
            issueB(u)
        for r in range(ACC, ACC + nacc):
            e(f"v_mov_b32 v{r}, 0")
        if pre:
            pre()
        late_setup()
        stamp(e, 2)
        tail = k2_tail_loads()
        for u in range(nu):
            vm.wait(done[u])
            s = BUF + 32 * (u % DEPTH)
            for ta in range(4):
                rowmf(s, ta)
                if u + DEPTH < nu:
                    issueA(u + DEPTH, ta)
                elif u + DEPTH == nu:
                    for ins in tail[ta * 4:(ta + 1) * 4]:
                        vm.load(ins)
            if u + DEPTH < nu:
                issueB(u + DEPTH)
        stamp(e, 3)

    def zrow(s, ta):
        for tb in range(4):
            mf(ACC + 4 * (ta * 4 + tb), s + 4 * ta, s + 16 + 4 * tb)

    def zpath(nu):
        stream(nu, 64, zrow)
        e("s_lshl_b32 s22, s16, 14")
        e("v_add_u32 v3, s22, v2")
        e("s_nop 7")
        for th in range(2):
            for eh in range(2):
                for rt in range(2):
                    for ct in range(2):
                        a = ACC + 4 * ((2 * th + rt) * 4 + 2 * eh + ct)
                        e(f"ds_write_b128 v3, v[{a}:{a+3}] offset:{LZ + (th * 2 + eh) * 4096 + (rt * 2 + ct) * 1024}")
        e("s_branch L_k2_final")

    e("s_cmp_eq_u32 s16, 0")
    e("s_cbranch_scc0 L_k2_z14")
    zpath(15)
    e("L_k2_z14:")
    zpath(14)

    e("L_k2_pq:")
    e("s_lshl_b32 s48, s19, 16")
    e(f"s_add_u32 s48, s48, {WS_CS}")
    e("s_lshl_b32 s22, s28, 3")
    e("s_add_u32 s22, s22, s30")
    e("s_lshl_b32 s49, s22, 16")
    e(f"s_add_u32 s49, s49, {WS_AB}")
    P, Q, X1, X2, X3 = ACC, ACC + 16, ACC + 32, ACC + 40, ACC + 48
    ALT = ACC + 52

    def pqrow(s, k):
        C = [s, s + 4]; S = [s + 8, s + 12]; AT = [s + 16, s + 20]; BT = [s + 24, s + 28]
        rt = k & 1
        if k < 2:
            for ct in range(2):
                mf(P + 4 * (rt * 2 + ct), C[rt], AT[ct])
            mf(X1 + 4 * rt, C[rt], BT[0])
        else:
            for ct in range(2):
                mf(Q + 4 * (rt * 2 + ct), S[rt], BT[ct])
            if rt == 0:
                mf(X2, ALT, AT[0]); mf(X2 + 4, ALT, AT[1])
            else:
                mf(X3, ALT, BT[0])

    def pqpre():
        for i in range(4):
            e(f"v_mov_b32 v{ALT+i}, 0xbf803f80")

    stream(16, 52, pqrow, pqpre)
    e("s_nop 7")
    e("s_nop 1")
    for t in range(13):
        e(f"ds_write_b128 v2, v[{ACC+4*t}:{ACC+4*t+3}] offset:{LP + t * 1024}")
    e("s_branch L_k2_final")

    e("L_k2_fin:")
    late_setup()
    for ins in k2_tail_loads():
        e(ins)
    stamp(e, 2); stamp(e, 3)
    e("L_k2_final:")
    e("s_lshl_b32 s22, s16, 12")
    e("s_lshl_b32 s23, s18, 11")
    e("s_add_u32 s22, s22, s23")
    e("v_add_u32 v3, s22, v2")
    e("v_add_u32 v4, s23, v2")
    e("s_lshl_b32 s23, s18, 10")
    e("v_add_u32 v5, s23, v2")
    e("s_lshr_b32 s22, s16, 1")
    e("s_xor_b32 s22, s22, s16")
    e("s_and_b32 s22, s22, 1")
    e("s_cmp_eq_u32 s22, 0")
    e("s_cselect_b32 s50, -1.0, 1.0")
    e("s_and_b32 s22, s22, s28")
    e("s_cmp_eq_u32 s22, 0")
    e("s_cselect_b32 s51, 1.0, -1.0")
    e("s_cmp_eq_u32 s28, 0")
    e("s_cselect_b32 s53, 1.0, 0")
    nl2e = -math.log2(math.e)
    e(f"s_mov_b32 s52, {f32bits(nl2e):#x}")
    e("s_waitcnt lgkmcnt(0)")
    e("s_barrier")
    stamp(e, 4)
    if INSTR:
        e("s_waitcnt lgkmcnt(0)")
    Z = [BUF, BUF + 8, BUF + 16]
    Pp, Qq, Xa, Xb, Xc = BUF + 24, BUF + 32, BUF + 40, BUF + 44, BUF + 52
    q = BUF + 56
    R2 = BUF + 64
    for w in range(3):
        for ct in range(2):
            e(f"ds_read_b128 v[{Z[w]+4*ct}:{Z[w]+4*ct+3}], v3 offset:{LZ + w * 16384 + ct * 1024}")
    for ct in range(2):
        e(f"ds_read_b128 v[{Pp+4*ct}:{Pp+4*ct+3}], v4 offset:{LP + ct * 1024}")
        e(f"ds_read_b128 v[{Qq+4*ct}:{Qq+4*ct+3}], v4 offset:{LP + 4096 + ct * 1024}")
    e(f"ds_read_b128 v[{Xa}:{Xa+3}], v5 offset:{LX}")
    e(f"ds_read_b32 v{Xb}, v2 offset:{LX + 2048}")
    e(f"ds_read_b32 v{Xb+4}, v2 offset:{LX + 3072}")
    e(f"ds_read_b32 v{Xc}, v2 offset:{LX + 4096}")
    e("s_waitcnt vmcnt(0)")
    for ct in range(2):
        e(f"v_lshlrev_b32 v{B2R+ct}, 16, v{B2R+ct}")
        e(f"v_mul_f32 v{R2+ct}, s51, v{RV+ct}")
    e(f"v_mul_f32 v{R2+2}, s53, v{RV}")
    e(f"v_mul_f32 v{R2+3}, s53, v{RV+2}")
    for i in range(8):
        e(f"v_lshlrev_b32 v{XR+i}, 16, v{XR+i}")
    z = Z[0]
    t = 6
    e("s_waitcnt lgkmcnt(10)")
    for i in range(0, 8, 2):
        e(f"v_pk_add_f32 v[{z+i}:{z+i+1}], v[{z+i}:{z+i+1}], v[{Z[1]+i}:{Z[1]+i+1}]")
    e("s_waitcnt lgkmcnt(8)")
    for i in range(0, 8, 2):
        e(f"v_pk_add_f32 v[{z+i}:{z+i+1}], v[{z+i}:{z+i+1}], v[{Z[2]+i}:{Z[2]+i+1}]")
    for i in range(0, 8, 2):
        bf16r_pair(e, z + i, z + i + 1, t)
    for i in range(8):
        e(f"v_add_f32 v{z+i}, v{z+i}, v{B2R + (i >> 2)}")
    for i in range(0, 8, 2):
        bf16r_pair(e, z + i, z + i + 1, t)
    for i in range(8):
        e(f"v_mul_f32 v{q+i}, s52, v{z+i}")
    for i in range(8):
        e(f"v_exp_f32 v{q+i}, v{q+i}")
    for i in range(8):
        e(f"v_add_f32 v{q+i}, 1.0, v{q+i}")
    for i in range(8):
        e(f"v_rcp_f32 v{q+i}, v{q+i}")
    e("s_waitcnt lgkmcnt(0)")
    Y = Qq
    for i in range(8):
        e(f"v_fma_f32 v{Y+i}, s50, v{Qq+i}, v{Pp+i}")
    for i in range(8):
        e(f"{'v_add_f32' if i % 2 == 0 else 'v_sub_f32'} v{Y+i}, v{Y+i}, v{R2 + (i >> 2)}")
    for i in range(8):
        e(f"v_mul_f32 v{z+i}, v{q+i}, v{z+i}")
    e("s_cmp_lg_u32 s30, 0")
    e("s_cbranch_scc1 L_k2_n0")
    e("s_mov_b32 s22, 0x00010001")
    e("s_mov_b32 s23, 0x00010001")
    e("s_mov_b64 exec, s[22:23]")
    e("s_bitcmp1_b32 s16, 0")
    e("s_cbranch_scc1 L_k2_n0b")
    for r in range(4):
        e(f"{'v_add_f32' if r % 2 == 0 else 'v_sub_f32'} v{Y+r}, v{Pp+r}, v{R2+2}")
    e("s_branch L_k2_n0c")
    e("L_k2_n0b:")
    for r in range(4):
        e(f"{'v_add_f32' if r % 2 == 0 else 'v_sub_f32'} v{Y+r}, v{Xa+r}, v{R2+3}")
    e("L_k2_n0c:")
    e("s_mov_b64 exec, -1")
    e("L_k2_n0:")
    e("s_or_b32 s22, s19, s18")
    e("s_cmp_lg_u32 s22, 0")
    e("s_cbranch_scc1 L_k2_c0")
    e("s_cmp_lt_u32 s16, 2")
    e("s_cbranch_scc1 L_k2_c0")
    e("s_mov_b64 exec, 0xffff")
    for ct in range(2):
        e(f"v_add_f32 v{Y+4*ct}, v{Xb+4*ct}, v{RV+ct}")
    e("s_cmp_eq_u32 s30, 0")
    e("s_cselect_b32 s22, s16, 0")
    e("s_and_b32 s22, s22, 1")
    e("s_mov_b32 s23, 0")
    e("s_mov_b64 exec, s[22:23]")
    e(f"v_add_f32 v{Y}, v{Xc}, v{RV+2}")
    e("s_mov_b64 exec, -1")
    e("L_k2_c0:")
    for i in range(0, 8, 2):
        bf16r_pair(e, z + i, z + i + 1, t)
    for i in range(0, 8, 2):
        bf16r_pair(e, Y + i, Y + i + 1, t)
    for i in range(8):
        e(f"v_mul_f32 v{z+i}, v{z+i}, v{Y+i}")
    for i in range(0, 8, 2):
        bf16r_pair(e, z + i, z + i + 1, t)
    for i in range(8):
        e(f"v_add_f32 v{z+i}, v{z+i}, v{XR+i}")
    for i in range(0, 8, 2):
        e(f"v_cvt_pk_bf16_f32 v{q+i}, v{z+i}, v{z+i+1}")
        e(f"buffer_store_short v{q+i}, v{AR+i}, s[36:39], 0 offen")
        e(f"buffer_store_short_d16_hi v{q+i}, v{AR+i+1}, s[36:39], 0 offen")
    if INSTR:
        e("s_cmp_ge_u32 s17, 4")
        e("s_cbranch_scc1 L_k2_done")
    stamp(e, 5); stamp_rt(e, 6); stamp_flush(e, 2)
    e("L_k2_done:")
    e("s_endpgm")
    return K2_V, K2_LDS


def main(out):
    e = E()
    n1, n2 = "fnet_k1_kernel", "fnet_k2_kernel"
    v1, l1 = gen_k1(e, n1)
    v2, l2 = gen_k2(e, n2)
    hdr = open("cdna_kernels/" + NAME + ".s.ref").read().split("; Override launch geometry")[0]
    s = hdr
    s += f"; @launch kernel={n1} grid=(256,1,1) block=(512,1,1) lds={l1}\n"
    s += f"; @launch kernel={n2} grid=(256,1,1) block=(512,1,1) lds={l2}\n"
    s += '.amdgcn_target "amdgcn-amd-amdhsa--gfx950"\n.text\n'
    s += e.text()
    s += '.section .rodata,"a"\n'
    for n, v in ((n1, v1), (n2, v2)):
        s += ".p2align 6\n" + kdesc(n, v)
    open(out, "w").write(s)
    print("vgprs", v1, v2, "lds", l1, l2)


if __name__ == "__main__":
    if len(sys.argv) > 2 and sys.argv[2] == "instr":
        INSTR = True
    main(sys.argv[1] if len(sys.argv) > 1 else "cdna_kernels/" + NAME + ".s")
```
